```python
import torch

def _softmax(x, axis=-1):
    return torch.softmax(x, dim=axis)
def _gelu(x):
    return torch.nn.functional.gelu(x, approximate="tanh")
def _silu(x):
    return torch.nn.functional.silu(x)
def _sigmoid(x):
    return torch.sigmoid(x)
def _layernorm(x, axis=-1, eps=1e-5):
    m = x.mean(dim=axis, keepdim=True)
    v = x.var(dim=axis, keepdim=True, unbiased=False)
    return (x - m) / torch.sqrt(v + eps)
def _scatter_add(tgt, idx, src, axis=0):
    return tgt.clone().index_add_(axis, idx, src)
def _segment_sum(src, seg, n):
    out = torch.zeros((n,) + src.shape[1:], dtype=src.dtype)
    return out.index_add_(0, seg, src)
def _pad(x, pw):
    flat = tuple(v for pair in reversed(pw) for v in pair)
    return torch.nn.functional.pad(x, flat)

kernel_name = 'standalone__qk_norm__prompt'

def setup_inputs():

    _w = (lambda a: (lambda t: t.to(torch.bfloat16) if t.is_floating_point() else t)(torch.as_tensor(a)))
    B, H, S, D = 2, 32, 2048, 576
    Dh = D // H
    return {
        "q": _w((lambda *s: torch.randn(*s, dtype=torch.bfloat16) * 0.05)(B, H, S, Dh)),
        "k": _w((lambda *s: torch.randn(*s, dtype=torch.bfloat16) * 0.05)(B, H, S, Dh)),
        "v": _w((lambda *s: torch.randn(*s, dtype=torch.bfloat16) * 0.4)(B, H, S, Dh)),
        "t": _w(torch.abs((lambda *s: torch.randn(*s, dtype=torch.bfloat16) * 0.4)(H)) + 1.0),
    }

def reference(q, k, v, t):
    eps = 1e-6
    qn = q / (torch.sqrt((q * q).sum(axis=-1, keepdims=True)) + eps)
    kn = k / (torch.sqrt((k * k).sum(axis=-1, keepdims=True)) + eps)
    logits = torch.einsum('bhqd,bhkd->bhqk', qn, kn) * t[None, :, None, None]
    attn = _softmax(logits, axis=-1)
    return torch.einsum('bhqk,bhkd->bhqd', attn, v)
```

```python
def vr(base, n=1):
    return f"v{base}" if n == 1 else f"v[{base}:{base + n - 1}]"


def rng(base, n=1):
    return set(range(base, base + n))


class Inst:
    __slots__ = ("text", "cls", "wr", "rd", "rdc", "passes", "ws", "swr", "srd", "flags")

    def __init__(self, text, cls, wr=(), rd=(), rdc=(), passes=0, ws=1, swr=(), srd=(), flags=()):
        self.text = text
        self.cls = cls
        self.wr = set(wr)
        self.rd = set(rd)
        self.rdc = set(rdc)
        self.passes = passes
        self.ws = ws
        self.swr = set(swr)
        self.srd = set(srd)
        self.flags = set(flags)


MF_D2VALU = {2: 5, 4: 8, 8: 12, 16: 20}
MF_D2COVL = {2: 4, 4: 6, 8: 10, 16: 18}
MF_CWAR = {2: 1, 4: 3, 8: 7, 16: 15}


class Prog:
    def __init__(self):
        self.ins = []
        self.lds_pend = []
        self.vm_pend = []
        self.nops_inserted = 0

    def _need(self, new):
        need = 0
        dist = 0
        for old in reversed(self.ins):
            if old.cls == "label":
                break
            if dist > 24:
                break
            if old.cls in ("other", "label2"):
                continue
            req = 0
            isv = new.cls in ("valu", "trans")
            if old.cls in ("valu", "trans"):
                if new.cls == "mfma" and old.wr & (new.rd | new.rdc):
                    req = max(req, 2)
                if old.cls == "trans" and new.cls == "valu" and old.wr & (new.rd | new.wr):
                    req = max(req, 1)
                if old.cls == "trans" and new.cls in ("ds", "vmem") and old.wr & new.rd:
                    req = max(req, 1)
                if "sdwa" in old.flags and isv and old.wr & (new.rd | new.wr):
                    req = max(req, 1)
                if "sdwa" in new.flags and old.wr & new.wr:
                    req = max(req, 1)
                if "dot" in old.flags and old.wr & (new.rd | new.wr | new.rdc):
                    if not ("dot" in new.flags and "dotc" in new.flags and not (old.wr & new.rd)):
                        req = max(req, 3)
                if "permlane" in new.flags and old.wr & (new.rd | new.wr):
                    req = max(req, 2)
                if "readlane" in new.flags and old.wr & new.rd:
                    req = max(req, 1)
                if old.swr:
                    if new.cls == "vmem" and old.swr & new.srd:
                        req = max(req, 5)
                    if isv and old.swr & new.srd:
                        req = max(req, 2)
                    if new.cls == "salu" and old.swr & new.srd:
                        req = max(req, 2)
                    if "exec" in old.swr and new.cls == "mfma":
                        req = max(req, 4)
            if old.cls == "mfma":
                if new.cls == "mfma":
                    if old.wr & new.rd:
                        req = max(req, MF_D2VALU[old.passes])
                    if old.wr & new.rdc:
                        if not (old.wr == new.rdc and old.passes == new.passes):
                            req = max(req, MF_D2COVL[old.passes])
                        elif old.passes == 2:
                            req = max(req, 2)
                    elif old.wr & new.wr:
                        req = max(req, MF_D2COVL[old.passes])
                elif new.cls in ("valu", "trans", "ds", "vmem"):
                    if old.wr & (new.rd | new.wr):
                        req = max(req, MF_D2VALU[old.passes])
                    if isv and old.rdc & new.wr:
                        req = max(req, MF_CWAR[old.passes])
            if old.cls == "vmem" and "widestore" in old.flags and old.rd & new.wr:
                req = max(req, 2)
            if req > dist:
                need = max(need, req - dist)
            dist += old.ws
        return need

    def _waits(self, new):
        touched = new.rd | new.wr | new.rdc
        idx = -1
        for i, d in enumerate(self.lds_pend):
            if d and d & touched:
                idx = i
        if idx >= 0:
            n = len(self.lds_pend) - 1 - idx
            n = min(n, 15)
            self.ins.append(Inst(f"s_waitcnt lgkmcnt({n})", "wait"))
            self.lds_pend = self.lds_pend[len(self.lds_pend) - n:] if n else []
        idx = -1
        for i, d in enumerate(self.vm_pend):
            if d and d & touched:
                idx = i
        if idx >= 0:
            n = len(self.vm_pend) - 1 - idx
            n = min(n, 63)
            self.ins.append(Inst(f"s_waitcnt vmcnt({n})", "wait"))
            self.vm_pend = self.vm_pend[len(self.vm_pend) - n:] if n else []

    def add(self, inst):
        self._waits(inst)
        n = self._need(inst)
        while n > 0:
            k = min(n, 16)
            self.ins.append(Inst(f"s_nop {k - 1}", "nop", ws=k))
            self.nops_inserted += k
            n -= k
        self.ins.append(inst)
        return inst

    def raw(self, text, cls="salu", **kw):
        return self.add(Inst(text, cls, **kw))

    def salu(self, text, swr=(), srd=()):
        return self.add(Inst(text, "salu", swr=swr, srd=srd))

    def label(self, name):
        self.ins.append(Inst(f"{name}:", "label", ws=0))

    def comment(self, t):
        self.ins.append(Inst(f"; {t}", "other", ws=0))

    def nop(self, n):
        while n > 0:
            k = min(n, 16)
            self.ins.append(Inst(f"s_nop {k - 1}", "nop", ws=k))
            n -= k

    def flush(self):
        self.ins.append(Inst("s_waitcnt vmcnt(0) lgkmcnt(0)", "wait"))
        self.lds_pend = []
        self.vm_pend = []
        self.nop(22)

    def wait_lds(self, n=0):
        self.ins.append(Inst(f"s_waitcnt lgkmcnt({n})", "wait"))
        self.lds_pend = self.lds_pend[len(self.lds_pend) - n:] if n else []

    def wait_vm(self, n=0):
        self.ins.append(Inst(f"s_waitcnt vmcnt({n})", "wait"))
        self.vm_pend = self.vm_pend[len(self.vm_pend) - n:] if n else []

    def valu(self, text, wr=(), rd=(), swr=(), srd=(), flags=()):
        return self.add(Inst(text, "valu", wr=wr, rd=rd, swr=swr, srd=srd, flags=flags))

    def trans(self, text, wr=(), rd=(), flags=()):
        return self.add(Inst(text, "trans", wr=wr, rd=rd, flags=flags))

    def mfma(self, op, D, nD, A, nA, B, nB, C, passes):
        ctext = "0" if C is None else vr(C, nD)
        return self.add(Inst(f"{op} {vr(D, nD)}, {vr(A, nA)}, {vr(B, nB)}, {ctext}", "mfma",
                             wr=rng(D, nD), rd=rng(A, nA) | rng(B, nB),
                             rdc=(set() if C is None else rng(C, nD)), passes=passes))

    def ds_read(self, op, D, n, addr, off):
        assert 0 <= off < 65536, off
        i = self.add(Inst(f"{op} {vr(D, n)}, v{addr} offset:{off}", "ds", wr=rng(D, n), rd={addr}))
        self.lds_pend.append(rng(D, n))
        return i

    def ds_write(self, op, addr, S, n, off):
        assert 0 <= off < 65536, off
        i = self.add(Inst(f"{op} v{addr}, {vr(S, n)} offset:{off}", "ds", rd={addr} | rng(S, n)))
        self.lds_pend.append(None)
        return i

    def bload(self, n, D, voff, srd, soff, off):
        op = {1: "buffer_load_dword", 2: "buffer_load_dwordx2", 3: "buffer_load_dwordx3", 4: "buffer_load_dwordx4"}[n]
        sreads = set(range(srd, srd + 4))
        if isinstance(soff, str) and soff.startswith("s"):
            sreads.add(int(soff[1:]))
        i = self.add(Inst(f"{op} {vr(D, n)}, v{voff}, s[{srd}:{srd + 3}], {soff} offen offset:{off}", "vmem",
                          wr=rng(D, n), rd={voff}, srd=sreads))
        self.vm_pend.append(rng(D, n))
        return i

    def bstore(self, n, S, voff, srd, soff, off):
        op = {1: "buffer_store_dword", 2: "buffer_store_dwordx2", 3: "buffer_store_dwordx3", 4: "buffer_store_dwordx4"}[n]
        sreads = set(range(srd, srd + 4))
        if isinstance(soff, str) and soff.startswith("s"):
            sreads.add(int(soff[1:]))
        i = self.add(Inst(f"{op} {vr(S, n)}, v{voff}, s[{srd}:{srd + 3}], {soff} offen offset:{off}", "vmem",
                          rd={voff} | rng(S, n), srd=sreads, flags=("widestore",) if n >= 3 else ()))
        self.vm_pend.append(None)
        return i

    def text(self):
        out = []
        for i in self.ins:
            if i.cls == "label":
                out.append(i.text)
            else:
                out.append("    " + i.text)
        return "\n".join(out)
```

```python
import struct
import sys
from emit import Prog, vr, rng

NAME = "standalone__qk_norm__prompt"
OUT = sys.argv[1] if len(sys.argv) > 1 else f"cdna_kernels/{NAME}.s"
FORCE_GENERIC = "--generic" in sys.argv

TENSOR_BYTES = 2 * 32 * 2048 * 18 * 2
ROWB = 36
KTILE = 1280
VOFF = 16 * KTILE
VH = 528
VFRAG = 2 * VH
BUF = VOFF + 32 * VFRAG
FLAG = 3 * BUF
LDS_BYTES = FLAG + 64


def f32bits(x):
    return struct.unpack("<I", struct.pack("<f", x))[0]


def f16bits(x):
    return struct.unpack("<H", struct.pack("<e", x))[0]


LOG2E = 1.4426950408889634
MAGIC_A = f16bits(192.0) | (f16bits(220.0) << 16)
MAGIC_B = f16bits(192.0) | (f16bits(131.0) << 16)
T_MAX_BITS = 0x402F0000


def drow(d):
    if d < 10:
        r, h = d, 0
    else:
        r, h = d - 10, 1
    return 8 * (r // 4) + 4 * h + (r % 4)


S_Q, S_K, S_V, S_O = 16, 20, 24, 28
S_HEAD, S_QB, S_WAVE, S_T, S_KOFF, S_QOFF = 32, 33, 34, 35, 36, 37
S_TMP, S_TMP2 = 38, 39
S_BADM = 40
S_BAD = 42
S_HIMASK, S_EPS, S_CLS, S_THR, S_SOFF, S_CNT, S_CNT2 = 44, 45, 46, 47, 48, 49, 50
S_SAVE = 52

V_TID, V_LANE, V_GOFF = 0, 1, 2
V_RKM = [3, 4, 5]
V_RKE = [6, 7, 8]
V_RV = [9, 10, 11]
V_WK, V_WKE, V_WV = 12, 13, 14
V_WK2, V_WKE2, V_WV2 = 15, 16, 17
V_VMAX, V_C, V_FLAGV = 18, 19, 20
V_T0 = 22
QM0, QM1, QE = 36, 40, 44
KE = 46
KM = [48, 52]
VA = [56, 60]
VB = [64, 68]
P = 72
SB = [88, 120]
O0, O1 = 152, 168
RK = 184
RV = 196
RQ = 208
Y = 220
GM = [232, 233]
NVGPR = 240

p = Prog()


def load_rows(dst, srd, soff):
    p.bload(4, dst, V_GOFF, srd, soff, 0)
    p.bload(4, dst + 4, V_GOFF, srd, soff, 16)
    p.bload(1, dst + 8, V_GOFF, srd, soff, 32)


def norm_row(x, scale_reg, check):
    a, b = V_T0, V_T0 + 1
    for j in range(9):
        acc = a if j % 2 == 0 else b
        c = "0" if j < 2 else f"v{acc}"
        p.valu(f"v_dot2_f32_bf16 v{acc}, v{x + j}, v{x + j}, {c}", wr={acc}, rd={x + j},
               flags=("dot", "dotc"))
    R = V_T0 + 2
    p.valu(f"v_add_f32 v{a}, v{a}, v{b}", wr={a}, rd={a, b})
    if check:
        p.valu(f"v_cmp_class_f32 vcc, v{a}, s{S_CLS}", rd={a}, swr={"vcc"}, srd={S_CLS})
    p.trans(f"v_sqrt_f32 v{R}, v{a}", wr={R}, rd={a})
    if check:
        p.salu(f"s_or_b64 s[{S_BADM}:{S_BADM + 1}], s[{S_BADM}:{S_BADM + 1}], vcc", srd={"vcc"})
    p.valu(f"v_add_f32 v{R}, s{S_EPS}, v{R}", wr={R}, rd={R}, srd={S_EPS})
    p.trans(f"v_rcp_f32 v{R}, v{R}", wr={R}, rd={R})
    if scale_reg is not None:
        p.valu(f"v_mul_f32 v{R}, v{R}, v{scale_reg}", wr={R}, rd={R, scale_reg})
    T = [V_T0 + 4, V_T0 + 6, V_T0 + 8]
    def unpack(j):
        t = T[j % 3]
        p.valu(f"v_lshlrev_b32 v{t}, 16, v{x + j}", wr={t}, rd={x + j})
        p.valu(f"v_and_b32 v{t + 1}, s{S_HIMASK}, v{x + j}", wr={t + 1}, rd={x + j}, srd={S_HIMASK})
    unpack(0)
    for j in range(9):
        if j + 1 < 9:
            unpack(j + 1)
        t = T[j % 3]
        p.valu(f"v_pk_mul_f32 v[{t}:{t + 1}], v[{t}:{t + 1}], v[{R}:{R + 1}] op_sel_hi:[1,0]",
               wr={t, t + 1}, rd={t, t + 1, R})
        p.valu(f"v_cvt_pk_f16_f32 v{Y + j}, v{t}, v{t + 1}", wr={Y + j}, rd={t, t + 1})


def k_prep(check=True):
    norm_row(RK, None, check)
    p.valu(f"v_mov_b32 v{Y + 9}, 0x{MAGIC_A:08x}", wr={Y + 9})
    p.ds_write("ds_write_b128", V_WK2, Y, 4, 0)
    p.ds_write("ds_write_b128", V_WK2, Y + 4, 4, 512)
    p.ds_write("ds_write_b64", V_WKE2, Y + 8, 2, 0)


def v_prep(first):
    T = [V_T0 + 4, V_T0 + 6, V_T0 + 8]
    for j in range(9):
        t = T[j % 3]
        y = Y + j
        p.valu(f"v_lshlrev_b32 v{t}, 16, v{RV + j}", wr={t}, rd={RV + j})
        p.valu(f"v_and_b32 v{t + 1}, s{S_HIMASK}, v{RV + j}", wr={t + 1}, rd={RV + j}, srd={S_HIMASK})
        p.valu(f"v_cvt_pkrtz_f16_f32 v{y}, v{t}, v{t + 1}", wr={y}, rd={t, t + 1})
        p.valu(f"v_max3_f32 v{V_VMAX}, |v{t}|, |v{t + 1}|, v{V_VMAX}", wr={V_VMAX}, rd={t, t + 1, V_VMAX})
        if first:
            for u in (t, t + 1):
                p.valu(f"v_cmp_le_f32 vcc, s{S_THR}, |v{u}|", rd={u}, swr={"vcc"}, srd={S_THR})
                p.salu("s_cmp_eq_u64 vcc, 0", srd={"vcc"})
                p.salu(f"s_addc_u32 s{S_BAD}, s{S_BAD}, 0")
        p.ds_write("ds_write_b16", V_WV2, y, 1, drow(2 * j) * 16)
        p.ds_write("ds_write_b16_d16_hi", V_WV2, y, 1, drow(2 * j + 1) * 16)


def set_write_base(b):
    base = b * BUF
    for src, dst in ((V_WK, V_WK2), (V_WKE, V_WKE2), (V_WV, V_WV2)):
        p.valu(f"v_add_u32 v{dst}, 0x{base:x}, v{src}", wr={dst}, rd={src})


def q_prep(scale_reg, magic, check):
    norm_row(RQ, scale_reg, check)
    for j in range(4):
        p.valu(f"v_mov_b32 v{QM0 + j}, v{Y + j}", wr={QM0 + j}, rd={Y + j})
        p.valu(f"v_mov_b32 v{QM1 + j}, v{Y + 4 + j}", wr={QM1 + j}, rd={Y + 4 + j})
    p.valu(f"v_mov_b32 v{QE}, v{Y + 8}", wr={QE}, rd={Y + 8})
    p.valu(f"v_mov_b32 v{QE + 1}, 0x{magic:08x}", wr={QE + 1})
    for j in range(4):
        p.valu(f"v_permlane32_swap_b32 v{QM0 + j}, v{QM1 + j}", wr={QM0 + j, QM1 + j}, rd={QM0 + j, QM1 + j},
               flags=("permlane",))


def write_ones(nbuf, one16):
    t, a, b = V_T0, V_T0 + 1, V_T0 + 2
    p.valu(f"v_lshrrev_b32 v{t}, 1, v{V_TID}", wr={t}, rd={V_TID})
    p.valu(f"v_lshrrev_b32 v{a}, 6, v{t}", wr={a}, rd={t})
    p.valu(f"v_mul_u32_u24 v{a}, 0x{BUF:x}, v{a}", wr={a}, rd={a})
    p.valu(f"v_and_b32 v{t}, 63, v{t}", wr={t}, rd={t})
    p.valu(f"v_mul_u32_u24 v{t}, {VH}, v{t}", wr={t}, rd={t})
    p.valu(f"v_add_u32 v{a}, v{a}, v{t}", wr={a}, rd={a, t})
    p.valu(f"v_and_b32 v{t}, 1, v{V_TID}", wr={t}, rd={V_TID})
    p.valu(f"v_lshlrev_b32 v{t}, 6, v{t}", wr={t}, rd={t})
    p.valu(f"v_add_u32 v{a}, v{a}, v{t}", wr={a}, rd={a, t})
    w = one16 | (one16 << 16)
    for j in range(4):
        p.valu(f"v_mov_b32 v{Y + j}, 0x{w:08x}", wr={Y + j})
    p.valu(f"v_cmp_gt_u32 vcc, {nbuf * 128}, v{V_TID}" if nbuf * 128 <= 64 else
           f"v_cmp_gt_u32 vcc, 0x{nbuf * 128:x}, v{V_TID}", rd={V_TID}, swr={"vcc"})
    p.salu(f"s_and_saveexec_b64 s[{S_SAVE}:{S_SAVE + 1}], vcc", srd={"vcc"})
    lab = f"L_ones_skip_{one16:x}"
    p.salu(f"s_cbranch_execz {lab}")
    p.ds_write("ds_write_b128", a, Y, 4, VOFF + 18 * 16)
    p.wait_lds(0)
    p.ins.append(__import__("emit").Inst(f"{lab}:", "other", ws=0))
    p.ins[-1].cls = "label2"
    p.salu(f"s_mov_b64 exec, s[{S_SAVE}:{S_SAVE + 1}]")


p.salu("s_cmp_ge_u32 s2, 256")
p.salu("s_cbranch_scc1 L_end")
p.salu("s_load_dwordx8 s[4:11], s[0:1], 0")
p.salu("s_load_dwordx2 s[12:13], s[0:1], 32")
p.salu(f"s_and_b32 s{S_TMP}, s2, 7")
p.salu(f"s_lshr_b32 s{S_TMP2}, s2, 3")
p.salu(f"s_and_b32 s{S_QB}, s{S_TMP2}, 3")
p.salu(f"s_lshr_b32 s{S_TMP2}, s{S_TMP2}, 2")
p.salu(f"s_lshl_b32 s{S_HEAD}, s{S_TMP}, 3")
p.salu(f"s_add_u32 s{S_HEAD}, s{S_HEAD}, s{S_TMP2}")
p.salu(f"s_mul_i32 s{S_KOFF}, s{S_HEAD}, {2048 * ROWB}")
p.salu(f"s_mul_i32 s{S_TMP}, s{S_QB}, {512 * ROWB}")
p.salu(f"s_add_u32 s{S_QOFF}, s{S_KOFF}, s{S_TMP}")
p.valu(f"v_mul_u32_u24 v{V_GOFF}, {ROWB}, v{V_TID}", wr={V_GOFF}, rd={V_TID})
p.valu(f"v_and_b32 v{V_LANE}, 63, v{V_TID}", wr={V_LANE}, rd={V_TID})
p.salu(f"s_and_b32 s{S_TMP}, s{S_HEAD}, 30")
p.salu(f"s_lshl_b32 s{S_TMP}, s{S_TMP}, 1")
p.raw("s_waitcnt lgkmcnt(0)", "wait")
p.salu(f"s_load_dword s{S_T}, s[10:11], s{S_TMP}")
for srd, ptr in ((S_K, 6), (S_V, 8), (S_Q, 4), (S_O, 12)):
    p.salu(f"s_mov_b32 s{srd}, s{ptr}")
    p.salu(f"s_mov_b32 s{srd + 1}, s{ptr + 1}")
    p.salu(f"s_mov_b32 s{srd + 2}, {TENSOR_BYTES}")
    p.salu(f"s_mov_b32 s{srd + 3}, 0x00020000")
load_rows(RK, S_K, f"s{S_KOFF}")
load_rows(RV, S_V, f"s{S_KOFF}")
load_rows(RQ, S_Q, f"s{S_QOFF}")
p.salu(f"s_mov_b32 s{S_HIMASK}, 0xffff0000")
p.salu(f"s_mov_b32 s{S_EPS}, 0x{f32bits(1e-6):08x}")
p.salu(f"s_mov_b32 s{S_CLS}, 0x207")
p.salu(f"s_mov_b32 s{S_THR}, 0x{f32bits(2.0 ** -9):08x}")
p.salu(f"s_mov_b64 s[{S_BADM}:{S_BADM + 1}], 0")
p.salu(f"s_mov_b32 s{S_BAD}, 0")

t0, t1, t2, t3 = V_T0, V_T0 + 1, V_T0 + 2, V_T0 + 3
p.valu(f"v_lshlrev_b32 v{V_RKM[0]}, 4, v{V_LANE}", wr={V_RKM[0]}, rd={V_LANE})
p.valu(f"v_and_b32 v{t0}, 31, v{V_LANE}", wr={t0}, rd={V_LANE})
p.valu(f"v_lshlrev_b32 v{V_RKE[0]}, 3, v{t0}", wr={V_RKE[0]}, rd={t0})
p.valu(f"v_add_u32 v{V_RKE[0]}, 0x400, v{V_RKE[0]}", wr={V_RKE[0]}, rd={V_RKE[0]})
p.valu(f"v_lshrrev_b32 v{t1}, 5, v{V_LANE}", wr={t1}, rd={V_LANE})
p.valu(f"v_mul_u32_u24 v{t1}, {VH}, v{t1}", wr={t1}, rd={t1})
p.valu(f"v_lshlrev_b32 v{t2}, 4, v{t0}", wr={t2}, rd={t0})
p.valu(f"v_add_u32 v{V_RV[0]}, v{t1}, v{t2}", wr={V_RV[0]}, rd={t1, t2})
p.valu(f"v_add_u32 v{V_RV[0]}, 0x{VOFF:x}, v{V_RV[0]}", wr={V_RV[0]}, rd={V_RV[0]})
for b in (1, 2):
    for arr in (V_RKM, V_RKE, V_RV):
        p.valu(f"v_add_u32 v{arr[b]}, 0x{b * BUF:x}, v{arr[0]}", wr={arr[b]}, rd={arr[0]})
p.valu(f"v_and_b32 v{t1}, 0x13, v{t0}", wr={t1}, rd={t0})
p.valu(f"v_and_b32 v{t2}, 4, v{t0}", wr={t2}, rd={t0})
p.valu(f"v_lshlrev_b32 v{t2}, 1, v{t2}", wr={t2}, rd={t2})
p.valu(f"v_or_b32 v{t1}, v{t1}, v{t2}", wr={t1}, rd={t1, t2})
p.valu(f"v_and_b32 v{t2}, 8, v{t0}", wr={t2}, rd={t0})
p.valu(f"v_lshrrev_b32 v{t2}, 1, v{t2}", wr={t2}, rd={t2})
p.valu(f"v_or_b32 v{t1}, v{t1}, v{t2}", wr={t1}, rd={t1, t2})
p.valu(f"v_lshrrev_b32 v{t2}, 5, v{V_TID}", wr={t2}, rd={V_TID})
p.valu(f"v_mul_u32_u24 v{t2}, 0x{KTILE:x}, v{t2}", wr={t2}, rd={t2})
p.valu(f"v_lshlrev_b32 v{t3}, 4, v{t1}", wr={t3}, rd={t1})
p.valu(f"v_add_u32 v{V_WK}, v{t2}, v{t3}", wr={V_WK}, rd={t2, t3})
p.valu(f"v_lshlrev_b32 v{t3}, 3, v{t1}", wr={t3}, rd={t1})
p.valu(f"v_add_u32 v{V_WKE}, v{t2}, v{t3}", wr={V_WKE}, rd={t2, t3})
p.valu(f"v_add_u32 v{V_WKE}, 0x400, v{V_WKE}", wr={V_WKE}, rd={V_WKE})
p.valu(f"v_lshrrev_b32 v{t2}, 3, v{V_TID}", wr={t2}, rd={V_TID})
p.valu(f"v_mul_u32_u24 v{t2}, {VH}, v{t2}", wr={t2}, rd={t2})
p.valu(f"v_and_b32 v{t3}, 7, v{V_TID}", wr={t3}, rd={V_TID})
p.valu(f"v_lshlrev_b32 v{t3}, 1, v{t3}", wr={t3}, rd={t3})
p.valu(f"v_add_u32 v{V_WV}, v{t2}, v{t3}", wr={V_WV}, rd={t2, t3})
p.valu(f"v_add_u32 v{V_WV}, 0x{VOFF:x}, v{V_WV}", wr={V_WV}, rd={V_WV})
p.valu(f"v_mov_b32 v{V_VMAX}, 0", wr={V_VMAX})
for r in list(range(O0, O0 + 32)) + list(range(P + 12, P + 16)) + list(range(VB[1], VB[1] + 4)):
    p.valu(f"v_mov_b32 v{r}, 0", wr={r})
p.raw("s_waitcnt lgkmcnt(0)", "wait")
p.salu(f"s_bitcmp1_b32 s{S_HEAD}, 0")
p.salu(f"s_lshl_b32 s{S_TMP}, s{S_T}, 16")
p.salu(f"s_and_b32 s{S_TMP2}, s{S_T}, 0xffff0000")
p.salu(f"s_bitcmp1_b32 s{S_HEAD}, 0")
p.salu(f"s_cselect_b32 s{S_T}, s{S_TMP2}, s{S_TMP}")
p.valu(f"v_mov_b32 v{V_C}, 0x{f32bits(LOG2E):08x}", wr={V_C})
p.valu(f"v_mul_f32 v{V_C}, s{S_T}, v{V_C}", wr={V_C}, rd={V_C})
p.salu(f"s_and_b32 s{S_TMP}, s{S_T}, 0x7fffffff")
if FORCE_GENERIC:
    p.salu("s_branch L_generic")
else:
    p.salu(f"s_cmp_gt_u32 s{S_TMP}, 0x{T_MAX_BITS:x}")
    p.salu("s_cbranch_scc1 L_generic")

write_ones(3, 0x3C00)
p.valu(f"v_mov_b32 v{t0}, 0x{FLAG:x}", wr={t0})
p.valu(f"v_mov_b32 v{t1}, 0", wr={t1})
p.valu(f"v_mov_b32 v{V_FLAGV}, 0x{FLAG:x}", wr={V_FLAGV})
p.ds_write("ds_write_b32", t0, t1, 1, 0)
set_write_base(0)
k_prep()
v_prep(True)
q_prep(V_C, MAGIC_B, True)
p.wait_lds(0)
p.raw("s_barrier", "salu")


def chunk_loads(c):
    p.salu(f"s_add_u32 s{S_SOFF}, s{S_KOFF}, {c * 512 * ROWB}")
    load_rows(RK, S_K, f"s{S_SOFF}")
    load_rows(RV, S_V, f"s{S_SOFF}")


def rd_km(n):
    c, k = divmod(n, 16)
    p.ds_read("ds_read_b128", KM[n % 2], 4, V_RKM[c % 3], k * KTILE)


def rd_ke(n):
    c, k = divmod(n, 16)
    p.ds_read("ds_read_b64", KE, 2, V_RKE[c % 3], k * KTILE)


def rd_va(n):
    c, k = divmod(n, 16)
    p.ds_read("ds_read_b128", VA[n % 2], 4, V_RV[c % 3], (2 * k) * VFRAG)


def rd_vb(n):
    c, k = divmod(n, 16)
    p.ds_read("ds_read_b128", VB[n % 2], 4, V_RV[c % 3], (2 * k + 1) * VFRAG)


F16 = "v_mfma_f32_32x32x16_f16"


def M1(n):
    p.mfma(F16, SB[n % 2], 16, KM[n % 2], 4, QM0, 4, None, 8)


def M2(n):
    p.mfma(F16, SB[n % 2] + 16, 16, KM[n % 2], 4, QM1, 4, None, 8)


def M3(n):
    p.mfma("v_mfma_f32_32x32x4_2b_f16", SB[n % 2], 32, KE, 2, QE, 2, SB[n % 2], 16)


def PV(which, n):
    o = O0 if which <= 2 else O1
    v = VA[n % 2] if which % 2 == 1 else VB[n % 2]
    p.mfma(F16, o, 16, v, 4, P + 4 * (which - 1), 4, o, 8)


def G(g, n):
    s = SB[n % 2] + 4 * g
    d = P + 2 * g
    p.trans(f"v_exp_f16 v{d}, v{s}", wr={d}, rd={s})
    p.trans(f"v_exp_f16 v{d + 1}, v{s + 2}", wr={d + 1}, rd={s + 2})
    p.trans(f"v_exp_f16_sdwa v{d}, v{s + 1} dst_sel:WORD_1 dst_unused:UNUSED_PRESERVE src0_sel:WORD_0",
            wr={d}, rd={s + 1, d}, flags=("sdwa",))
    p.trans(f"v_exp_f16_sdwa v{d + 1}, v{s + 3} dst_sel:WORD_1 dst_unused:UNUSED_PRESERVE src0_sel:WORD_0",
            wr={d + 1}, rd={s + 3, d + 1}, flags=("sdwa",))


NIT = 64
chunk_loads(1)
rd_km(0)
rd_ke(0)
rd_km(1)
rd_va(0)
rd_vb(0)
M1(0)
M2(0)
rd_km(2)
M1(1)
M3(0)
rd_ke(1)

for n in range(NIT):
    c, k = divmod(n, 16)
    G(0, n)
    if n + 1 < NIT:
        M2(n + 1)
    if n + 3 < NIT:
        rd_km(n + 3)
    G(1, n)
    PV(4, n - 1)
    if n + 1 < NIT:
        rd_vb(n + 1)
    G(2, n)
    PV(1, n)
    if n + 1 < NIT:
        rd_va(n + 1)
    G(3, n)
    if n + 1 < NIT:
        M3(n + 1)
    if n + 2 < NIT:
        rd_ke(n + 2)
    G(4, n)
    G(5, n)
    PV(2, n)
    G(6, n)
    if n + 2 < NIT:
        M1(n + 2)
    G(7, n)
    PV(3, n)
    if c < 3:
        if k == 5:
            set_write_base((c + 1) % 3)
            k_prep()
        if k == 8:
            v_prep(False)
            if c == 2:
                p.valu(f"v_mov_b32 v{t0}, 0x477fe000", wr={t0})
                p.valu(f"v_cmp_nle_f32 vcc, v{V_VMAX}, v{t0}", rd={V_VMAX, t0}, swr={"vcc"})
                p.salu(f"s_or_b64 s[{S_BADM}:{S_BADM + 1}], s[{S_BADM}:{S_BADM + 1}], vcc", srd={"vcc"})
                p.salu(f"s_or_b32 s{S_BAD}, s{S_BAD}, s{S_BADM}")
                p.salu(f"s_or_b32 s{S_BAD}, s{S_BAD}, s{S_BADM + 1}")
                p.valu(f"v_mov_b32 v{t1}, s{S_BAD}", wr={t1})
                p.ds_write("ds_or_b32", V_FLAGV, t1, 1, 0)
        if k == 11:
            p.wait_lds(0)
            p.raw("s_barrier", "salu")
            if c < 2:
                chunk_loads(c + 2)
            else:
                p.ds_read("ds_read_b32", V_FLAGV, 1, V_FLAGV, 0)
PV(4, NIT - 1)
p.valu(f"v_readfirstlane_b32 s{S_BAD}, v{V_FLAGV}", rd={V_FLAGV}, swr={S_BAD}, flags=("readlane",))
p.salu(f"s_cmp_lg_u32 s{S_BAD}, 0", srd={S_BAD})
p.salu("s_cbranch_scc1 L_generic_restart")

p.flush()
p.label("L_epilogue")
a0, a1 = V_T0, V_T0 + 1
p.valu(f"v_and_b32 v{t2}, 0x1df, v{V_TID}", wr={t2}, rd={V_TID})
p.valu(f"v_mul_u32_u24 v{t2}, {ROWB}, v{t2}", wr={t2}, rd={t2})
p.valu(f"v_lshrrev_b32 v{t3}, 5, v{V_LANE}", wr={t3}, rd={V_LANE})
p.valu(f"v_mul_u32_u24 v{a0}, 20, v{t3}", wr={a0}, rd={t3})
p.valu(f"v_add_u32 v{a0}, v{a0}, v{t2}", wr={a0}, rd={a0, t2})
p.valu(f"v_lshlrev_b32 v{a1}, 30, v{t3}", wr={a1}, rd={t3})
p.valu(f"v_add_u32 v{a1}, v{a1}, v{t2}", wr={a1}, rd={a1, t2})
for ti, o in enumerate((O0, O1)):
    R = V_T0 + 4 + 2 * ti
    y = Y + 0 if ti == 0 else SB[0]
    p.trans(f"v_rcp_f32 v{R}, v{o + 10}", wr={R}, rd={o + 10})
    for j in range(5):
        p.valu(f"v_pk_mul_f32 v[{o + 2 * j}:{o + 2 * j + 1}], v[{o + 2 * j}:{o + 2 * j + 1}], v[{R}:{R + 1}] op_sel_hi:[1,0]",
               wr={o + 2 * j, o + 2 * j + 1}, rd={o + 2 * j, o + 2 * j + 1, R})
    for j in range(5):
        p.valu(f"v_cvt_pk_bf16_f32 v{y + j}, v{o + 2 * j}, v{o + 2 * j + 1}", wr={y + j}, rd={o + 2 * j, o + 2 * j + 1})
    p.bstore(4, y, a0, S_O, f"s{S_QOFF}", ti * 32 * ROWB)
    p.bstore(1, y + 4, a1, S_O, f"s{S_QOFF}", ti * 32 * ROWB + 16)
p.label("L_end")
p.salu("s_endpgm")

p.label("L_generic_restart")
p.flush()
load_rows(RQ, S_Q, f"s{S_QOFF}")
p.label("L_generic")
p.flush()
p.raw("s_barrier", "salu")
write_ones(1, 0x3F80)
set_write_base(0)
q_prep(None, 0, False)
for r in range(O0, O0 + 32):
    p.valu(f"v_mov_b32 v{r}, 0", wr={r})
for g in GM:
    p.valu(f"v_mov_b32 v{g}, 0xff7fffff", wr={g})
p.salu(f"s_mov_b32 s{S_SOFF}, s{S_KOFF}")
p.salu(f"s_mov_b32 s{S_CNT}, 0")
p.flush()
p.label("L_g_chunk")
load_rows(RK, S_K, f"s{S_SOFF}")
load_rows(RV, S_V, f"s{S_SOFF}")
k_prep(False)
for j in range(9):
    p.ds_write("ds_write_b16", V_WV2, RV + j, 1, drow(2 * j) * 16)
    p.ds_write("ds_write_b16_d16_hi", V_WV2, RV + j, 1, drow(2 * j + 1) * 16)
ga, gb, gc = V_RKM[1], V_RKE[1], V_RV[1]
p.valu(f"v_mov_b32 v{ga}, v{V_RKM[0]}", wr={ga}, rd={V_RKM[0]})
p.valu(f"v_mov_b32 v{gb}, v{V_RKE[0]}", wr={gb}, rd={V_RKE[0]})
p.valu(f"v_mov_b32 v{gc}, v{V_RV[0]}", wr={gc}, rd={V_RV[0]})
p.salu(f"s_mov_b32 s{S_CNT2}, 0")
p.flush()
p.raw("s_barrier", "salu")
p.label("L_g_tile")
S = SB[0]
p.ds_read("ds_read_b128", KM[0], 4, ga, 0)
p.ds_read("ds_read_b64", KE, 2, gb, 0)
p.ds_read("ds_read_b128", VA[0], 4, gc, 0)
p.ds_read("ds_read_b128", VB[0], 4, gc, VFRAG)
M1(0)
M2(0)
M3(0)
BF = "v_mfma_f32_32x32x16_bf16"
for ti, o in enumerate((O0, O1)):
    s = S + 16 * ti
    m = GM[ti]
    for r in range(16):
        p.valu(f"v_mul_f32 v{s + r}, v{s + r}, v{V_C}", wr={s + r}, rd={s + r, V_C})
    p.valu(f"v_max_f32 v{t0}, v{s}, v{s + 1}", wr={t0}, rd={s, s + 1})
    for r in range(2, 16, 2):
        p.valu(f"v_max3_f32 v{t0}, v{s + r}, v{s + r + 1}, v{t0}", wr={t0}, rd={s + r, s + r + 1, t0})
    p.valu(f"v_mov_b32 v{t1}, v{t0}", wr={t1}, rd={t0})
    p.valu(f"v_permlane32_swap_b32 v{t0}, v{t1}", wr={t0, t1}, rd={t0, t1}, flags=("permlane",))
    p.nop(2)
    p.valu(f"v_max3_f32 v{t0}, v{t0}, v{t1}, v{m}", wr={t0}, rd={t0, t1, m})
    p.valu(f"v_sub_f32 v{t1}, v{m}, v{t0}", wr={t1}, rd={m, t0})
    p.trans(f"v_exp_f32 v{t1}, v{t1}", wr={t1}, rd={t1})
    p.valu(f"v_mov_b32 v{m}, v{t0}", wr={m}, rd={t0})
    for r in range(16):
        p.valu(f"v_mul_f32 v{o + r}, v{o + r}, v{t1}", wr={o + r}, rd={o + r, t1})
    for r in range(16):
        p.valu(f"v_sub_f32 v{s + r}, v{s + r}, v{t0}", wr={s + r}, rd={s + r, t0})
    for r in range(16):
        p.trans(f"v_exp_f32 v{s + r}, v{s + r}", wr={s + r}, rd={s + r})
    for r in range(8):
        p.valu(f"v_cvt_pk_bf16_f32 v{P + 8 * ti + r}, v{s + 2 * r}, v{s + 2 * r + 1}", wr={P + 8 * ti + r},
               rd={s + 2 * r, s + 2 * r + 1})
    p.mfma(BF, o, 16, VA[0], 4, P + 8 * ti, 4, o, 8)
    p.mfma(BF, o, 16, VB[0], 4, P + 8 * ti + 4, 4, o, 8)
p.valu(f"v_add_u32 v{ga}, 0x{KTILE:x}, v{ga}", wr={ga}, rd={ga})
p.valu(f"v_add_u32 v{gb}, 0x{KTILE:x}, v{gb}", wr={gb}, rd={gb})
p.valu(f"v_add_u32 v{gc}, 0x{2 * VFRAG:x}, v{gc}", wr={gc}, rd={gc})
p.flush()
p.salu(f"s_add_u32 s{S_CNT2}, s{S_CNT2}, 1")
p.salu(f"s_cmp_lt_u32 s{S_CNT2}, 16")
p.salu("s_cbranch_scc1 L_g_tile")
p.raw("s_barrier", "salu")
p.salu(f"s_add_u32 s{S_SOFF}, s{S_SOFF}, {512 * ROWB}")
p.salu(f"s_add_u32 s{S_CNT}, s{S_CNT}, 1")
p.salu(f"s_cmp_lt_u32 s{S_CNT}, 4")
p.salu("s_cbranch_scc1 L_g_chunk")
p.salu("s_branch L_epilogue")

hdr = open(f"cdna_kernels/{NAME}.s.ref").read().split("\n")
top = []
for line in hdr:
    if line.startswith("; @launch"):
        top.append(f"; @launch grid=(256,1,1) block=(512,1,1) lds={LDS_BYTES}")
        break
    top.append(line)
body = []
for i in p.ins:
    if i.cls in ("label", "label2"):
        body.append(i.text)
    else:
        body.append("    " + i.text)
src = "\n".join(top) + f"""
.amdgcn_target "amdgcn-amd-amdhsa--gfx950"
.text
.globl {NAME}_kernel
.p2align 8
.type {NAME}_kernel,@function
{NAME}_kernel:
""" + "\n".join(body) + f"""
.section .rodata,"a"
.p2align 6
.amdhsa_kernel {NAME}_kernel
  .amdhsa_next_free_vgpr {NVGPR}
  .amdhsa_next_free_sgpr 64
  .amdhsa_accum_offset {NVGPR}
  .amdhsa_group_segment_fixed_size 0
  .amdhsa_kernarg_size 56
  .amdhsa_user_sgpr_count 2
  .amdhsa_user_sgpr_kernarg_segment_ptr 1
  .amdhsa_system_sgpr_workgroup_id_x 1
.end_amdhsa_kernel
"""
open(OUT, "w").write(src)
print("wrote", OUT, "instructions:", len(p.ins), "auto nops:", p.nops_inserted)
```

```python
import copy
import struct
import sys
from emit import Prog, Inst, vr, rng

NAME = "standalone__qk_norm__prompt"
OUT = sys.argv[1] if len(sys.argv) > 1 and not sys.argv[1].startswith("--") else f"cdna_kernels/{NAME}.s"
FLAGS = set(a for a in sys.argv[1:] if a.startswith("--"))
FORCE_GENERIC = "--generic" in FLAGS
STAMP = "--stamp" in FLAGS


def opt(name, default):
    for a in FLAGS:
        if a.startswith(f"--{name}="):
            return int(a.split("=")[1])
    return default


K_PREP_AT = opt("prepat", 1)
BAR_AT = opt("barat", 4)
PRIO = opt("prio", 0)

TENSOR_BYTES = 2 * 32 * 2048 * 18 * 2
ROWB = 36
PAIR = 7168
BUF = 4 * PAIR
NBUF = 3
FLAG = NBUF * BUF
LDS_BYTES = FLAG + 64
CHUNKB = 256 * ROWB


def f32bits(x):
    return struct.unpack("<I", struct.pack("<f", x))[0]


def f16bits(x):
    return struct.unpack("<H", struct.pack("<e", x))[0]


LOG2E = 1.4426950408889634
MAGIC_A = f16bits(192.0) | (f16bits(220.0) << 16)
MAGIC_B = f16bits(192.0) | (f16bits(131.0) << 16)
T_MAX_BITS = 0x402F0000


def drow(d):
    if d < 10:
        r, h = d, 0
    else:
        r, h = d - 10, 1
    return 8 * (r // 4) + 4 * h + (r % 4)


USED_COLS = sorted(drow(d) for d in range(18))
USED_MASK32 = sum(1 << c for c in USED_COLS)

S_Q, S_K, S_V, S_O = 16, 20, 24, 28
S_HEAD, S_QB, S_WAVE, S_T, S_KOFF, S_QOFF = 32, 33, 34, 35, 36, 37
S_TMP, S_TMP2 = 38, 39
S_BADM = 40
S_BAD = 42
S_ISV = 43
S_HIMASK, S_EPS, S_CLS, S_THR, S_SOFF, S_CNT = 44, 45, 46, 47, 48, 49
S_NXTB, S_WB = 50, 51
S_SAVE = 52
S_USED = 54

V_TID, V_LANE = 0, 1
V_GK = 2
V_GV = 3
V_GQ = 4
V_L16 = 5
V_RA = [6, 7]
V_WP0, V_WP1 = 8, 9
V_W0, V_W1 = 10, 11
V_C, V_FLAGV = 12, 13
GM = [14, 15]
V_T0 = 16
BI = 28
BE = 32
QE = 34
QM0, QM1 = 36, 40
KE = 44
KM = [48, 52]
VA = [56, 60]
VB = [64, 68]
P = 72
SB = [88, 120]
O0, O1 = 152, 168
RAW = 184
RQ = 196
TD = 196
Y = 228
RAW2 = 244
NVGPR = 256

p = Prog()
t0, t1, t2, t3 = V_T0, V_T0 + 1, V_T0 + 2, V_T0 + 3
NSTAMP = [0]


def stamp():
    if STAMP:
        k = NSTAMP[0]
        NSTAMP[0] += 1
        p.salu(f"s_memtime s[{64 + 2 * k}:{65 + 2 * k}]")
        p.raw("s_waitcnt lgkmcnt(0)", "wait")
        p.lds_pend = []


def soft_label(name):
    p.ins.append(Inst(f"{name}:", "label2", ws=0))


def zero_ws(idx):
    for i in p.ins[idx:]:
        i.ws = 0


def load_rows(dst, voff, srd, soff):
    p.bload(4, dst, voff, srd, soff, 0)
    p.bload(4, dst + 4, voff, srd, soff, 16)
    p.bload(1, dst + 8, voff, srd, soff, 32)


def load_v(dst, soff):
    p.bload(4, dst, V_GV, S_V, soff, 0)
    p.bload(4, dst + 4, V_GV, S_V, soff, 32 * ROWB)
    p.bload(1, dst + 8, V_GK, S_V, soff, 32)


def norm_row(x, scale_reg, check):
    a, b = V_T0, V_T0 + 1
    for j in range(9):
        acc = a if j % 2 == 0 else b
        c = "0" if j < 2 else f"v{acc}"
        p.valu(f"v_dot2_f32_bf16 v{acc}, v{x + j}, v{x + j}, {c}", wr={acc}, rd={x + j},
               flags=("dot", "dotc"))
    R = V_T0 + 2
    T = [V_T0 + 4, V_T0 + 6, V_T0 + 8, V_T0 + 10]

    def unpack(j):
        t = T[j % 4]
        p.valu(f"v_lshlrev_b32 v{t}, 16, v{x + j}", wr={t}, rd={x + j})
        p.valu(f"v_and_b32 v{t + 1}, s{S_HIMASK}, v{x + j}", wr={t + 1}, rd={x + j}, srd={S_HIMASK})
    unpack(0)
    unpack(1)
    p.valu(f"v_add_f32 v{a}, v{a}, v{b}", wr={a}, rd={a, b})
    p.trans(f"v_sqrt_f32 v{R}, v{a}", wr={R}, rd={a})
    if check:
        p.valu(f"v_cmp_class_f32 vcc, v{a}, s{S_CLS}", rd={a}, swr={"vcc"}, srd={S_CLS})
    p.valu(f"v_add_f32 v{R}, s{S_EPS}, v{R}", wr={R}, rd={R}, srd={S_EPS})
    p.trans(f"v_rcp_f32 v{R}, v{R}", wr={R}, rd={R})
    unpack(2)
    if check:
        p.salu(f"s_or_b64 s[{S_BADM}:{S_BADM + 1}], s[{S_BADM}:{S_BADM + 1}], vcc", srd={"vcc"})
    if scale_reg is not None:
        p.valu(f"v_mul_f32 v{R}, v{R}, v{scale_reg}", wr={R}, rd={R, scale_reg})
    for j in range(9):
        t = T[j % 4]
        p.valu(f"v_pk_mul_f32 v[{t}:{t + 1}], v[{t}:{t + 1}], v[{R}:{R + 1}] op_sel_hi:[1,0]",
               wr={t, t + 1}, rd={t, t + 1, R})
        if j + 3 < 9:
            unpack(j + 3)
        p.valu(f"v_cvt_pk_f16_f32 v{Y + j}, v{t}, v{t + 1}", wr={Y + j}, rd={t, t + 1})


def k_prep():
    norm_row(RAW, None, True)
    p.ds_write("ds_write_b128", V_W0, Y, 4, 0)
    p.ds_write("ds_write_b128", V_W0, Y + 4, 4, 512)
    p.ds_write("ds_write_b64", V_W1, Y + 8, 2, 2048)
    p.ds_write("ds_write_b64", V_W1, Y + 8, 2, 2048 + 512)


def v_transpose(raw):
    p.mfma("v_mfma_f32_32x32x16_bf16", TD, 16, raw, 4, BI, 4, None, 8)
    p.mfma("v_mfma_f32_32x32x16_bf16", TD + 16, 16, raw + 4, 4, BI, 4, None, 8)
    p.mfma("v_mfma_f32_32x32x4_2b_bf16", TD, 32, raw + 8, 2, BE, 2, TD, 16)


def v_finish(first):
    if first:
        m = V_T0
        p.valu(f"v_max_f32 v{m}, |v{TD}|, |v{TD + 1}|", wr={m}, rd={TD, TD + 1})
        for r in range(2, 32, 2):
            p.valu(f"v_max3_f32 v{m}, |v{TD + r}|, |v{TD + r + 1}|, v{m}", wr={m}, rd={TD + r, TD + r + 1, m})
        p.valu(f"v_cmp_gt_f32 vcc, s{S_THR}, v{m}", rd={m}, swr={"vcc"}, srd={S_THR})
        p.salu(f"s_and_b64 vcc, vcc, s[{S_USED}:{S_USED + 1}]", srd={"vcc"})
        p.salu(f"s_or_b64 s[{S_BADM}:{S_BADM + 1}], s[{S_BADM}:{S_BADM + 1}], vcc")
    for f in range(4):
        for j in range(4):
            r = TD + 8 * f + 2 * j
            p.valu(f"v_cvt_pk_f16_f32 v{Y + 4 * f + j}, v{r}, v{r + 1}", wr={Y + 4 * f + j}, rd={r, r + 1})
        p.ds_write("ds_write_b128", V_W0, Y + 4 * f, 4, 3072 + 1024 * f)


def q_prep(scale_reg, magic, check):
    norm_row(RQ, scale_reg, check)
    for j in range(4):
        p.valu(f"v_mov_b32 v{QM0 + j}, v{Y + j}", wr={QM0 + j}, rd={Y + j})
        p.valu(f"v_mov_b32 v{QM1 + j}, v{Y + 4 + j}", wr={QM1 + j}, rd={Y + 4 + j})
    p.valu(f"v_mov_b32 v{QE}, v{Y + 8}", wr={QE}, rd={Y + 8})
    p.valu(f"v_mov_b32 v{QE + 1}, 0x{magic:08x}", wr={QE + 1})
    for j in range(4):
        p.valu(f"v_permlane32_swap_b32 v{QM0 + j}, v{QM1 + j}", wr={QM0 + j, QM1 + j}, rd={QM0 + j, QM1 + j},
               flags=("permlane",))


if STAMP:
    p.salu("s_memrealtime s[60:61]")
stamp()
p.salu("s_cmp_ge_u32 s2, 256")
p.salu("s_cbranch_scc1 L_end")
p.salu("s_load_dwordx8 s[4:11], s[0:1], 0")
p.salu("s_load_dwordx2 s[12:13], s[0:1], 32")
p.valu(f"v_lshrrev_b32 v{t0}, 6, v{V_TID}", wr={t0}, rd={V_TID})
p.salu(f"s_and_b32 s{S_TMP}, s2, 7")
p.salu(f"s_lshr_b32 s{S_TMP2}, s2, 3")
p.valu(f"v_readfirstlane_b32 s{S_WAVE}, v{t0}", rd={t0}, swr={S_WAVE}, flags=("readlane",))
p.salu(f"s_and_b32 s{S_QB}, s{S_TMP2}, 3")
p.salu(f"s_lshr_b32 s{S_TMP2}, s{S_TMP2}, 2")
p.salu(f"s_lshl_b32 s{S_HEAD}, s{S_TMP}, 3")
p.salu(f"s_add_u32 s{S_HEAD}, s{S_HEAD}, s{S_TMP2}")
p.salu(f"s_mul_i32 s{S_KOFF}, s{S_HEAD}, {2048 * ROWB}")
p.salu(f"s_mul_i32 s{S_TMP}, s{S_QB}, {512 * ROWB}")
p.salu(f"s_add_u32 s{S_QOFF}, s{S_KOFF}, s{S_TMP}")
p.valu(f"v_mul_u32_u24 v{V_GQ}, {ROWB}, v{V_TID}", wr={V_GQ}, rd={V_TID})
p.valu(f"v_and_b32 v{V_LANE}, 63, v{V_TID}", wr={V_LANE}, rd={V_TID})
p.valu(f"v_and_b32 v{t0}, 0xff, v{V_TID}", wr={t0}, rd={V_TID})
p.valu(f"v_mul_u32_u24 v{V_GK}, {ROWB}, v{t0}", wr={V_GK}, rd={t0})
p.valu(f"v_and_b32 v{t0}, 0xdf, v{V_TID}", wr={t0}, rd={V_TID})
p.valu(f"v_mul_u32_u24 v{V_GV}, {ROWB}, v{t0}", wr={V_GV}, rd={t0})
p.valu(f"v_lshrrev_b32 v{t1}, 5, v{V_LANE}", wr={t1}, rd={V_LANE})
p.valu(f"v_lshl_add_u32 v{V_GV}, v{t1}, 4, v{V_GV}", wr={V_GV}, rd={t1, V_GV})
p.salu(f"s_and_b32 s{S_TMP}, s{S_HEAD}, 30")
p.salu(f"s_lshl_b32 s{S_TMP}, s{S_TMP}, 1")
p.salu(f"s_lshr_b32 s{S_ISV}, s{S_WAVE}, 2", srd={S_WAVE})
p.raw("s_waitcnt lgkmcnt(0)", "wait")
p.salu(f"s_load_dword s{S_T}, s[10:11], s{S_TMP}")
for srd, ptr in ((S_K, 6), (S_V, 8), (S_Q, 4), (S_O, 12)):
    p.salu(f"s_mov_b32 s{srd}, s{ptr}")
    p.salu(f"s_mov_b32 s{srd + 1}, s{ptr + 1}")
    p.salu(f"s_mov_b32 s{srd + 2}, {TENSOR_BYTES}")
    p.salu(f"s_mov_b32 s{srd + 3}, 0x00020000")


def role_loads(soff, tag):
    p.salu(f"s_cmp_lg_u32 s{S_ISV}, 0")
    p.salu(f"s_cbranch_scc1 L_ldv_{tag}")
    idx = len(p.ins)
    save = list(p.vm_pend)
    load_rows(RAW, V_GK, S_K, soff)
    p.salu(f"s_branch L_ldx_{tag}")
    soft_label(f"L_ldv_{tag}")
    zero_ws(idx)
    p.vm_pend = save
    load_v(RAW, soff)
    soft_label(f"L_ldx_{tag}")
    zero_ws(idx)


load_rows(RQ, V_GQ, S_Q, f"s{S_QOFF}")
role_loads(f"s{S_KOFF}", "p0")
p.salu(f"s_mov_b32 s{S_HIMASK}, 0xffff0000")
p.salu(f"s_mov_b32 s{S_EPS}, 0x{f32bits(1e-6):08x}")
p.salu(f"s_mov_b32 s{S_CLS}, 0x207")
p.salu(f"s_mov_b32 s{S_THR}, 0x{f32bits(2.0 ** -9):08x}")
p.salu(f"s_mov_b64 s[{S_BADM}:{S_BADM + 1}], 0")
p.salu(f"s_mov_b32 s{S_USED}, 0x{USED_MASK32:08x}")
p.salu(f"s_mov_b32 s{S_USED + 1}, 0x{USED_MASK32:08x}")

p.valu(f"v_lshlrev_b32 v{V_L16}, 4, v{V_LANE}", wr={V_L16}, rd={V_LANE})
p.valu(f"v_mov_b32 v{V_RA[0]}, v{V_L16}", wr={V_RA[0]}, rd={V_L16})
p.valu(f"v_add_u32 v{V_RA[1]}, 0x{BUF:x}, v{V_L16}", wr={V_RA[1]}, rd={V_L16})
p.salu(f"s_and_b32 s{S_TMP}, s{S_WAVE}, 3")
p.salu(f"s_mul_i32 s{S_TMP}, s{S_TMP}, {PAIR}")
p.valu(f"v_and_b32 v{t0}, 31, v{V_LANE}", wr={t0}, rd={V_LANE})
p.valu(f"v_lshlrev_b32 v{t2}, 4, v{t0}", wr={t2}, rd={t0})
p.valu(f"v_lshl_add_u32 v{V_WP0}, v{t1}, 10, v{t2}", wr={V_WP0}, rd={t1, t2})
p.valu(f"v_lshl_add_u32 v{V_WP1}, v{t1}, 3, v{t2}", wr={V_WP1}, rd={t1, t2})
p.salu(f"s_cmp_lg_u32 s{S_ISV}, 0")
p.salu(f"s_cselect_b64 vcc, -1, 0")
p.nop(1)
p.valu(f"v_cndmask_b32 v{V_WP0}, v{V_WP0}, v{V_L16}, vcc", wr={V_WP0}, rd={V_WP0, V_L16})
p.valu(f"v_add_u32 v{V_WP0}, s{S_TMP}, v{V_WP0}", wr={V_WP0}, rd={V_WP0})
p.valu(f"v_add_u32 v{V_WP1}, s{S_TMP}, v{V_WP1}", wr={V_WP1}, rd={V_WP1})
p.valu(f"v_mov_b32 v{V_W0}, v{V_WP0}", wr={V_W0}, rd={V_WP0})
p.valu(f"v_mov_b32 v{V_W1}, v{V_WP1}", wr={V_W1}, rd={V_WP1})
for i in range(4):
    p.valu(f"v_mov_b32 v{BI + i}, 0", wr={BI + i})
p.valu(f"v_mov_b32 v{t2}, 0x3f80", wr={t2})
p.valu(f"v_mov_b32 v{t3}, 0x3f800000", wr={t3})
for k in range(16):
    lane = (k // 8) * 32 + drow(k)
    i = (k % 8) // 2
    p.valu(f"v_cmp_eq_u32 vcc, {lane}, v{V_LANE}", rd={V_LANE}, swr={"vcc"})
    p.valu(f"v_cndmask_b32 v{BI + i}, v{BI + i}, v{t2 if k % 2 == 0 else t3}, vcc", wr={BI + i},
           rd={BI + i, t2, t3}, srd={"vcc"})
p.valu(f"v_mov_b32 v{BE}, 0", wr={BE})
p.valu(f"v_mov_b32 v{BE + 1}, 0", wr={BE + 1})
for col, reg, val in ((drow(16), BE, t2), (drow(17), BE, t3), (18, BE + 1, t2), (22, BE + 1, t2)):
    p.valu(f"v_cmp_eq_u32 vcc, {col}, v{t0}", rd={t0}, swr={"vcc"})
    p.valu(f"v_cndmask_b32 v{reg}, v{reg}, v{val}, vcc", wr={reg}, rd={reg, val}, srd={"vcc"})
for r in list(range(O0, O0 + 32)) + list(range(P + 12, P + 16)) + list(range(VB[1], VB[1] + 4)):
    p.valu(f"v_mov_b32 v{r}, 0", wr={r})
p.valu(f"v_mov_b32 v{RAW + 9}, 0x3f80", wr={RAW + 9})
p.valu(f"v_mov_b32 v{RAW2 + 9}, 0x3f80", wr={RAW2 + 9})
p.raw("s_waitcnt lgkmcnt(0)", "wait")
p.salu(f"s_lshl_b32 s{S_TMP}, s{S_T}, 16")
p.salu(f"s_and_b32 s{S_TMP2}, s{S_T}, 0xffff0000")
p.salu(f"s_bitcmp1_b32 s{S_HEAD}, 0")
p.salu(f"s_cselect_b32 s{S_T}, s{S_TMP2}, s{S_TMP}")
p.valu(f"v_mov_b32 v{V_C}, 0x{f32bits(LOG2E):08x}", wr={V_C})
p.valu(f"v_mul_f32 v{V_C}, s{S_T}, v{V_C}", wr={V_C}, rd={V_C})
p.salu(f"s_and_b32 s{S_TMP}, s{S_T}, 0x7fffffff")
if FORCE_GENERIC:
    p.salu("s_branch L_generic")
else:
    p.salu(f"s_cmp_gt_u32 s{S_TMP}, 0x{T_MAX_BITS:x}")
    p.salu("s_cbranch_scc1 L_generic")

p.valu(f"v_mov_b32 v{V_FLAGV}, 0x{FLAG:x}", wr={V_FLAGV})
p.valu(f"v_mov_b32 v{t1}, 0", wr={t1})
p.ds_write("ds_write_b32", V_FLAGV, t1, 1, 0)
if PRIO:
    p.salu(f"s_cmp_lg_u32 s{S_ISV}, 0")
    p.salu("s_cbranch_scc0 L_prio")
    p.salu("s_setprio 1")
    p.ins[-1].ws = 0
    soft_label("L_prio")


def role_prep(tag, first, q_between=False):
    lds_before = list(p.lds_pend)
    p.salu(f"s_cmp_lg_u32 s{S_ISV}, 0")
    p.salu(f"s_cbranch_scc1 L_pv_{tag}")
    idx = len(p.ins)
    vm0 = list(p.vm_pend)
    p.valu(f"v_mov_b32 v{Y + 9}, 0x{MAGIC_A:08x}", wr={Y + 9})
    k_prep()
    vmk = list(p.vm_pend)
    ldk = list(p.lds_pend)
    p.salu(f"s_branch L_px_{tag}")
    soft_label(f"L_pv_{tag}")
    zero_ws(idx)
    p.vm_pend = vm0
    p.lds_pend = lds_before
    v_transpose(RAW)
    v_finish(first)
    soft_label(f"L_px_{tag}")
    zero_ws(idx)
    assert len(vmk) == len(p.vm_pend)
    a = [x for x in ldk if x is not None]
    b = [x for x in p.lds_pend if x is not None]
    p.lds_pend = a if len(a) >= len(b) else b


stamp()
q_prep(V_C, MAGIC_B, True)
role_prep("p0", True)
p.salu(f"s_add_u32 s{S_SOFF}, s{S_KOFF}, {CHUNKB}")
role_loads(f"s{S_SOFF}", "p1")
p.wait_lds(0)
stamp()
p.raw("s_barrier", "salu")
stamp()

F16 = "v_mfma_f32_32x32x16_f16"


def toff(k):
    nx = k // 8
    kk = k % 8
    return nx, (kk // 2) * PAIR, kk % 2


class Body:
    def __init__(self, par):
        self.par = par

    def ra(self, nx):
        return V_RA[(self.par + nx) % 2]

    def rd_km(self, k):
        nx, o, tp = toff(k)
        p.ds_read("ds_read_b128", KM[k % 2], 4, self.ra(nx), o + 1024 * tp)

    def rd_ke(self, k):
        nx, o, tp = toff(k)
        assert tp == 0
        p.ds_read("ds_read_b128", KE, 4, self.ra(nx), o + 2048)

    def rd_va(self, k):
        nx, o, tp = toff(k)
        p.ds_read("ds_read_b128", VA[k % 2], 4, self.ra(nx), o + 3072 + 2048 * tp)

    def rd_vb(self, k):
        nx, o, tp = toff(k)
        p.ds_read("ds_read_b128", VB[k % 2], 4, self.ra(nx), o + 4096 + 2048 * tp)


def M1(n):
    p.mfma(F16, SB[n % 2], 16, KM[n % 2], 4, QM0, 4, None, 8)


def M2(n):
    p.mfma(F16, SB[n % 2] + 16, 16, KM[n % 2], 4, QM1, 4, None, 8)


def M3(n):
    p.mfma("v_mfma_f32_32x32x4_2b_f16", SB[n % 2], 32, KE + 2 * (n % 2), 2, QE, 2, SB[n % 2], 16)


def PV(which, n):
    o = O0 if which <= 2 else O1
    v = VA[n % 2] if which % 2 == 1 else VB[n % 2]
    p.mfma(F16, o, 16, v, 4, P + 4 * (which - 1), 4, o, 8)


def G(g, n):
    s = SB[n % 2] + 4 * g
    d = P + 2 * g
    p.trans(f"v_exp_f16 v{d}, v{s}", wr={d}, rd={s})
    p.trans(f"v_exp_f16 v{d + 1}, v{s + 2}", wr={d + 1}, rd={s + 2})
    p.trans(f"v_exp_f16_sdwa v{d}, v{s + 1} dst_sel:WORD_1 dst_unused:UNUSED_PRESERVE src0_sel:WORD_0",
            wr={d}, rd={s + 1, d}, flags=("sdwa",))
    p.trans(f"v_exp_f16_sdwa v{d + 1}, v{s + 3} dst_sel:WORD_1 dst_unused:UNUSED_PRESERVE src0_sel:WORD_0",
            wr={d + 1}, rd={s + 3, d + 1}, flags=("sdwa",))


def chunk_body(par, tag):
    b = Body(par)
    for k in range(8):
        p.comment(f"---- {tag} iteration {k}")
        G(0, k)
        M2(k + 1)
        b.rd_km(k + 3)
        G(1, k)
        PV(4, k - 1)
        b.rd_vb(k + 1)
        G(2, k)
        PV(1, k)
        b.rd_va(k + 1)
        G(3, k)
        M3(k + 1)
        if k % 2 == 0:
            b.rd_ke(k + 2)
        G(4, k)
        for _ in range(opt("idle", 0)):
            p.valu(f"v_nop", wr=set(), rd=set())
        G(5, k)
        PV(2, k)
        G(6, k)
        M1(k + 2)
        G(7, k)
        PV(3, k)
        if k == K_PREP_AT:
            p.salu(f"s_cmp_ge_u32 s{S_CNT}, 7")
            p.salu(f"s_cbranch_scc1 L_noprep_{tag}")
            idx = len(p.ins)
            lds0 = list(p.lds_pend)
            p.valu(f"v_add_u32 v{V_W0}, s{S_WB}, v{V_WP0}", wr={V_W0}, rd={V_WP0})
            p.valu(f"v_add_u32 v{V_W1}, s{S_WB}, v{V_WP1}", wr={V_W1}, rd={V_WP1})
            p.wait_vm(0)
            if "--noprep" not in FLAGS:
                role_prep(tag, False)
            p.salu(f"s_cmp_ge_u32 s{S_CNT}, 6")
            p.salu(f"s_cbranch_scc1 L_flag_{tag}")
            p.salu(f"s_add_u32 s{S_SOFF}, s{S_SOFF}, {CHUNKB}")
            role_loads(f"s{S_SOFF}", tag)
            p.salu(f"s_branch L_noprep_{tag}")
            soft_label(f"L_flag_{tag}")
            zero_ws(idx)
            p.salu(f"s_or_b32 s{S_BAD}, s{S_BADM}, s{S_BADM + 1}")
            p.valu(f"v_mov_b32 v{t1}, s{S_BAD}", wr={t1})
            p.ds_write("ds_or_b32", V_FLAGV, t1, 1, 0)
            soft_label(f"L_noprep_{tag}")
            zero_ws(idx)
            mark = len(p.ins)
            p.lds_pend = [x for x in lds0 if x is not None]
            p.vm_pend = []
        if k == BAR_AT:
            assert BAR_AT > K_PREP_AT
            nrd = sum(1 for i in p.ins[mark:] if i.cls == "ds")
            assert len(p.lds_pend) < nrd, "a read issued after the prep must have been waited on"
            p.salu(f"s_cmp_ge_u32 s{S_CNT}, 7")
            p.salu(f"s_cbranch_scc1 L_nobar_{tag}")
            idx = len(p.ins)
            if "--nobar" not in FLAGS:
                p.raw("s_barrier", "salu")
            soft_label(f"L_nobar_{tag}")
            zero_ws(idx)
    p.salu(f"s_add_u32 s{S_WB}, s{S_WB}, {BUF}")
    p.salu(f"s_cmp_ge_u32 s{S_WB}, {NBUF * BUF}")
    p.salu(f"s_cselect_b32 s{S_WB}, 0, s{S_WB}")
    p.valu(f"v_add_u32 v{b.ra(0)}, s{S_WB}, v{V_L16}", wr={b.ra(0)}, rd={V_L16})
    p.salu(f"s_add_u32 s{S_CNT}, s{S_CNT}, 1")


p.salu(f"s_mov_b32 s{S_CNT}, 0")
p.salu(f"s_mov_b32 s{S_WB}, {BUF}")
b0 = Body(0)
b0.rd_km(0)
b0.rd_ke(0)
b0.rd_km(1)
b0.rd_va(0)
b0.rd_vb(0)
M1(0)
M2(0)
b0.rd_km(2)
M1(1)
M3(0)
p.wait_lds(0)
p.nop(20)
vm_at_entry = list(p.vm_pend)

saved = (p.ins, p.lds_pend, p.vm_pend, p.nops_inserted)
p.ins = []
p.lds_pend = []
p.vm_pend = []
chunk_body(0, "dA")
chunk_body(1, "dB")
tail = [i for i in p.ins[-60:]]
steady = list(p.lds_pend)
p.ins, _, _, p.nops_inserted = saved
p.ins.append(Inst(".p2align 6", "other", ws=0))
p.label("L_loop")
seed = []
for i in tail:
    j = copy.copy(i)
    j.flags = set(j.flags) | {"ghost"}
    seed.append(j)
p.ins.extend(seed)
p.lds_pend = list(steady)
p.vm_pend = []
chunk_body(0, "A")
if STAMP:
    pass
chunk_body(1, "B")
assert [sorted(x) for x in p.lds_pend] == [sorted(x) for x in steady], (p.lds_pend, steady)
p.salu(f"s_cmp_lt_u32 s{S_CNT}, 8")
p.salu("s_cbranch_scc1 L_loop")
PV(4, 7)
stamp()
p.ds_read("ds_read_b32", V_FLAGV, 1, V_FLAGV, 0)
p.valu(f"v_add_f32 v{t0}, |v{O0}|, |v{O0 + 1}|", wr={t0}, rd={O0, O0 + 1})
for r in range(2, 10):
    p.valu(f"v_add_f32 v{t0}, |v{O0 + r}|, v{t0}", wr={t0}, rd={O0 + r, t0})
p.valu(f"v_cmp_class_f32 vcc, v{t0}, s{S_CLS}", rd={t0}, swr={"vcc"}, srd={S_CLS})
p.valu(f"v_readfirstlane_b32 s{S_BAD}, v{V_FLAGV}", rd={V_FLAGV}, swr={S_BAD}, flags=("readlane",))
p.salu(f"s_or_b64 s[{S_BADM}:{S_BADM + 1}], s[{S_BADM}:{S_BADM + 1}], vcc", srd={"vcc"})
p.salu(f"s_or_b32 s{S_BAD}, s{S_BAD}, s{S_BADM}", srd={S_BAD})
p.salu(f"s_or_b32 s{S_BAD}, s{S_BAD}, s{S_BADM + 1}")
p.salu("s_cbranch_scc1 L_generic")

p.wait_lds(0)
p.nop(12)
p.label("L_epilogue")
a0, a1 = V_T0, V_T0 + 1
p.valu(f"v_and_b32 v{t2}, 0x1df, v{V_TID}", wr={t2}, rd={V_TID})
p.valu(f"v_mul_u32_u24 v{t2}, {ROWB}, v{t2}", wr={t2}, rd={t2})
p.valu(f"v_lshrrev_b32 v{t3}, 5, v{V_LANE}", wr={t3}, rd={V_LANE})
p.valu(f"v_mul_u32_u24 v{a0}, 20, v{t3}", wr={a0}, rd={t3})
p.valu(f"v_add_u32 v{a0}, v{a0}, v{t2}", wr={a0}, rd={a0, t2})
p.valu(f"v_lshlrev_b32 v{a1}, 30, v{t3}", wr={a1}, rd={t3})
p.valu(f"v_add_u32 v{a1}, v{a1}, v{t2}", wr={a1}, rd={a1, t2})
for ti, o in enumerate((O0, O1)):
    R = V_T0 + 4 + 2 * ti
    y = Y + 8 * ti
    p.trans(f"v_rcp_f32 v{R}, v{o + 10}", wr={R}, rd={o + 10})
    for j in range(5):
        p.valu(f"v_pk_mul_f32 v[{o + 2 * j}:{o + 2 * j + 1}], v[{o + 2 * j}:{o + 2 * j + 1}], v[{R}:{R + 1}] op_sel_hi:[1,0]",
               wr={o + 2 * j, o + 2 * j + 1}, rd={o + 2 * j, o + 2 * j + 1, R})
    for j in range(5):
        p.valu(f"v_cvt_pk_bf16_f32 v{y + j}, v{o + 2 * j}, v{o + 2 * j + 1}", wr={y + j}, rd={o + 2 * j, o + 2 * j + 1})
    p.bstore(4, y, a0, S_O, f"s{S_QOFF}", ti * 32 * ROWB)
    p.bstore(1, y + 4, a1, S_O, f"s{S_QOFF}", ti * 32 * ROWB + 16)
if STAMP:
    stamp()
    p.salu("s_memrealtime s[62:63]")
    p.salu("s_load_dwordx2 s[56:57], s[0:1], 48")
    p.raw("s_waitcnt lgkmcnt(0)", "wait")
    k = NSTAMP[0]
    NSTAMP[0] += 2
    p.salu(f"s_sub_u32 s{64 + 2 * k}, s62, s60")
    p.salu(f"s_add_u32 s{64 + 2 * k}, s{64 + 2 * k}, s64")
    p.salu(f"s_add_u32 s{66 + 2 * k}, s60, s64")
    p.salu("s_mov_b32 s58, 0x1000000")
    p.salu("s_mov_b32 s59, 0x00020000")
    p.valu(f"v_mov_b32 v{t2}, 0", wr={t2})
    for k in range(NSTAMP[0]):
        p.salu(f"s_sub_u32 s{S_TMP}, s{64 + 2 * k}, s64")
        p.valu(f"v_mov_b32 v{t1}, s{S_TMP}", wr={t1})
        p.valu(f"v_cmp_eq_u32 vcc, {k}, v{V_LANE}", rd={V_LANE}, swr={"vcc"})
        p.valu(f"v_cndmask_b32 v{t2}, v{t2}, v{t1}, vcc", wr={t2}, rd={t2, t1}, srd={"vcc"})
    p.valu(f"v_mov_b32 v{t1}, s2", wr={t1})
    p.valu(f"v_lshlrev_b32 v{t1}, 9, v{t1}", wr={t1}, rd={t1})
    p.valu(f"v_add_u32 v{t1}, v{t1}, v{V_TID}", wr={t1}, rd={t1, V_TID})
    p.valu(f"v_lshlrev_b32 v{t1}, 2, v{t1}", wr={t1}, rd={t1})
    p.bstore(1, t2, t1, 56, "0", 0)
p.label("L_end")
p.salu("s_endpgm")

p.label("L_generic")
p.flush()
load_rows(RQ, V_GQ, S_Q, f"s{S_QOFF}")
q_prep(None, 0, False)
for r in range(O0, O0 + 32):
    p.valu(f"v_mov_b32 v{r}, 0", wr={r})
for g in GM:
    p.valu(f"v_mov_b32 v{g}, 0xff7fffff", wr={g})
p.valu(f"v_mul_u32_u24 v{V_GK}, {ROWB}, v{V_LANE}", wr={V_GK}, rd={V_LANE})
p.valu(f"v_and_b32 v{t0}, 31, v{V_LANE}", wr={t0}, rd={V_LANE})
p.valu(f"v_mul_u32_u24 v{V_GV}, {ROWB}, v{t0}", wr={V_GV}, rd={t0})
p.valu(f"v_lshrrev_b32 v{t1}, 5, v{V_LANE}", wr={t1}, rd={V_LANE})
p.valu(f"v_lshl_add_u32 v{V_GV}, v{t1}, 4, v{V_GV}", wr={V_GV}, rd={t1, V_GV})
p.salu(f"s_mov_b32 s{S_SOFF}, s{S_KOFF}")
p.salu(f"s_mov_b32 s{S_CNT}, 0")
p.flush()
p.label("L_g_pair")
load_rows(RAW, V_GK, S_K, f"s{S_SOFF}")
load_v(RAW2, f"s{S_SOFF}")
norm_row(RAW, None, False)
for j in range(4):
    p.valu(f"v_mov_b32 v{KM[0] + j}, v{Y + j}", wr={KM[0] + j}, rd={Y + j})
    p.valu(f"v_mov_b32 v{KM[1] + j}, v{Y + 4 + j}", wr={KM[1] + j}, rd={Y + 4 + j})
p.valu(f"v_mov_b32 v{KE}, v{Y + 8}", wr={KE}, rd={Y + 8})
p.valu(f"v_mov_b32 v{KE + 2}, v{Y + 8}", wr={KE + 2}, rd={Y + 8})
p.valu(f"v_mov_b32 v{KE + 1}, 0", wr={KE + 1})
p.valu(f"v_mov_b32 v{KE + 3}, 0", wr={KE + 3})
for j in range(4):
    p.valu(f"v_permlane32_swap_b32 v{KM[0] + j}, v{KM[1] + j}", wr={KM[0] + j, KM[1] + j},
           rd={KM[0] + j, KM[1] + j}, flags=("permlane",))
p.valu(f"v_permlane32_swap_b32 v{KE}, v{KE + 2}", wr={KE, KE + 2}, rd={KE, KE + 2}, flags=("permlane",))
v_transpose(RAW2)
FR = [VA[0], VB[0], VA[1], VB[1]]
for f in range(4):
    for j in range(4):
        r = TD + 8 * f + 2 * j
        p.valu(f"v_cvt_pk_bf16_f32 v{FR[f] + j}, v{r}, v{r + 1}", wr={FR[f] + j}, rd={r, r + 1})
BF = "v_mfma_f32_32x32x16_bf16"
for tau in range(2):
    M1(tau)
    M2(tau)
    M3(tau)
    S = SB[tau]
    for ti, o in enumerate((O0, O1)):
        s = S + 16 * ti
        m = GM[ti]
        for r in range(16):
            p.valu(f"v_mul_f32 v{s + r}, v{s + r}, v{V_C}", wr={s + r}, rd={s + r, V_C})
        p.valu(f"v_max_f32 v{t0}, v{s}, v{s + 1}", wr={t0}, rd={s, s + 1})
        for r in range(2, 16, 2):
            p.valu(f"v_max3_f32 v{t0}, v{s + r}, v{s + r + 1}, v{t0}", wr={t0}, rd={s + r, s + r + 1, t0})
        p.valu(f"v_mov_b32 v{t1}, v{t0}", wr={t1}, rd={t0})
        p.valu(f"v_permlane32_swap_b32 v{t0}, v{t1}", wr={t0, t1}, rd={t0, t1}, flags=("permlane",))
        p.nop(2)
        p.valu(f"v_max3_f32 v{t0}, v{t0}, v{t1}, v{m}", wr={t0}, rd={t0, t1, m})
        p.valu(f"v_sub_f32 v{t1}, v{m}, v{t0}", wr={t1}, rd={m, t0})
        p.trans(f"v_exp_f32 v{t1}, v{t1}", wr={t1}, rd={t1})
        p.valu(f"v_mov_b32 v{m}, v{t0}", wr={m}, rd={t0})
        for r in range(16):
            p.valu(f"v_mul_f32 v{o + r}, v{o + r}, v{t1}", wr={o + r}, rd={o + r, t1})
        for r in range(16):
            p.valu(f"v_sub_f32 v{s + r}, v{s + r}, v{t0}", wr={s + r}, rd={s + r, t0})
        for r in range(16):
            p.trans(f"v_exp_f32 v{s + r}, v{s + r}", wr={s + r}, rd={s + r})
        for r in range(8):
            p.valu(f"v_cvt_pk_bf16_f32 v{P + 8 * ti + r}, v{s + 2 * r}, v{s + 2 * r + 1}", wr={P + 8 * ti + r},
                   rd={s + 2 * r, s + 2 * r + 1})
        p.mfma(BF, o, 16, VA[tau], 4, P + 8 * ti, 4, o, 8)
        p.mfma(BF, o, 16, VB[tau], 4, P + 8 * ti + 4, 4, o, 8)
p.flush()
p.salu(f"s_add_u32 s{S_SOFF}, s{S_SOFF}, {64 * ROWB}")
p.salu(f"s_add_u32 s{S_CNT}, s{S_CNT}, 1")
p.salu(f"s_cmp_lt_u32 s{S_CNT}, 32")
p.salu("s_cbranch_scc1 L_g_pair")
p.salu("s_branch L_epilogue")

hdr = open(f"cdna_kernels/{NAME}.s.ref").read().split("\n")
top = []
for line in hdr:
    if line.startswith("; @launch"):
        top.append(f"; @launch grid=(256,1,1) block=(512,1,1) lds={LDS_BYTES}")
        break
    top.append(line)
body = []
for i in p.ins:
    if "ghost" in i.flags:
        continue
    if i.cls in ("label", "label2"):
        body.append(i.text)
    else:
        body.append("    " + i.text)
src = "\n".join(top) + f"""
.amdgcn_target "amdgcn-amd-amdhsa--gfx950"
.text
.globl {NAME}_kernel
.p2align 8
.type {NAME}_kernel,@function
{NAME}_kernel:
""" + "\n".join(body) + f"""
.section .rodata,"a"
.p2align 6
.amdhsa_kernel {NAME}_kernel
  .amdhsa_next_free_vgpr {NVGPR}
  .amdhsa_next_free_sgpr {100 if STAMP else 64}
  .amdhsa_accum_offset {NVGPR}
  .amdhsa_group_segment_fixed_size 0
  .amdhsa_kernarg_size 56
  .amdhsa_user_sgpr_count 2
  .amdhsa_user_sgpr_kernarg_segment_ptr 1
  .amdhsa_system_sgpr_workgroup_id_x 1
.end_amdhsa_kernel
"""
open(OUT, "w").write(src)
print("wrote", OUT, "instructions:", len(body), "auto nops:", p.nops_inserted, "lds", LDS_BYTES)
```

```python
def vr(base, n=1):
    c = "v"
    if base >= 256:
        c = "a"
        base -= 256
    return f"{c}{base}" if n == 1 else f"{c}[{base}:{base + n - 1}]"


def rng(base, n=1):
    return set(range(base, base + n))


class Inst:
    __slots__ = ("text", "cls", "wr", "rd", "rdc", "passes", "ws", "swr", "srd", "flags")

    def __init__(self, text, cls, wr=(), rd=(), rdc=(), passes=0, ws=1, swr=(), srd=(), flags=()):
        self.text = text
        self.cls = cls
        self.wr = set(wr)
        self.rd = set(rd)
        self.rdc = set(rdc)
        self.passes = passes
        self.ws = ws
        self.swr = set(swr)
        self.srd = set(srd)
        self.flags = set(flags)


MF_D2VALU = {2: 5, 4: 8, 8: 12, 16: 20}
MF_D2COVL = {2: 4, 4: 6, 8: 10, 16: 18}
MF_CWAR = {2: 1, 4: 3, 8: 7, 16: 15}


class Prog:
    def __init__(self):
        self.ins = []
        self.lds_pend = []
        self.vm_pend = []
        self.nops_inserted = 0

    def _need(self, new):
        need = 0
        dist = 0
        for old in reversed(self.ins):
            if old.cls == "label":
                break
            if dist > 24:
                break
            if old.cls in ("other", "label2"):
                continue
            req = 0
            isv = new.cls in ("valu", "trans")
            if old.cls in ("valu", "trans"):
                if new.cls == "mfma" and old.wr & (new.rd | new.rdc):
                    req = max(req, 2)
                if old.cls == "trans" and new.cls == "valu" and old.wr & (new.rd | new.wr):
                    req = max(req, 1)
                if old.cls == "trans" and new.cls in ("ds", "vmem") and old.wr & new.rd:
                    req = max(req, 1)
                if "sdwa" in old.flags and isv and old.wr & (new.rd | new.wr):
                    req = max(req, 1)
                if "sdwa" in new.flags and old.wr & new.wr:
                    req = max(req, 1)
                if "dot" in old.flags and old.wr & (new.rd | new.wr | new.rdc):
                    if not ("dot" in new.flags and "dotc" in new.flags and not (old.wr & new.rd)):
                        req = max(req, 3)
                if "permlane" in new.flags and old.wr & (new.rd | new.wr):
                    req = max(req, 2)
                if "readlane" in new.flags and old.wr & new.rd:
                    req = max(req, 1)
                if old.swr:
                    if new.cls == "vmem" and old.swr & new.srd:
                        req = max(req, 5)
                    if isv and old.swr & new.srd:
                        req = max(req, 2)
                    if new.cls == "salu" and old.swr & new.srd:
                        req = max(req, 2)
                    if "exec" in old.swr and new.cls == "mfma":
                        req = max(req, 4)
            if old.cls == "mfma":
                if new.cls == "mfma":
                    if old.wr & new.rd:
                        req = max(req, MF_D2VALU[old.passes])
                    if old.wr & new.rdc:
                        if not (old.wr == new.rdc and old.passes == new.passes):
                            req = max(req, MF_D2COVL[old.passes])
                        elif old.passes == 2:
                            req = max(req, 2)
                    elif old.wr & new.wr:
                        req = max(req, MF_D2COVL[old.passes])
                elif new.cls in ("valu", "trans", "ds", "vmem"):
                    if old.wr & (new.rd | new.wr):
                        req = max(req, MF_D2VALU[old.passes])
                    if isv and old.rdc & new.wr:
                        req = max(req, MF_CWAR[old.passes])
            if old.cls == "vmem" and "widestore" in old.flags and old.rd & new.wr:
                req = max(req, 2)
            if req > dist:
                need = max(need, req - dist)
            dist += old.ws
        return need

    def _waits(self, new):
        touched = new.rd | new.wr | new.rdc
        idx = -1
        for i, d in enumerate(self.lds_pend):
            if d and d & touched:
                idx = i
        if idx >= 0:
            n = len(self.lds_pend) - 1 - idx
            n = min(n, 15)
            self.ins.append(Inst(f"s_waitcnt lgkmcnt({n})", "wait"))
            self.lds_pend = self.lds_pend[len(self.lds_pend) - n:] if n else []
        idx = -1
        for i, d in enumerate(self.vm_pend):
            if d and d & touched:
                idx = i
        if idx >= 0:
            n = len(self.vm_pend) - 1 - idx
            n = min(n, 63)
            self.ins.append(Inst(f"s_waitcnt vmcnt({n})", "wait"))
            self.vm_pend = self.vm_pend[len(self.vm_pend) - n:] if n else []

    def add(self, inst):
        self._waits(inst)
        n = self._need(inst)
        while n > 0:
            k = min(n, 16)
            self.ins.append(Inst(f"s_nop {k - 1}", "nop", ws=k))
            self.nops_inserted += k
            n -= k
        self.ins.append(inst)
        return inst

    def raw(self, text, cls="salu", **kw):
        return self.add(Inst(text, cls, **kw))

    def salu(self, text, swr=(), srd=()):
        return self.add(Inst(text, "salu", swr=swr, srd=srd))

    def label(self, name):
        self.ins.append(Inst(f"{name}:", "label", ws=0))

    def comment(self, t):
        self.ins.append(Inst(f"; {t}", "other", ws=0))

    def nop(self, n):
        while n > 0:
            k = min(n, 16)
            self.ins.append(Inst(f"s_nop {k - 1}", "nop", ws=k))
            n -= k

    def flush(self):
        self.ins.append(Inst("s_waitcnt vmcnt(0) lgkmcnt(0)", "wait"))
        self.lds_pend = []
        self.vm_pend = []
        self.nop(22)

    def wait_lds(self, n=0):
        self.ins.append(Inst(f"s_waitcnt lgkmcnt({n})", "wait"))
        self.lds_pend = self.lds_pend[len(self.lds_pend) - n:] if n else []

    def wait_vm(self, n=0):
        self.ins.append(Inst(f"s_waitcnt vmcnt({n})", "wait"))
        self.vm_pend = self.vm_pend[len(self.vm_pend) - n:] if n else []

    def valu(self, text, wr=(), rd=(), swr=(), srd=(), flags=()):
        return self.add(Inst(text, "valu", wr=wr, rd=rd, swr=swr, srd=srd, flags=flags))

    def trans(self, text, wr=(), rd=(), flags=()):
        return self.add(Inst(text, "trans", wr=wr, rd=rd, flags=flags))

    def mfma(self, op, D, nD, A, nA, B, nB, C, passes):
        ctext = "0" if C is None else vr(C, nD)
        return self.add(Inst(f"{op} {vr(D, nD)}, {vr(A, nA)}, {vr(B, nB)}, {ctext}", "mfma",
                             wr=rng(D, nD), rd=rng(A, nA) | rng(B, nB),
                             rdc=(set() if C is None else rng(C, nD)), passes=passes))

    def ds_read(self, op, D, n, addr, off):
        assert 0 <= off < 65536, off
        i = self.add(Inst(f"{op} {vr(D, n)}, v{addr} offset:{off}", "ds", wr=rng(D, n), rd={addr}))
        self.lds_pend.append(rng(D, n))
        return i

    def ds_write(self, op, addr, S, n, off):
        assert 0 <= off < 65536, off
        i = self.add(Inst(f"{op} v{addr}, {vr(S, n)} offset:{off}", "ds", rd={addr} | rng(S, n)))
        self.lds_pend.append(None)
        return i

    def bload(self, n, D, voff, srd, soff, off):
        op = {1: "buffer_load_dword", 2: "buffer_load_dwordx2", 3: "buffer_load_dwordx3", 4: "buffer_load_dwordx4"}[n]
        sreads = set(range(srd, srd + 4))
        if isinstance(soff, str) and soff.startswith("s"):
            sreads.add(int(soff[1:]))
        i = self.add(Inst(f"{op} {vr(D, n)}, v{voff}, s[{srd}:{srd + 3}], {soff} offen offset:{off}", "vmem",
                          wr=rng(D, n), rd={voff}, srd=sreads))
        self.vm_pend.append(rng(D, n))
        return i

    def bstore(self, n, S, voff, srd, soff, off):
        op = {1: "buffer_store_dword", 2: "buffer_store_dwordx2", 3: "buffer_store_dwordx3", 4: "buffer_store_dwordx4"}[n]
        sreads = set(range(srd, srd + 4))
        if isinstance(soff, str) and soff.startswith("s"):
            sreads.add(int(soff[1:]))
        i = self.add(Inst(f"{op} {vr(S, n)}, v{voff}, s[{srd}:{srd + 3}], {soff} offen offset:{off}", "vmem",
                          rd={voff} | rng(S, n), srd=sreads, flags=("widestore",) if n >= 3 else ()))
        self.vm_pend.append(None)
        return i

    def text(self):
        out = []
        for i in self.ins:
            if i.cls == "label":
                out.append(i.text)
            else:
                out.append("    " + i.text)
        return "\n".join(out)
```

```python
import copy
import struct
import sys
from emit import Prog, Inst, vr, rng

NAME = "standalone__qk_norm__prompt"
OUT = sys.argv[1] if len(sys.argv) > 1 and not sys.argv[1].startswith("--") else f"cdna_kernels/{NAME}.s"
FLAGS = set(a for a in sys.argv[1:] if a.startswith("--"))
FORCE_GENERIC = "--generic" in FLAGS
STAMP = "--stamp" in FLAGS


def opt(name, default):
    for a in FLAGS:
        if a.startswith(f"--{name}="):
            return int(a.split("=")[1])
    return default


BAR_AT = opt("barat", 11)

TENSOR_BYTES = 2 * 32 * 2048 * 18 * 2
ROWB = 36
PAIR = 7168
BUF = 4 * PAIR
NBUF = 3
FLAG = NBUF * BUF
LDS_BYTES = FLAG + 64
CHUNKB = 256 * ROWB


def f32bits(x):
    return struct.unpack("<I", struct.pack("<f", x))[0]


def f16bits(x):
    return struct.unpack("<H", struct.pack("<e", x))[0]


LOG2E = 1.4426950408889634
MAGIC_A = f16bits(192.0) | (f16bits(220.0) << 16)
MAGIC_B = f16bits(192.0) | (f16bits(131.0) << 16)
T_MAX_BITS = 0x402F0000


def drow(d):
    if d < 10:
        r, h = d, 0
    else:
        r, h = d - 10, 1
    return 8 * (r // 4) + 4 * h + (r % 4)


USED_MASK32 = sum(1 << drow(d) for d in range(18))

S_Q, S_K, S_V, S_O = 16, 20, 24, 28
S_HEAD, S_QB, S_WAVE, S_T, S_KOFF, S_QOFF = 32, 33, 34, 35, 36, 37
S_TMP, S_TMP2 = 38, 39
S_BADM = 40
S_BAD = 42
S_QH = 43
S_HIMASK, S_EPS, S_CLS, S_THR, S_SOFF, S_CNT = 44, 45, 46, 47, 48, 49
S_WB, S_PB = 50, 51
S_W4 = 52
S_USED = 54

V_TID, V_LANE = 0, 1
V_GK, V_GV, V_GQ, V_L16 = 2, 3, 4, 5
V_CUR, V_NXT = 6, 7
V_WP0, V_WP1 = 8, 9
V_W0, V_W1, V_W2 = 10, 11, 12
V_C, V_FLAGV = 13, 14
V_EA0, V_EA1 = 15, 28
V_T0 = 16
GM = [29, 30]
QE = [32, 34]
QM0 = [36, 44]
QM1 = [40, 48]
KE = [52, 56]
KM = [60, 64]
VA = [68, 72]
VB = [76, 80]
P = 84
SB = [100, 132]
OA = [164, 180, 196, 212]
BE = 228
BI = 232
NV = 240
NACC = 0
RQ = [100, 112]
RAWK = 164
RAWV = 176
TD = 188
Y = 100
RAWK1, RAWV1 = 112, 124
GO = [132, 148]
UREG = 136

p = Prog()
t0, t1, t2, t3 = V_T0, V_T0 + 1, V_T0 + 2, V_T0 + 3
NSTAMP = [0]


def stamp():
    if STAMP:
        k = NSTAMP[0]
        NSTAMP[0] += 1
        p.salu(f"s_memtime s[{64 + 2 * k}:{65 + 2 * k}]")
        p.raw("s_waitcnt lgkmcnt(0)", "wait")
        p.lds_pend = []


def soft_label(name):
    p.ins.append(Inst(f"{name}:", "label2", ws=0))


def zero_ws(idx):
    for i in p.ins[idx:]:
        i.ws = 0


def load_rows(dst, voff, srd, soff, off=0):
    p.bload(4, dst, voff, srd, soff, off)
    p.bload(4, dst + 4, voff, srd, soff, off + 16)
    p.bload(1, dst + 8, voff, srd, soff, off + 32)


def load_v(dst, soff):
    p.bload(4, dst, V_GV, S_V, soff, 0)
    p.bload(4, dst + 4, V_GV, S_V, soff, 32 * ROWB)
    p.bload(1, dst + 8, V_GK, S_V, soff, 32)


def norm_row(x, scale_reg, check, dst, hooks=None):
    ops = []
    a, b = V_T0, V_T0 + 1
    for j in range(9):
        acc = a if j % 2 == 0 else b
        c = "0" if j < 2 else f"v{acc}"
        ops.append(lambda j=j, acc=acc, c=c: p.valu(f"v_dot2_f32_bf16 v{acc}, v{x + j}, v{x + j}, {c}", wr={acc},
                                                    rd={x + j}, flags=("dot", "dotc")))
    R = V_T0 + 2
    T = [V_T0 + 4, V_T0 + 6, V_T0 + 8, V_T0 + 10]

    def unpack(j):
        t = T[j % 4]
        ops.append(lambda: p.valu(f"v_lshlrev_b32 v{t}, 16, v{x + j}", wr={t}, rd={x + j}))
        ops.append(lambda: p.valu(f"v_and_b32 v{t + 1}, s{S_HIMASK}, v{x + j}", wr={t + 1}, rd={x + j},
                                  srd={S_HIMASK}))
    unpack(0)
    unpack(1)
    ops.append(lambda: p.valu(f"v_add_f32 v{a}, v{a}, v{b}", wr={a}, rd={a, b}))
    ops.append(lambda: p.trans(f"v_sqrt_f32 v{R}, v{a}", wr={R}, rd={a}))
    if check:
        ops.append(lambda: p.valu(f"v_cmp_class_f32 vcc, v{a}, s{S_CLS}", rd={a}, swr={"vcc"}, srd={S_CLS}))
    else:
        unpack(2)
    ops.append(lambda: p.valu(f"v_add_f32 v{R}, s{S_EPS}, v{R}", wr={R}, rd={R}, srd={S_EPS}))
    ops.append(lambda: p.trans(f"v_rcp_f32 v{R}, v{R}", wr={R}, rd={R}))
    if check:
        unpack(2)
        ops.append(lambda: p.salu(f"s_or_b64 s[{S_BADM}:{S_BADM + 1}], s[{S_BADM}:{S_BADM + 1}], vcc", srd={"vcc"}))
    if scale_reg is not None:
        ops.append(lambda: p.valu(f"v_mul_f32 v{R}, v{R}, v{scale_reg}", wr={R}, rd={R, scale_reg}))
    for j in range(9):
        t = T[j % 4]
        ops.append(lambda t=t: p.valu(f"v_pk_mul_f32 v[{t}:{t + 1}], v[{t}:{t + 1}], v[{R}:{R + 1}] op_sel_hi:[1,0]",
                                      wr={t, t + 1}, rd={t, t + 1, R}))
        if j + 3 < 9:
            unpack(j + 3)
        ops.append(lambda t=t, j=j: p.valu(f"v_cvt_pk_f16_f32 v{dst[j]}, v{t}, v{t + 1}", wr={dst[j]},
                                           rd={t, t + 1}))
    for n, f in enumerate(ops):
        if hooks and n in hooks:
            hooks[n]()
        f()


def norm_row_plain(x, dst, U, hooks=None):
    ops = []
    a, b = V_T0, V_T0 + 1
    R = V_T0 + 2
    for j in range(9):
        lo, hi = U + 2 * j, U + 2 * j + 1
        ops.append(lambda j=j, lo=lo: p.valu(f"v_lshlrev_b32 v{lo}, 16, v{x + j}", wr={lo}, rd={x + j}))
        ops.append(lambda j=j, hi=hi: p.valu(f"v_and_b32 v{hi}, s{S_HIMASK}, v{x + j}", wr={hi}, rd={x + j},
                                             srd={S_HIMASK}))
        for acc, u in ((a, lo), (b, hi)):
            if j == 0:
                ops.append(lambda acc=acc, u=u: p.valu(f"v_mul_f32 v{acc}, v{u}, v{u}", wr={acc}, rd={u}))
            else:
                ops.append(lambda acc=acc, u=u: p.valu(f"v_fmac_f32 v{acc}, v{u}, v{u}", wr={acc}, rd={u, acc}))
    ops.append(lambda: p.valu(f"v_add_f32 v{a}, v{a}, v{b}", wr={a}, rd={a, b}))
    ops.append(lambda: p.trans(f"v_sqrt_f32 v{R}, v{a}", wr={R}, rd={a}))
    ops.append(lambda: p.valu(f"v_cmp_class_f32 vcc, v{a}, s{S_CLS}", rd={a}, swr={"vcc"}, srd={S_CLS}))
    ops.append(lambda: p.valu(f"v_add_f32 v{R}, s{S_EPS}, v{R}", wr={R}, rd={R}, srd={S_EPS}))
    ops.append(lambda: p.trans(f"v_rcp_f32 v{R}, v{R}", wr={R}, rd={R}))
    ops.append(lambda: p.salu(f"s_or_b64 s[{S_BADM}:{S_BADM + 1}], s[{S_BADM}:{S_BADM + 1}], vcc", srd={"vcc"}))
    for j in range(9):
        lo, hi = U + 2 * j, U + 2 * j + 1
        ops.append(lambda lo=lo: p.valu(f"v_mul_f32 v{lo}, v{lo}, v{R}", wr={lo}, rd={lo, R}))
        ops.append(lambda hi=hi: p.valu(f"v_mul_f32 v{hi}, v{hi}, v{R}", wr={hi}, rd={hi, R}))
        ops.append(lambda j=j, lo=lo, hi=hi: p.valu(f"v_cvt_pk_f16_f32 v{dst[j]}, v{lo}, v{hi}", wr={dst[j]},
                                                    rd={lo, hi}))
    for n, f in enumerate(ops):
        if hooks and n in hooks:
            hooks[n]()
        f()


def T1(raw):
    p.mfma("v_mfma_f32_32x32x16_bf16", TD, 16, raw, 4, BI, 4, None, 8)


def T2(raw):
    p.mfma("v_mfma_f32_32x32x16_bf16", TD + 16, 16, raw + 4, 4, BI, 4, None, 8)


def T12(raw):
    T1(raw)
    T2(raw)


def T3(raw):
    p.mfma("v_mfma_f32_32x32x4_2b_bf16", TD, 32, raw + 8, 2, BE, 2, TD, 16)


def kv_compute(rawk, rawv, first, lead=0):
    hooks = {lead: lambda: T1(rawv), lead + 8: lambda: T2(rawv), lead + 18: lambda: T3(rawv)}
    norm_row_plain(rawk, [Y + j for j in range(9)], UREG, hooks=hooks)
    if first:
        m = V_T0
        p.valu(f"v_max_f32 v{m}, |v{TD}|, |v{TD + 1}|", wr={m}, rd={TD, TD + 1})
        for r in range(2, 32, 2):
            p.valu(f"v_max3_f32 v{m}, |v{TD + r}|, |v{TD + r + 1}|, v{m}", wr={m}, rd={TD + r, TD + r + 1, m})
        p.valu(f"v_cmp_gt_f32 vcc, s{S_THR}, v{m}", rd={m}, swr={"vcc"}, srd={S_THR})
        p.salu(f"s_and_b64 vcc, vcc, s[{S_USED}:{S_USED + 1}]", srd={"vcc"})
        p.salu(f"s_or_b64 s[{S_BADM}:{S_BADM + 1}], s[{S_BADM}:{S_BADM + 1}], vcc")
    for f in range(4):
        for j in range(4):
            r = TD + 8 * f + 2 * j
            d = TD + 8 * f + j
            p.valu(f"v_cvt_pk_f16_f32 v{d}, v{r}, v{r + 1}", wr={d}, rd={r, r + 1})


def kv_writes():
    w = [lambda: p.ds_write("ds_write_b128", V_W0, Y, 4, 0),
         lambda: p.ds_write("ds_write_b128", V_W0, Y + 4, 4, 512),
         lambda: p.ds_write("ds_write_b64", V_W1, Y + 8, 2, 2048),
         lambda: p.ds_write("ds_write_b64", V_W1, Y + 8, 2, 2048 + 512)]
    for f in range(4):
        w.append(lambda f=f: p.ds_write("ds_write_b128", V_W2, TD + 8 * f, 4, 3072 + 1024 * f))
    return w


def kv_loads(soff):
    return [lambda: p.bload(4, RAWV, V_GV, S_V, soff, 0),
            lambda: p.bload(4, RAWV + 4, V_GV, S_V, soff, 32 * ROWB),
            lambda: p.bload(1, RAWV + 8, V_GK, S_V, soff, 32),
            lambda: p.bload(4, RAWK, V_GK, S_K, soff, 0),
            lambda: p.bload(4, RAWK + 4, V_GK, S_K, soff, 16),
            lambda: p.bload(1, RAWK + 8, V_GK, S_K, soff, 32)]


def set_waddr(sbase):
    p.valu(f"v_add_u32 v{V_W0}, {sbase}, v{V_WP0}", wr={V_W0}, rd={V_WP0})
    p.valu(f"v_add_u32 v{V_W1}, {sbase}, v{V_WP1}", wr={V_W1}, rd={V_WP1})
    p.valu(f"v_add_u32 v{V_W2}, {sbase}, v{V_L16}", wr={V_W2}, rd={V_L16})


def q_prep(raw, hq, scale_reg, magic, check, hooks=None):
    dst = [QM0[hq] + j for j in range(4)] + [QM1[hq] + j for j in range(4)] + [QE[hq]]
    norm_row(raw, scale_reg, check, dst, hooks)
    p.valu(f"v_mov_b32 v{QE[hq] + 1}, 0x{magic:08x}", wr={QE[hq] + 1})
    for j in range(4):
        a, b = QM0[hq] + j, QM1[hq] + j
        p.valu(f"v_permlane32_swap_b32 v{a}, v{b}", wr={a, b}, rd={a, b}, flags=("permlane",))


if STAMP:
    p.salu("s_memrealtime s[60:61]")
stamp()
p.salu("s_cmp_ge_u32 s2, 256")
p.salu("s_cbranch_scc1 L_end")
p.salu("s_load_dwordx8 s[4:11], s[0:1], 0")
p.salu("s_load_dwordx2 s[12:13], s[0:1], 32")
p.valu(f"v_lshrrev_b32 v{t0}, 6, v{V_TID}", wr={t0}, rd={V_TID})
p.salu(f"s_and_b32 s{S_TMP}, s2, 7")
p.salu(f"s_lshr_b32 s{S_TMP2}, s2, 3")
p.valu(f"v_readfirstlane_b32 s{S_WAVE}, v{t0}", rd={t0}, swr={S_WAVE}, flags=("readlane",))
p.salu(f"s_and_b32 s{S_QB}, s{S_TMP2}, 3")
p.salu(f"s_lshr_b32 s{S_TMP2}, s{S_TMP2}, 2")
p.salu(f"s_lshl_b32 s{S_HEAD}, s{S_TMP}, 3")
p.salu(f"s_add_u32 s{S_HEAD}, s{S_HEAD}, s{S_TMP2}")
p.salu(f"s_mul_i32 s{S_KOFF}, s{S_HEAD}, {2048 * ROWB}")
p.salu(f"s_mul_i32 s{S_TMP}, s{S_QB}, {512 * ROWB}")
p.salu(f"s_add_u32 s{S_QOFF}, s{S_KOFF}, s{S_TMP}")
p.salu(f"s_and_b32 s{S_W4}, s{S_WAVE}, 3", srd={S_WAVE})
p.salu(f"s_mul_i32 s{S_TMP}, s{S_W4}, {128 * ROWB}")
p.salu(f"s_add_u32 s{S_QOFF}, s{S_QOFF}, s{S_TMP}")
p.valu(f"v_and_b32 v{V_LANE}, 63, v{V_TID}", wr={V_LANE}, rd={V_TID})
p.valu(f"v_and_b32 v{t0}, 0xff, v{V_TID}", wr={t0}, rd={V_TID})
p.valu(f"v_mul_u32_u24 v{V_GK}, {ROWB}, v{t0}", wr={V_GK}, rd={t0})
p.valu(f"v_mul_u32_u24 v{V_GQ}, {ROWB}, v{V_LANE}", wr={V_GQ}, rd={V_LANE})
p.valu(f"v_and_b32 v{t0}, 0xdf, v{V_TID}", wr={t0}, rd={V_TID})
p.valu(f"v_mul_u32_u24 v{V_GV}, {ROWB}, v{t0}", wr={V_GV}, rd={t0})
p.valu(f"v_lshrrev_b32 v{t1}, 5, v{V_LANE}", wr={t1}, rd={V_LANE})
p.valu(f"v_lshl_add_u32 v{V_GV}, v{t1}, 4, v{V_GV}", wr={V_GV}, rd={t1, V_GV})
p.salu(f"s_and_b32 s{S_TMP}, s{S_HEAD}, 30")
p.salu(f"s_lshl_b32 s{S_TMP}, s{S_TMP}, 1")
p.salu(f"s_add_u32 s{S_SOFF}, s{S_KOFF}, {CHUNKB}")
p.raw("s_waitcnt lgkmcnt(0)", "wait")
p.salu(f"s_load_dword s{S_T}, s[10:11], s{S_TMP}")
for srd, ptr in ((S_K, 6), (S_V, 8), (S_Q, 4), (S_O, 12)):
    p.salu(f"s_mov_b32 s{srd}, s{ptr}")
    p.salu(f"s_mov_b32 s{srd + 1}, s{ptr + 1}")
    p.salu(f"s_mov_b32 s{srd + 2}, {TENSOR_BYTES}")
    p.salu(f"s_mov_b32 s{srd + 3}, 0x00020000")


def consts():
    p.salu(f"s_mov_b32 s{S_HIMASK}, 0xffff0000")
    p.salu(f"s_mov_b32 s{S_EPS}, 0x{f32bits(1e-6):08x}")
    p.salu(f"s_mov_b32 s{S_CLS}, 0x207")
    p.salu(f"s_mov_b64 s[{S_BADM}:{S_BADM + 1}], 0")
    p.valu(f"v_mov_b32 v{V_FLAGV}, 0x{FLAG:x}", wr={V_FLAGV})


def ident():
    for i in range(4):
        p.valu(f"v_mov_b32 v{BI + i}, 0", wr={BI + i})
    p.valu(f"v_mov_b32 v{BE}, 0", wr={BE})
    p.valu(f"v_mov_b32 v{BE + 1}, 0", wr={BE + 1})
    p.salu(f"s_mov_b32 s{S_TMP}, 0x3f80")
    p.salu(f"s_mov_b32 s{S_TMP2}, 0x3f800000")
    for k in range(16):
        lane = (k // 8) * 32 + drow(k)
        i = (k % 8) // 2
        p.valu(f"v_writelane_b32 v{BI + i}, s{S_TMP if k % 2 == 0 else S_TMP2}, {lane}", wr={BI + i}, rd={BI + i})
    for col, reg, val in ((drow(16), BE, S_TMP), (drow(17), BE, S_TMP2), (18, BE + 1, S_TMP), (22, BE + 1, S_TMP)):
        for h in range(2):
            p.valu(f"v_writelane_b32 v{reg}, s{val}, {col + 32 * h}", wr={reg}, rd={reg})


def t_check(target):
    p.raw("s_waitcnt lgkmcnt(0)", "wait")
    p.salu(f"s_lshl_b32 s{S_TMP}, s{S_T}, 16")
    p.salu(f"s_and_b32 s{S_TMP2}, s{S_T}, 0xffff0000")
    p.salu(f"s_bitcmp1_b32 s{S_HEAD}, 0")
    p.salu(f"s_cselect_b32 s{S_T}, s{S_TMP2}, s{S_TMP}")
    p.valu(f"v_mov_b32 v{V_C}, 0x{f32bits(LOG2E):08x}", wr={V_C})
    p.valu(f"v_mul_f32 v{V_C}, s{S_T}, v{V_C}", wr={V_C}, rd={V_C})
    p.salu(f"s_and_b32 s{S_TMP}, s{S_T}, 0x7fffffff")
    if FORCE_GENERIC:
        p.salu(f"s_branch {target}")
    else:
        p.salu(f"s_cmp_gt_u32 s{S_TMP}, 0x{T_MAX_BITS:x}")
        p.salu(f"s_cbranch_scc1 {target}")


p.salu(f"s_cmp_ge_u32 s{S_WAVE}, 4")
p.salu("s_cbranch_scc1 L_producer")

load_rows(RQ[0], V_GQ, S_Q, f"s{S_QOFF}")
load_rows(RQ[1], V_GQ, S_Q, f"s{S_QOFF}", 64 * ROWB)
consts()
p.valu(f"v_lshlrev_b32 v{V_CUR}, 4, v{V_LANE}", wr={V_CUR}, rd={V_LANE})
p.valu(f"v_add_u32 v{V_NXT}, 0x{BUF:x}, v{V_CUR}", wr={V_NXT}, rd={V_CUR})
p.valu(f"v_and_b32 v{t0}, 31, v{V_LANE}", wr={t0}, rd={V_LANE})
p.valu(f"v_mul_u32_u24 v{t2}, {ROWB}, v{t0}", wr={t2}, rd={t0})
p.valu(f"v_mul_u32_u24 v{V_EA0}, 20, v{t1}", wr={V_EA0}, rd={t1})
p.valu(f"v_add_u32 v{V_EA0}, v{V_EA0}, v{t2}", wr={V_EA0}, rd={V_EA0, t2})
p.valu(f"v_lshl_add_u32 v{V_EA1}, v{t1}, 30, v{t2}", wr={V_EA1}, rd={t1, t2})
for r in list(range(OA[0], OA[0] + 64)) + list(range(P + 12, P + 16)) + list(range(VB[1], VB[1] + 4)):
    p.valu(f"v_mov_b32 v{r}, 0", wr={r})
t_check("L_generic")
stamp()
q_prep(RQ[0], 0, V_C, MAGIC_B, True)
q_prep(RQ[1], 1, V_C, MAGIC_B, True)
stamp()
p.raw("s_barrier", "salu")
stamp()

F16 = "v_mfma_f32_32x32x16_f16"


def taddr(j):
    return (V_CUR if j < 8 else V_NXT), ((j % 8) // 2) * PAIR, j % 2


def rd_km(j):
    a, o, tp = taddr(j)
    p.ds_read("ds_read_b128", KM[j % 2], 4, a, o + 1024 * tp)


def rd_ke(j):
    a, o, tp = taddr(j)
    assert tp == 0
    p.ds_read("ds_read_b128", KE[(j // 2) % 2], 4, a, o + 2048)


def rd_va(j):
    a, o, tp = taddr(j)
    p.ds_read("ds_read_b128", VA[j % 2], 4, a, o + 3072 + 2048 * tp)


def rd_vb(j):
    a, o, tp = taddr(j)
    p.ds_read("ds_read_b128", VB[j % 2], 4, a, o + 4096 + 2048 * tp)


def M1(m):
    p.mfma(F16, SB[m % 2], 16, KM[(m // 2) % 2], 4, QM0[m % 2], 4, None, 8)


def M2(m):
    p.mfma(F16, SB[m % 2] + 16, 16, KM[(m // 2) % 2], 4, QM1[m % 2], 4, None, 8)


def M3(m):
    j = m // 2
    p.mfma("v_mfma_f32_32x32x4_2b_f16", SB[m % 2], 32, KE[(j // 2) % 2] + 2 * (j % 2), 2, QE[m % 2], 2, SB[m % 2], 16)


def PV(which, m):
    j = m // 2
    o = OA[2 * (m % 2) + (0 if which <= 2 else 1)]
    v = VA[j % 2] if which % 2 == 1 else VB[j % 2]
    p.mfma(F16, o, 16, v, 4, P + 4 * (which - 1), 4, o, 8)


def G(g, m, mid=None):
    s = SB[m % 2] + 4 * g
    d = P + 2 * g
    p.trans(f"v_exp_f16 v{d}, v{s}", wr={d}, rd={s})
    p.trans(f"v_exp_f16 v{d + 1}, v{s + 2}", wr={d + 1}, rd={s + 2})
    p.trans(f"v_exp_f16_sdwa v{d}, v{s + 1} dst_sel:WORD_1 dst_unused:UNUSED_PRESERVE src0_sel:WORD_0",
            wr={d}, rd={s + 1, d}, flags=("sdwa",))
    if mid:
        mid()
    p.trans(f"v_exp_f16_sdwa v{d + 1}, v{s + 3} dst_sel:WORD_1 dst_unused:UNUSED_PRESERVE src0_sel:WORD_0",
            wr={d + 1}, rd={s + 3, d + 1}, flags=("sdwa",))


PREP_AT = opt("prepat", 5)


def chunk_body(tag):
    extra = []

    def X():
        if extra:
            extra.pop(0)()

    for m in range(16):
        j = m // 2
        G(0, m)
        M2(m + 1)
        if m % 2 == 0:
            if "--latewait" not in FLAGS:
                p.wait_lds(0)
            rd_km(j + 2)
            if j % 2 == 0:
                rd_ke(j + 2)
        else:
            X()
        G(1, m)
        PV(4, m - 1)
        if m % 2 == 0:
            rd_vb(j + 1)
            rd_va(j + 1)
        else:
            X()
        G(2, m)
        PV(1, m)
        X()
        G(3, m, mid=lambda: M3(m + 1))
        X()
        G(4, m)
        X()
        G(5, m)
        PV(2, m)
        X()
        G(6, m)
        M1(m + 2)
        X()
        G(7, m)
        PV(3, m)
        X()
        if m == BAR_AT:
            assert not extra
            assert all(x is not None for x in p.lds_pend), "prep writes must have been retired"
            p.salu(f"s_cmp_ge_u32 s{S_CNT}, 7")
            p.salu(f"s_cbranch_scc1 L_nobar_{tag}")
            idx = len(p.ins)
            if "--nobar" not in FLAGS:
                p.raw("s_barrier", "salu")
            soft_label(f"L_nobar_{tag}")
            zero_ws(idx)
    p.salu(f"s_add_u32 s{S_WB}, s{S_WB}, {BUF}")
    p.salu(f"s_cmp_ge_u32 s{S_WB}, {NBUF * BUF}")
    p.salu(f"s_cselect_b32 s{S_WB}, 0, s{S_WB}")
    p.valu(f"v_mov_b32 v{V_CUR}, v{V_NXT}", wr={V_CUR}, rd={V_NXT})
    p.valu(f"v_lshl_add_u32 v{V_NXT}, v{V_LANE}, 4, s{S_WB}", wr={V_NXT}, rd={V_LANE})
    p.salu(f"s_add_u32 s{S_CNT}, s{S_CNT}, 1")
    p.vm_pend = []


assert BAR_AT <= 11
p.salu(f"s_mov_b32 s{S_CNT}, 0")
p.salu(f"s_mov_b32 s{S_WB}, {BUF}")
rd_km(0)
rd_ke(0)
rd_km(1)
rd_vb(0)
rd_va(0)
M1(0)
M2(0)
M1(1)
M3(0)
p.wait_lds(0)
p.nop(18)

saved = (p.ins, p.nops_inserted)
p.ins = []
p.lds_pend = []
p.vm_pend = []
chunk_body("d")
tail = p.ins[-60:]
steady = list(p.lds_pend)
p.ins, p.nops_inserted = saved
p.ins.append(Inst(".p2align 6", "other", ws=0))
p.label("L_loop")
for i in tail:
    g = copy.copy(i)
    g.flags = set(g.flags) | {"ghost"}
    p.ins.append(g)
p.lds_pend = list(steady)
p.vm_pend = []
chunk_body("A")
assert [sorted(x) for x in p.lds_pend] == [sorted(x) for x in steady], (p.lds_pend, steady)
p.salu(f"s_cmp_lt_u32 s{S_CNT}, 8")
p.salu("s_cbranch_scc1 L_loop")
PV(4, 15)
stamp()
p.ds_read("ds_read_b32", V_FLAGV, 1, V_FLAGV, 0)


def epilogue(o_regs, soff, off0, ybase):
    for ti, o in enumerate(o_regs):
        R = V_T0 + 4 + 2 * ti
        y = ybase + 8 * ti
        p.trans(f"v_rcp_f32 v{R}, v{o + 10}", wr={R}, rd={o + 10})
        for j in range(5):
            p.valu(f"v_pk_mul_f32 v[{o + 2 * j}:{o + 2 * j + 1}], v[{o + 2 * j}:{o + 2 * j + 1}], v[{R}:{R + 1}] op_sel_hi:[1,0]",
                   wr={o + 2 * j, o + 2 * j + 1}, rd={o + 2 * j, o + 2 * j + 1, R})
        for j in range(5):
            p.valu(f"v_cvt_pk_bf16_f32 v{y + j}, v{o + 2 * j}, v{o + 2 * j + 1}", wr={y + j},
                   rd={o + 2 * j, o + 2 * j + 1})
        p.bstore(4, y, V_EA0, S_O, soff, off0 + ti * 32 * ROWB)
        p.bstore(1, y + 4, V_EA1, S_O, soff, off0 + ti * 32 * ROWB + 16)


o = OA[0]
p.valu(f"v_add_f32 v{t0}, |v{o}|, |v{o + 1}|", wr={t0}, rd={o, o + 1})
for r in range(2, 10):
    p.valu(f"v_add_f32 v{t0}, |v{o + r}|, v{t0}", wr={t0}, rd={o + r, t0})
p.valu(f"v_cmp_class_f32 vcc, v{t0}, s{S_CLS}", rd={t0}, swr={"vcc"}, srd={S_CLS})
p.valu(f"v_readfirstlane_b32 s{S_BAD}, v{V_FLAGV}", rd={V_FLAGV}, swr={S_BAD}, flags=("readlane",))
p.salu(f"s_or_b64 s[{S_BADM}:{S_BADM + 1}], s[{S_BADM}:{S_BADM + 1}], vcc", srd={"vcc"})
p.salu(f"s_or_b32 s{S_BAD}, s{S_BAD}, s{S_BADM}", srd={S_BAD})
p.salu(f"s_or_b32 s{S_BAD}, s{S_BAD}, s{S_BADM + 1}")
p.salu("s_cbranch_scc1 L_generic")
epilogue(OA[0:2], f"s{S_QOFF}", 0, P)
epilogue(OA[2:4], f"s{S_QOFF}", 64 * ROWB, KE[0])
if STAMP:
    stamp()
    p.salu("s_memrealtime s[62:63]")
    p.salu("s_load_dwordx2 s[56:57], s[0:1], 48")
    p.raw("s_waitcnt lgkmcnt(0)", "wait")
    k = NSTAMP[0]
    NSTAMP[0] += 2
    p.salu(f"s_sub_u32 s{64 + 2 * k}, s62, s60")
    p.salu(f"s_add_u32 s{64 + 2 * k}, s{64 + 2 * k}, s64")
    p.salu(f"s_add_u32 s{66 + 2 * k}, s60, s64")
    p.salu("s_mov_b32 s58, 0x1000000")
    p.salu("s_mov_b32 s59, 0x00020000")
    p.valu(f"v_mov_b32 v{t2}, 0", wr={t2})
    for k in range(NSTAMP[0]):
        p.salu(f"s_sub_u32 s{S_TMP}, s{64 + 2 * k}, s64")
        p.valu(f"v_mov_b32 v{t1}, s{S_TMP}", wr={t1})
        p.valu(f"v_cmp_eq_u32 vcc, {k}, v{V_LANE}", rd={V_LANE}, swr={"vcc"})
        p.valu(f"v_cndmask_b32 v{t2}, v{t2}, v{t1}, vcc", wr={t2}, rd={t2, t1}, srd={"vcc"})
    p.valu(f"v_mov_b32 v{t1}, s2", wr={t1})
    p.valu(f"v_lshlrev_b32 v{t1}, 9, v{t1}", wr={t1}, rd={t1})
    p.valu(f"v_add_u32 v{t1}, v{t1}, v{V_TID}", wr={t1}, rd={t1, V_TID})
    p.valu(f"v_lshlrev_b32 v{t1}, 2, v{t1}", wr={t1}, rd={t1})
    p.bstore(1, t2, t1, 56, "0", 0)
p.label("L_end")
p.salu("s_endpgm")

p.label("L_producer")
p.lds_pend = []
p.vm_pend = []
p.salu(f"s_setprio {opt('pprio', 3)}")
load_v(RAWV1, f"s{S_KOFF}")
load_rows(RAWK1, V_GK, S_K, f"s{S_KOFF}")
consts()
p.salu(f"s_mov_b32 s{S_THR}, 0x{f32bits(2.0 ** -9):08x}")
p.salu(f"s_mov_b32 s{S_USED}, 0x{USED_MASK32:08x}")
p.salu(f"s_mov_b32 s{S_USED + 1}, 0x{USED_MASK32:08x}")
p.salu(f"s_mul_i32 s{S_PB}, s{S_W4}, {PAIR}")
p.valu(f"v_lshrrev_b32 v{t1}, 5, v{V_LANE}", wr={t1}, rd={V_LANE})
p.valu(f"v_lshl_add_u32 v{V_L16}, v{V_LANE}, 4, s{S_PB}", wr={V_L16}, rd={V_LANE})
p.valu(f"v_and_b32 v{t0}, 31, v{V_LANE}", wr={t0}, rd={V_LANE})
p.valu(f"v_lshl_add_u32 v{t2}, v{t0}, 4, s{S_PB}", wr={t2}, rd={t0})
p.valu(f"v_lshl_add_u32 v{V_WP0}, v{t1}, 10, v{t2}", wr={V_WP0}, rd={t1, t2})
p.valu(f"v_lshl_add_u32 v{V_WP1}, v{t1}, 3, v{t2}", wr={V_WP1}, rd={t1, t2})
ident()
p.valu(f"v_mov_b32 v{RAWV + 9}, 0x3f80", wr={RAWV + 9})
p.valu(f"v_mov_b32 v{RAWV1 + 9}, 0x3f80", wr={RAWV1 + 9})
p.valu(f"v_mov_b32 v{Y + 9}, 0x{MAGIC_A:08x}", wr={Y + 9})
p.valu(f"v_mov_b32 v{t1}, 0", wr={t1})
t_check("L_end2")
p.ds_write("ds_write_b32", V_FLAGV, t1, 1, 0)
set_waddr("0")
kv_compute(RAWK1, RAWV1, True)
for f in kv_writes():
    f()
for f in kv_loads(f"s{S_SOFF}"):
    f()
p.wait_lds(0)
p.raw("s_barrier", "salu")
p.salu(f"s_mov_b32 s{S_CNT}, 1")
p.salu(f"s_mov_b32 s{S_WB}, {BUF}")
p.nop(4)
p.label("L_ploop")
set_waddr(f"s{S_WB}")
p.wait_vm(0)
kv_compute(RAWK, RAWV, False)
p.salu(f"s_add_u32 s{S_SOFF}, s{S_SOFF}, {CHUNKB}")
p.salu(f"s_cmp_ge_u32 s{S_CNT}, 7")
p.salu("s_cbranch_scc1 L_plast")
idx = len(p.ins)
for f in kv_loads(f"s{S_SOFF}"):
    f()
for f in kv_writes():
    f()
p.wait_lds(0)
p.raw("s_barrier", "salu")
p.salu(f"s_add_u32 s{S_WB}, s{S_WB}, {BUF}")
p.salu(f"s_cmp_ge_u32 s{S_WB}, {NBUF * BUF}")
p.salu(f"s_cselect_b32 s{S_WB}, 0, s{S_WB}")
p.salu(f"s_add_u32 s{S_CNT}, s{S_CNT}, 1")
p.salu("s_branch L_ploop")
soft_label("L_plast")
zero_ws(idx)
p.vm_pend = []
p.lds_pend = []
for f in kv_writes():
    f()
p.salu(f"s_or_b32 s{S_BAD}, s{S_BADM}, s{S_BADM + 1}")
p.valu(f"v_mov_b32 v{t1}, s{S_BAD}", wr={t1})
p.ds_write("ds_or_b32", V_FLAGV, t1, 1, 0)
p.wait_lds(0)
p.raw("s_barrier", "salu")
p.label("L_end2")
p.salu("s_endpgm")

p.label("L_generic")
p.flush()
p.valu(f"v_mul_u32_u24 v{V_GK}, {ROWB}, v{V_LANE}", wr={V_GK}, rd={V_LANE})
p.valu(f"v_and_b32 v{t0}, 31, v{V_LANE}", wr={t0}, rd={V_LANE})
p.valu(f"v_mul_u32_u24 v{V_GV}, {ROWB}, v{t0}", wr={V_GV}, rd={t0})
p.valu(f"v_lshrrev_b32 v{t1}, 5, v{V_LANE}", wr={t1}, rd={V_LANE})
p.valu(f"v_lshl_add_u32 v{V_GV}, v{t1}, 4, v{V_GV}", wr={V_GV}, rd={t1, V_GV})
p.valu(f"v_mov_b32 v{RAWV + 9}, 0x3f80", wr={RAWV + 9})
ident()
p.salu(f"s_mov_b32 s{S_QH}, 0")
p.flush()
p.label("L_g_half")
load_rows(RAWK, V_GQ, S_Q, f"s{S_QOFF}")
q_prep(RAWK, 0, None, 0, False)
for o in GO:
    for r in range(16):
        p.valu(f"v_mov_b32 v{o + r}, 0", wr={o + r})
for g in GM:
    p.valu(f"v_mov_b32 v{g}, 0xff7fffff", wr={g})
p.salu(f"s_mov_b32 s{S_SOFF}, s{S_KOFF}")
p.salu(f"s_mov_b32 s{S_CNT}, 0")
p.flush()
p.label("L_g_pair")
load_rows(RAWK, V_GK, S_K, f"s{S_SOFF}")
load_v(RAWV, f"s{S_SOFF}")
norm_row(RAWK, None, False, [KM[0] + j for j in range(4)] + [KM[1] + j for j in range(4)] + [KE[0]])
p.valu(f"v_mov_b32 v{KE[0] + 2}, v{KE[0]}", wr={KE[0] + 2}, rd={KE[0]})
p.valu(f"v_mov_b32 v{KE[0] + 1}, 0", wr={KE[0] + 1})
p.valu(f"v_mov_b32 v{KE[0] + 3}, 0", wr={KE[0] + 3})
for j in range(4):
    a, b = KM[0] + j, KM[1] + j
    p.valu(f"v_permlane32_swap_b32 v{a}, v{b}", wr={a, b}, rd={a, b}, flags=("permlane",))
p.valu(f"v_permlane32_swap_b32 v{KE[0]}, v{KE[0] + 2}", wr={KE[0], KE[0] + 2}, rd={KE[0], KE[0] + 2},
       flags=("permlane",))
T12(RAWV)
T3(RAWV)
FR = [VA[0], VB[0], VA[1], VB[1]]
for f in range(4):
    for j in range(4):
        r = TD + 8 * f + 2 * j
        p.valu(f"v_cvt_pk_bf16_f32 v{FR[f] + j}, v{r}, v{r + 1}", wr={FR[f] + j}, rd={r, r + 1})
BF = "v_mfma_f32_32x32x16_bf16"
for tau in range(2):
    M1(2 * tau)
    M2(2 * tau)
    M3(2 * tau)
    S = SB[0]
    for ti, o in enumerate(GO):
        s = S + 16 * ti
        m = GM[ti]
        for r in range(16):
            p.valu(f"v_mul_f32 v{s + r}, v{s + r}, v{V_C}", wr={s + r}, rd={s + r, V_C})
        p.valu(f"v_max_f32 v{t0}, v{s}, v{s + 1}", wr={t0}, rd={s, s + 1})
        for r in range(2, 16, 2):
            p.valu(f"v_max3_f32 v{t0}, v{s + r}, v{s + r + 1}, v{t0}", wr={t0}, rd={s + r, s + r + 1, t0})
        p.valu(f"v_mov_b32 v{t1}, v{t0}", wr={t1}, rd={t0})
        p.valu(f"v_permlane32_swap_b32 v{t0}, v{t1}", wr={t0, t1}, rd={t0, t1}, flags=("permlane",))
        p.nop(2)
        p.valu(f"v_max3_f32 v{t0}, v{t0}, v{t1}, v{m}", wr={t0}, rd={t0, t1, m})
        p.valu(f"v_sub_f32 v{t1}, v{m}, v{t0}", wr={t1}, rd={m, t0})
        p.trans(f"v_exp_f32 v{t1}, v{t1}", wr={t1}, rd={t1})
        p.valu(f"v_mov_b32 v{m}, v{t0}", wr={m}, rd={t0})
        for r in range(16):
            p.valu(f"v_mul_f32 v{o + r}, v{o + r}, v{t1}", wr={o + r}, rd={o + r, t1})
        for r in range(16):
            p.valu(f"v_sub_f32 v{s + r}, v{s + r}, v{t0}", wr={s + r}, rd={s + r, t0})
        for r in range(16):
            p.trans(f"v_exp_f32 v{s + r}, v{s + r}", wr={s + r}, rd={s + r})
        for r in range(8):
            p.valu(f"v_cvt_pk_bf16_f32 v{P + 8 * ti + r}, v{s + 2 * r}, v{s + 2 * r + 1}", wr={P + 8 * ti + r},
                   rd={s + 2 * r, s + 2 * r + 1})
        p.mfma(BF, o, 16, VA[tau], 4, P + 8 * ti, 4, o, 8)
        p.mfma(BF, o, 16, VB[tau], 4, P + 8 * ti + 4, 4, o, 8)
p.flush()
p.salu(f"s_add_u32 s{S_SOFF}, s{S_SOFF}, {64 * ROWB}")
p.salu(f"s_add_u32 s{S_CNT}, s{S_CNT}, 1")
p.salu(f"s_cmp_lt_u32 s{S_CNT}, 32")
p.salu("s_cbranch_scc1 L_g_pair")
epilogue(GO, f"s{S_QOFF}", 0, P)
p.flush()
p.salu(f"s_add_u32 s{S_QOFF}, s{S_QOFF}, {64 * ROWB}")
p.salu(f"s_add_u32 s{S_QH}, s{S_QH}, 1")
p.salu(f"s_cmp_lt_u32 s{S_QH}, 2")
p.salu("s_cbranch_scc1 L_g_half")
p.salu("s_endpgm")

hdr = open(f"cdna_kernels/{NAME}.s.ref").read().split("\n")
top = []
for line in hdr:
    if line.startswith("; @launch"):
        top.append(f"; @launch grid=(256,1,1) block=(512,1,1) lds={LDS_BYTES}")
        break
    top.append(line)
body = []
for i in p.ins:
    if "ghost" in i.flags:
        continue
    if i.cls in ("label", "label2"):
        body.append(i.text)
    else:
        body.append("    " + i.text)
src = "\n".join(top) + f"""
.amdgcn_target "amdgcn-amd-amdhsa--gfx950"
.text
.globl {NAME}_kernel
.p2align 8
.type {NAME}_kernel,@function
{NAME}_kernel:
""" + "\n".join(body) + f"""
.section .rodata,"a"
.p2align 6
.amdhsa_kernel {NAME}_kernel
  .amdhsa_next_free_vgpr {NV + NACC}
  .amdhsa_next_free_sgpr {100 if STAMP else 64}
  .amdhsa_accum_offset {NV}
  .amdhsa_group_segment_fixed_size 0
  .amdhsa_kernarg_size 56
  .amdhsa_user_sgpr_count 2
  .amdhsa_user_sgpr_kernarg_segment_ptr 1
  .amdhsa_system_sgpr_workgroup_id_x 1
.end_amdhsa_kernel
"""
open(OUT, "w").write(src)
print("wrote", OUT, "instructions:", len(body), "auto nops:", p.nops_inserted, "lds", LDS_BYTES)
```

```python
import copy
import struct
import sys
from emit import Prog, Inst, vr, rng

NAME = "standalone__qk_norm__prompt"
OUT = sys.argv[1] if len(sys.argv) > 1 and not sys.argv[1].startswith("--") else f"cdna_kernels/{NAME}.s"
FLAGS = set(a for a in sys.argv[1:] if a.startswith("--"))
FORCE_GENERIC = "--generic" in FLAGS
STAMP = "--stamp" in FLAGS


def opt(name, default):
    for a in FLAGS:
        if a.startswith(f"--{name}="):
            return int(a.split("=")[1])
    return default


BAR_AT = opt("barat", 11)

TENSOR_BYTES = 2 * 32 * 2048 * 18 * 2
ROWB = 36
PAIR = 7168
BUF = 4 * PAIR
NBUF = 3
FLAG = NBUF * BUF
LDS_BYTES = FLAG + 64
CHUNKB = 256 * ROWB


def f32bits(x):
    return struct.unpack("<I", struct.pack("<f", x))[0]


def f16bits(x):
    return struct.unpack("<H", struct.pack("<e", x))[0]


LOG2E = 1.4426950408889634
MAGIC_A = f16bits(192.0) | (f16bits(220.0) << 16)
MAGIC_B = f16bits(192.0) | (f16bits(131.0) << 16)
T_MAX_BITS = 0x402F0000


def drow(d):
    if d < 10:
        r, h = d, 0
    else:
        r, h = d - 10, 1
    return 8 * (r // 4) + 4 * h + (r % 4)


USED_MASK32 = sum(1 << drow(d) for d in range(18))

S_Q, S_K, S_V, S_O = 16, 20, 24, 28
S_HEAD, S_QB, S_WAVE, S_T, S_KOFF, S_QOFF = 32, 33, 34, 35, 36, 37
S_TMP, S_TMP2 = 38, 39
S_BADM = 40
S_BAD = 42
S_QH = 43
S_HIMASK, S_EPS, S_CLS, S_THR, S_SOFF, S_CNT = 44, 45, 46, 47, 48, 49
S_WB, S_PB = 50, 51
S_W4 = 52
S_USED = 54

V_TID, V_LANE = 0, 1
V_GK, V_GV, V_GQ, V_L16 = 2, 3, 4, 5
V_CUR, V_NXT = 6, 7
V_WP0, V_WP1 = 8, 9
V_W0, V_W1, V_W2 = 10, 11, 12
V_C, V_FLAGV = 13, 14
V_EA0, V_EA1 = 15, 28
V_T0 = 16
GM = [29, 30]
QE = [32, 34]
QM0 = [36, 44]
QM1 = [40, 48]
KE = [52, 56]
KM = [60, 64]
VA = [68, 72]
VB = [76, 80]
P = 84
SB = [100, 132]
OA = [164, 180, 196, 212]
BE = 228
BI = 232
NV = 240
NACC = 0
RQ = [100, 112]
RAWK = 164
RAWV = 176
TD = 188
Y = 100
RAWK1, RAWV1 = 112, 124
GO = [132, 148]
UREG = 136

p = Prog()
t0, t1, t2, t3 = V_T0, V_T0 + 1, V_T0 + 2, V_T0 + 3
NSTAMP = [0]


def stamp():
    if STAMP:
        k = NSTAMP[0]
        NSTAMP[0] += 1
        p.salu(f"s_memtime s[{64 + 2 * k}:{65 + 2 * k}]")
        p.raw("s_waitcnt lgkmcnt(0)", "wait")
        p.lds_pend = []


def soft_label(name):
    p.ins.append(Inst(f"{name}:", "label2", ws=0))


def zero_ws(idx):
    for i in p.ins[idx:]:
        i.ws = 0


def load_rows(dst, voff, srd, soff, off=0):
    p.bload(4, dst, voff, srd, soff, off)
    p.bload(4, dst + 4, voff, srd, soff, off + 16)
    p.bload(1, dst + 8, voff, srd, soff, off + 32)


def load_v(dst, soff):
    p.bload(4, dst, V_GV, S_V, soff, 0)
    p.bload(4, dst + 4, V_GV, S_V, soff, 32 * ROWB)
    p.bload(1, dst + 8, V_GK, S_V, soff, 32)


def norm_row(x, scale_reg, check, dst, hooks=None):
    ops = []
    a, b = V_T0, V_T0 + 1
    for j in range(9):
        acc = a if j % 2 == 0 else b
        c = "0" if j < 2 else f"v{acc}"
        ops.append(lambda j=j, acc=acc, c=c: p.valu(f"v_dot2_f32_bf16 v{acc}, v{x + j}, v{x + j}, {c}", wr={acc},
                                                    rd={x + j}, flags=("dot", "dotc")))
    R = V_T0 + 2
    T = [V_T0 + 4, V_T0 + 6, V_T0 + 8, V_T0 + 10]

    def unpack(j):
        t = T[j % 4]
        ops.append(lambda: p.valu(f"v_lshlrev_b32 v{t}, 16, v{x + j}", wr={t}, rd={x + j}))
        ops.append(lambda: p.valu(f"v_and_b32 v{t + 1}, s{S_HIMASK}, v{x + j}", wr={t + 1}, rd={x + j},
                                  srd={S_HIMASK}))
    unpack(0)
    unpack(1)
    ops.append(lambda: p.valu(f"v_add_f32 v{a}, v{a}, v{b}", wr={a}, rd={a, b}))
    ops.append(lambda: p.trans(f"v_sqrt_f32 v{R}, v{a}", wr={R}, rd={a}))
    if check:
        ops.append(lambda: p.valu(f"v_cmp_class_f32 vcc, v{a}, s{S_CLS}", rd={a}, swr={"vcc"}, srd={S_CLS}))
    else:
        unpack(2)
    ops.append(lambda: p.valu(f"v_add_f32 v{R}, s{S_EPS}, v{R}", wr={R}, rd={R}, srd={S_EPS}))
    ops.append(lambda: p.trans(f"v_rcp_f32 v{R}, v{R}", wr={R}, rd={R}))
    if check:
        unpack(2)
        ops.append(lambda: p.salu(f"s_or_b64 s[{S_BADM}:{S_BADM + 1}], s[{S_BADM}:{S_BADM + 1}], vcc", srd={"vcc"}))
    if scale_reg is not None:
        ops.append(lambda: p.valu(f"v_mul_f32 v{R}, v{R}, v{scale_reg}", wr={R}, rd={R, scale_reg}))
    for j in range(9):
        t = T[j % 4]
        ops.append(lambda t=t: p.valu(f"v_pk_mul_f32 v[{t}:{t + 1}], v[{t}:{t + 1}], v[{R}:{R + 1}] op_sel_hi:[1,0]",
                                      wr={t, t + 1}, rd={t, t + 1, R}))
        if j + 3 < 9:
            unpack(j + 3)
        ops.append(lambda t=t, j=j: p.valu(f"v_cvt_pk_f16_f32 v{dst[j]}, v{t}, v{t + 1}", wr={dst[j]},
                                           rd={t, t + 1}))
    for n, f in enumerate(ops):
        if hooks and n in hooks:
            hooks[n]()
        f()


def norm_row_plain(x, dst, U, hooks=None):
    ops = []
    a, b = V_T0, V_T0 + 1
    R = V_T0 + 2
    for j in range(9):
        lo, hi = U + 2 * j, U + 2 * j + 1
        ops.append(lambda j=j, lo=lo: p.valu(f"v_lshlrev_b32 v{lo}, 16, v{x + j}", wr={lo}, rd={x + j}))
        ops.append(lambda j=j, hi=hi: p.valu(f"v_and_b32 v{hi}, s{S_HIMASK}, v{x + j}", wr={hi}, rd={x + j},
                                             srd={S_HIMASK}))
        for acc, u in ((a, lo), (b, hi)):
            if j == 0:
                ops.append(lambda acc=acc, u=u: p.valu(f"v_mul_f32 v{acc}, v{u}, v{u}", wr={acc}, rd={u}))
            else:
                ops.append(lambda acc=acc, u=u: p.valu(f"v_fmac_f32 v{acc}, v{u}, v{u}", wr={acc}, rd={u, acc}))
    ops.append(lambda: p.valu(f"v_add_f32 v{a}, v{a}, v{b}", wr={a}, rd={a, b}))
    ops.append(lambda: p.trans(f"v_sqrt_f32 v{R}, v{a}", wr={R}, rd={a}))
    ops.append(lambda: p.valu(f"v_cmp_class_f32 vcc, v{a}, s{S_CLS}", rd={a}, swr={"vcc"}, srd={S_CLS}))
    ops.append(lambda: p.valu(f"v_add_f32 v{R}, s{S_EPS}, v{R}", wr={R}, rd={R}, srd={S_EPS}))
    ops.append(lambda: p.trans(f"v_rcp_f32 v{R}, v{R}", wr={R}, rd={R}))
    ops.append(lambda: p.salu(f"s_or_b64 s[{S_BADM}:{S_BADM + 1}], s[{S_BADM}:{S_BADM + 1}], vcc", srd={"vcc"}))
    for j in range(9):
        lo, hi = U + 2 * j, U + 2 * j + 1
        ops.append(lambda lo=lo: p.valu(f"v_mul_f32 v{lo}, v{lo}, v{R}", wr={lo}, rd={lo, R}))
        ops.append(lambda hi=hi: p.valu(f"v_mul_f32 v{hi}, v{hi}, v{R}", wr={hi}, rd={hi, R}))
        ops.append(lambda j=j, lo=lo, hi=hi: p.valu(f"v_cvt_pk_f16_f32 v{dst[j]}, v{lo}, v{hi}", wr={dst[j]},
                                                    rd={lo, hi}))
    for n, f in enumerate(ops):
        if hooks and n in hooks:
            hooks[n]()
        f()


def T1(raw):
    p.mfma("v_mfma_f32_32x32x16_bf16", TD, 16, raw, 4, BI, 4, None, 8)


def T2(raw):
    p.mfma("v_mfma_f32_32x32x16_bf16", TD + 16, 16, raw + 4, 4, BI, 4, None, 8)


def T12(raw):
    T1(raw)
    T2(raw)


def T3(raw):
    p.mfma("v_mfma_f32_32x32x4_2b_bf16", TD, 32, raw + 8, 2, BE, 2, TD, 16)


def kv_compute(rawk, rawv, first, lead=0):
    hooks = {lead: lambda: T1(rawv), lead + 8: lambda: T2(rawv), lead + 18: lambda: T3(rawv)}
    norm_row_plain(rawk, [Y + j for j in range(9)], UREG, hooks=hooks)
    if first:
        m = V_T0
        p.valu(f"v_max_f32 v{m}, |v{TD}|, |v{TD + 1}|", wr={m}, rd={TD, TD + 1})
        for r in range(2, 32, 2):
            p.valu(f"v_max3_f32 v{m}, |v{TD + r}|, |v{TD + r + 1}|, v{m}", wr={m}, rd={TD + r, TD + r + 1, m})
        p.valu(f"v_cmp_gt_f32 vcc, s{S_THR}, v{m}", rd={m}, swr={"vcc"}, srd={S_THR})
        p.salu(f"s_and_b64 vcc, vcc, s[{S_USED}:{S_USED + 1}]", srd={"vcc"})
        p.salu(f"s_or_b64 s[{S_BADM}:{S_BADM + 1}], s[{S_BADM}:{S_BADM + 1}], vcc")
    for f in range(4):
        for j in range(4):
            r = TD + 8 * f + 2 * j
            d = TD + 8 * f + j
            p.valu(f"v_cvt_pk_f16_f32 v{d}, v{r}, v{r + 1}", wr={d}, rd={r, r + 1})


def kv_writes():
    w = [lambda: p.ds_write("ds_write_b128", V_W0, Y, 4, 0),
         lambda: p.ds_write("ds_write_b128", V_W0, Y + 4, 4, 512),
         lambda: p.ds_write("ds_write_b64", V_W1, Y + 8, 2, 2048),
         lambda: p.ds_write("ds_write_b64", V_W1, Y + 8, 2, 2048 + 512)]
    for f in range(4):
        w.append(lambda f=f: p.ds_write("ds_write_b128", V_W2, TD + 8 * f, 4, 3072 + 1024 * f))
    return w


def kv_loads(soff):
    return [lambda: p.bload(4, RAWV, V_GV, S_V, soff, 0),
            lambda: p.bload(4, RAWV + 4, V_GV, S_V, soff, 32 * ROWB),
            lambda: p.bload(1, RAWV + 8, V_GK, S_V, soff, 32),
            lambda: p.bload(4, RAWK, V_GK, S_K, soff, 0),
            lambda: p.bload(4, RAWK + 4, V_GK, S_K, soff, 16),
            lambda: p.bload(1, RAWK + 8, V_GK, S_K, soff, 32)]


def set_waddr(sbase):
    p.valu(f"v_add_u32 v{V_W0}, {sbase}, v{V_WP0}", wr={V_W0}, rd={V_WP0})
    p.valu(f"v_add_u32 v{V_W1}, {sbase}, v{V_WP1}", wr={V_W1}, rd={V_WP1})
    p.valu(f"v_add_u32 v{V_W2}, {sbase}, v{V_L16}", wr={V_W2}, rd={V_L16})


def q_prep(raw, hq, scale_reg, magic, check, hooks=None):
    dst = [QM0[hq] + j for j in range(4)] + [QM1[hq] + j for j in range(4)] + [QE[hq]]
    norm_row(raw, scale_reg, check, dst, hooks)
    p.valu(f"v_mov_b32 v{QE[hq] + 1}, 0x{magic:08x}", wr={QE[hq] + 1})
    for j in range(4):
        a, b = QM0[hq] + j, QM1[hq] + j
        p.valu(f"v_permlane32_swap_b32 v{a}, v{b}", wr={a, b}, rd={a, b}, flags=("permlane",))


if STAMP:
    p.salu("s_memrealtime s[60:61]")
stamp()
p.salu("s_cmp_ge_u32 s2, 256")
p.salu("s_cbranch_scc1 L_end")
p.salu("s_load_dwordx8 s[4:11], s[0:1], 0")
p.salu("s_load_dwordx2 s[12:13], s[0:1], 32")
p.valu(f"v_lshrrev_b32 v{t0}, 6, v{V_TID}", wr={t0}, rd={V_TID})
p.salu(f"s_and_b32 s{S_TMP}, s2, 7")
p.salu(f"s_lshr_b32 s{S_TMP2}, s2, 3")
p.valu(f"v_readfirstlane_b32 s{S_WAVE}, v{t0}", rd={t0}, swr={S_WAVE}, flags=("readlane",))
p.salu(f"s_and_b32 s{S_QB}, s{S_TMP2}, 3")
p.salu(f"s_lshr_b32 s{S_TMP2}, s{S_TMP2}, 2")
p.salu(f"s_lshl_b32 s{S_HEAD}, s{S_TMP}, 3")
p.salu(f"s_add_u32 s{S_HEAD}, s{S_HEAD}, s{S_TMP2}")
p.salu(f"s_mul_i32 s{S_KOFF}, s{S_HEAD}, {2048 * ROWB}")
p.salu(f"s_mul_i32 s{S_TMP}, s{S_QB}, {512 * ROWB}")
p.salu(f"s_add_u32 s{S_QOFF}, s{S_KOFF}, s{S_TMP}")
p.salu(f"s_and_b32 s{S_W4}, s{S_WAVE}, 3", srd={S_WAVE})
p.salu(f"s_mul_i32 s{S_TMP}, s{S_W4}, {128 * ROWB}")
p.salu(f"s_add_u32 s{S_QOFF}, s{S_QOFF}, s{S_TMP}")
p.valu(f"v_and_b32 v{V_LANE}, 63, v{V_TID}", wr={V_LANE}, rd={V_TID})
p.valu(f"v_and_b32 v{t0}, 0xff, v{V_TID}", wr={t0}, rd={V_TID})
p.valu(f"v_mul_u32_u24 v{V_GK}, {ROWB}, v{t0}", wr={V_GK}, rd={t0})
p.valu(f"v_mul_u32_u24 v{V_GQ}, {ROWB}, v{V_LANE}", wr={V_GQ}, rd={V_LANE})
p.valu(f"v_and_b32 v{t0}, 0xdf, v{V_TID}", wr={t0}, rd={V_TID})
p.valu(f"v_mul_u32_u24 v{V_GV}, {ROWB}, v{t0}", wr={V_GV}, rd={t0})
p.valu(f"v_lshrrev_b32 v{t1}, 5, v{V_LANE}", wr={t1}, rd={V_LANE})
p.valu(f"v_lshl_add_u32 v{V_GV}, v{t1}, 4, v{V_GV}", wr={V_GV}, rd={t1, V_GV})
p.salu(f"s_and_b32 s{S_TMP}, s{S_HEAD}, 30")
p.salu(f"s_lshl_b32 s{S_TMP}, s{S_TMP}, 1")
p.salu(f"s_add_u32 s{S_SOFF}, s{S_KOFF}, {CHUNKB}")
p.raw("s_waitcnt lgkmcnt(0)", "wait")
p.salu(f"s_load_dword s{S_T}, s[10:11], s{S_TMP}")
for srd, ptr in ((S_K, 6), (S_V, 8), (S_Q, 4), (S_O, 12)):
    p.salu(f"s_mov_b32 s{srd}, s{ptr}")
    p.salu(f"s_mov_b32 s{srd + 1}, s{ptr + 1}")
    p.salu(f"s_mov_b32 s{srd + 2}, {TENSOR_BYTES}")
    p.salu(f"s_mov_b32 s{srd + 3}, 0x00020000")


def consts():
    p.salu(f"s_mov_b32 s{S_HIMASK}, 0xffff0000")
    p.salu(f"s_mov_b32 s{S_EPS}, 0x{f32bits(1e-6):08x}")
    p.salu(f"s_mov_b32 s{S_CLS}, 0x207")
    p.salu(f"s_mov_b64 s[{S_BADM}:{S_BADM + 1}], 0")
    p.valu(f"v_mov_b32 v{V_FLAGV}, 0x{FLAG:x}", wr={V_FLAGV})


def ident():
    for i in range(4):
        p.valu(f"v_mov_b32 v{BI + i}, 0", wr={BI + i})
    p.valu(f"v_mov_b32 v{BE}, 0", wr={BE})
    p.valu(f"v_mov_b32 v{BE + 1}, 0", wr={BE + 1})
    p.salu(f"s_mov_b32 s{S_TMP}, 0x3f80")
    p.salu(f"s_mov_b32 s{S_TMP2}, 0x3f800000")
    for k in range(16):
        lane = (k // 8) * 32 + drow(k)
        i = (k % 8) // 2
        p.valu(f"v_writelane_b32 v{BI + i}, s{S_TMP if k % 2 == 0 else S_TMP2}, {lane}", wr={BI + i}, rd={BI + i})
    for col, reg, val in ((drow(16), BE, S_TMP), (drow(17), BE, S_TMP2), (18, BE + 1, S_TMP), (22, BE + 1, S_TMP)):
        for h in range(2):
            p.valu(f"v_writelane_b32 v{reg}, s{val}, {col + 32 * h}", wr={reg}, rd={reg})


def t_check(target):
    p.raw("s_waitcnt lgkmcnt(0)", "wait")
    p.salu(f"s_lshl_b32 s{S_TMP}, s{S_T}, 16")
    p.salu(f"s_and_b32 s{S_TMP2}, s{S_T}, 0xffff0000")
    p.salu(f"s_bitcmp1_b32 s{S_HEAD}, 0")
    p.salu(f"s_cselect_b32 s{S_T}, s{S_TMP2}, s{S_TMP}")
    p.valu(f"v_mov_b32 v{V_C}, 0x{f32bits(LOG2E):08x}", wr={V_C})
    p.valu(f"v_mul_f32 v{V_C}, s{S_T}, v{V_C}", wr={V_C}, rd={V_C})
    p.salu(f"s_and_b32 s{S_TMP}, s{S_T}, 0x7fffffff")
    if FORCE_GENERIC:
        p.salu(f"s_branch {target}")
    else:
        p.salu(f"s_cmp_gt_u32 s{S_TMP}, 0x{T_MAX_BITS:x}")
        p.salu(f"s_cbranch_scc1 {target}")


p.salu(f"s_cmp_ge_u32 s{S_WAVE}, 4")
p.salu("s_cbranch_scc1 L_producer")

load_rows(RQ[0], V_GQ, S_Q, f"s{S_QOFF}")
load_rows(RQ[1], V_GQ, S_Q, f"s{S_QOFF}", 64 * ROWB)
consts()
p.valu(f"v_lshlrev_b32 v{V_CUR}, 4, v{V_LANE}", wr={V_CUR}, rd={V_LANE})
p.valu(f"v_add_u32 v{V_NXT}, 0x{BUF:x}, v{V_CUR}", wr={V_NXT}, rd={V_CUR})
p.valu(f"v_and_b32 v{t0}, 31, v{V_LANE}", wr={t0}, rd={V_LANE})
p.valu(f"v_mul_u32_u24 v{t2}, {ROWB}, v{t0}", wr={t2}, rd={t0})
p.valu(f"v_mul_u32_u24 v{V_EA0}, 20, v{t1}", wr={V_EA0}, rd={t1})
p.valu(f"v_add_u32 v{V_EA0}, v{V_EA0}, v{t2}", wr={V_EA0}, rd={V_EA0, t2})
p.valu(f"v_lshl_add_u32 v{V_EA1}, v{t1}, 30, v{t2}", wr={V_EA1}, rd={t1, t2})
for r in list(range(OA[0], OA[0] + 64)) + list(range(P + 12, P + 16)) + list(range(VB[1], VB[1] + 4)):
    p.valu(f"v_mov_b32 v{r}, 0", wr={r})
t_check("L_generic")
stamp()
q_prep(RQ[0], 0, V_C, MAGIC_B, True)
q_prep(RQ[1], 1, V_C, MAGIC_B, True)
stamp()
p.raw("s_barrier", "salu")
stamp()

F16 = "v_mfma_f32_32x32x16_f16"


def taddr(j):
    return (V_CUR if j < 8 else V_NXT), ((j % 8) // 2) * PAIR, j % 2


def rd_km(j):
    a, o, tp = taddr(j)
    p.ds_read("ds_read_b128", KM[j % 2], 4, a, o + 1024 * tp)


def rd_ke(j):
    a, o, tp = taddr(j)
    assert tp == 0
    p.ds_read("ds_read_b128", KE[(j // 2) % 2], 4, a, o + 2048)


def rd_va(j):
    a, o, tp = taddr(j)
    p.ds_read("ds_read_b128", VA[j % 2], 4, a, o + 3072 + 2048 * tp)


def rd_vb(j):
    a, o, tp = taddr(j)
    p.ds_read("ds_read_b128", VB[j % 2], 4, a, o + 4096 + 2048 * tp)


def M1(m):
    p.mfma(F16, SB[m % 2], 16, KM[(m // 2) % 2], 4, QM0[m % 2], 4, None, 8)


def M2(m):
    p.mfma(F16, SB[m % 2] + 16, 16, KM[(m // 2) % 2], 4, QM1[m % 2], 4, None, 8)


def M3(m):
    j = m // 2
    p.mfma("v_mfma_f32_32x32x4_2b_f16", SB[m % 2], 32, KE[(j // 2) % 2] + 2 * (j % 2), 2, QE[m % 2], 2, SB[m % 2], 16)


def PV(which, m):
    j = m // 2
    o = OA[2 * (m % 2) + (0 if which <= 2 else 1)]
    v = VA[j % 2] if which % 2 == 1 else VB[j % 2]
    p.mfma(F16, o, 16, v, 4, P + 4 * (which - 1), 4, o, 8)


def G(g, m, mid=None):
    s = SB[m % 2] + 4 * g
    d = P + 2 * g
    p.trans(f"v_exp_f16 v{d}, v{s}", wr={d}, rd={s})
    p.trans(f"v_exp_f16 v{d + 1}, v{s + 2}", wr={d + 1}, rd={s + 2})
    p.trans(f"v_exp_f16_sdwa v{d}, v{s + 1} dst_sel:WORD_1 dst_unused:UNUSED_PRESERVE src0_sel:WORD_0",
            wr={d}, rd={s + 1, d}, flags=("sdwa",))
    if mid:
        mid()
    p.trans(f"v_exp_f16_sdwa v{d + 1}, v{s + 3} dst_sel:WORD_1 dst_unused:UNUSED_PRESERVE src0_sel:WORD_0",
            wr={d + 1}, rd={s + 3, d + 1}, flags=("sdwa",))


PREP_AT = opt("prepat", 5)


def chunk_body(tag):
    extra = []

    def X():
        if extra:
            extra.pop(0)()

    for m in range(16):
        j = m // 2
        G(0, m)
        M2(m + 1)
        if m % 2 == 0:
            if "--latewait" not in FLAGS:
                p.wait_lds(0)
            rd_km(j + 2)
            if j % 2 == 0:
                rd_ke(j + 2)
        else:
            X()
        G(1, m)
        PV(4, m - 1)
        if m % 2 == 0:
            rd_vb(j + 1)
            rd_va(j + 1)
        else:
            X()
        G(2, m)
        PV(1, m)
        X()
        G(3, m, mid=lambda: M3(m + 1))
        X()
        G(4, m)
        X()
        G(5, m)
        PV(2, m)
        X()
        G(6, m)
        M1(m + 2)
        X()
        G(7, m)
        PV(3, m)
        X()
        if m == BAR_AT:
            assert not extra
            assert all(x is not None for x in p.lds_pend), "prep writes must have been retired"
            p.salu(f"s_cmp_ge_u32 s{S_CNT}, 7")
            p.salu(f"s_cbranch_scc1 L_nobar_{tag}")
            idx = len(p.ins)
            if "--nobar" not in FLAGS:
                p.raw("s_barrier", "salu")
            soft_label(f"L_nobar_{tag}")
            zero_ws(idx)
    p.salu(f"s_add_u32 s{S_WB}, s{S_WB}, {BUF}")
    p.salu(f"s_cmp_ge_u32 s{S_WB}, {NBUF * BUF}")
    p.salu(f"s_cselect_b32 s{S_WB}, 0, s{S_WB}")
    p.valu(f"v_mov_b32 v{V_CUR}, v{V_NXT}", wr={V_CUR}, rd={V_NXT})
    p.valu(f"v_lshl_add_u32 v{V_NXT}, v{V_LANE}, 4, s{S_WB}", wr={V_NXT}, rd={V_LANE})
    p.salu(f"s_add_u32 s{S_CNT}, s{S_CNT}, 1")
    p.vm_pend = []


assert BAR_AT <= 11
p.salu(f"s_mov_b32 s{S_CNT}, 0")
p.salu(f"s_mov_b32 s{S_WB}, {BUF}")
rd_km(0)
rd_ke(0)
rd_km(1)
rd_vb(0)
rd_va(0)
M1(0)
M2(0)
M1(1)
M3(0)
p.wait_lds(0)
p.nop(18)

saved = (p.ins, p.nops_inserted)
p.ins = []
p.lds_pend = []
p.vm_pend = []
chunk_body("d")
tail = p.ins[-60:]
steady = list(p.lds_pend)
p.ins, p.nops_inserted = saved
p.ins.append(Inst(".p2align 6", "other", ws=0))
p.label("L_loop")
for i in tail:
    g = copy.copy(i)
    g.flags = set(g.flags) | {"ghost"}
    p.ins.append(g)
p.lds_pend = list(steady)
p.vm_pend = []
chunk_body("A")
assert [sorted(x) for x in p.lds_pend] == [sorted(x) for x in steady], (p.lds_pend, steady)
p.salu(f"s_cmp_lt_u32 s{S_CNT}, 8")
p.salu("s_cbranch_scc1 L_loop")
PV(4, 15)
stamp()
p.ds_read("ds_read_b32", V_FLAGV, 1, V_FLAGV, 0)


def epilogue(o_regs, soff, off0, ybase):
    for ti, o in enumerate(o_regs):
        R = V_T0 + 4 + 2 * ti
        y = ybase + 8 * ti
        p.trans(f"v_rcp_f32 v{R}, v{o + 10}", wr={R}, rd={o + 10})
        for j in range(5):
            p.valu(f"v_pk_mul_f32 v[{o + 2 * j}:{o + 2 * j + 1}], v[{o + 2 * j}:{o + 2 * j + 1}], v[{R}:{R + 1}] op_sel_hi:[1,0]",
                   wr={o + 2 * j, o + 2 * j + 1}, rd={o + 2 * j, o + 2 * j + 1, R})
        for j in range(5):
            p.valu(f"v_cvt_pk_bf16_f32 v{y + j}, v{o + 2 * j}, v{o + 2 * j + 1}", wr={y + j},
                   rd={o + 2 * j, o + 2 * j + 1})
        p.bstore(4, y, V_EA0, S_O, soff, off0 + ti * 32 * ROWB)
        p.bstore(1, y + 4, V_EA1, S_O, soff, off0 + ti * 32 * ROWB + 16)


o = OA[0]
p.valu(f"v_add_f32 v{t0}, |v{o}|, |v{o + 1}|", wr={t0}, rd={o, o + 1})
for r in range(2, 10):
    p.valu(f"v_add_f32 v{t0}, |v{o + r}|, v{t0}", wr={t0}, rd={o + r, t0})
p.valu(f"v_cmp_class_f32 vcc, v{t0}, s{S_CLS}", rd={t0}, swr={"vcc"}, srd={S_CLS})
p.valu(f"v_readfirstlane_b32 s{S_BAD}, v{V_FLAGV}", rd={V_FLAGV}, swr={S_BAD}, flags=("readlane",))
p.salu(f"s_or_b64 s[{S_BADM}:{S_BADM + 1}], s[{S_BADM}:{S_BADM + 1}], vcc", srd={"vcc"})
p.salu(f"s_or_b32 s{S_BAD}, s{S_BAD}, s{S_BADM}", srd={S_BAD})
p.salu(f"s_or_b32 s{S_BAD}, s{S_BAD}, s{S_BADM + 1}")
p.salu("s_cbranch_scc1 L_generic")
epilogue(OA[0:2], f"s{S_QOFF}", 0, P)
epilogue(OA[2:4], f"s{S_QOFF}", 64 * ROWB, KE[0])
if STAMP:
    stamp()
    p.salu("s_memrealtime s[62:63]")
    p.salu(f"s_load_dwordx2 s[56:57], s[0:1], {40 if '--dbgstamp' in FLAGS else 48}")
    p.raw("s_waitcnt lgkmcnt(0)", "wait")
    k = NSTAMP[0]
    NSTAMP[0] += 2
    p.salu(f"s_sub_u32 s{64 + 2 * k}, s62, s60")
    p.salu(f"s_add_u32 s{64 + 2 * k}, s{64 + 2 * k}, s64")
    p.salu(f"s_add_u32 s{66 + 2 * k}, s60, s64")
    p.salu("s_mov_b32 s58, 0x1000000")
    p.salu("s_mov_b32 s59, 0x00020000")
    p.valu(f"v_mov_b32 v{t2}, 0", wr={t2})
    for k in range(NSTAMP[0]):
        p.salu(f"s_sub_u32 s{S_TMP}, s{64 + 2 * k}, s64")
        p.valu(f"v_mov_b32 v{t1}, s{S_TMP}", wr={t1})
        p.valu(f"v_cmp_eq_u32 vcc, {k}, v{V_LANE}", rd={V_LANE}, swr={"vcc"})
        p.valu(f"v_cndmask_b32 v{t2}, v{t2}, v{t1}, vcc", wr={t2}, rd={t2, t1}, srd={"vcc"})
    if "--dbgstamp" in FLAGS:
        p.salu("s_mov_b32 s58, 64")
        p.salu(f"s_lshl_b32 s{S_TMP}, s2, 3")
        p.salu(f"s_add_u32 s{S_TMP}, s{S_TMP}, s{S_WAVE}")
        p.salu(f"s_mov_b32 s{S_TMP2}, 0x1000")
        p.salu(f"s_cmp_eq_u32 s{S_TMP}, {5 * 8}")
        p.salu(f"s_cselect_b32 s{S_TMP2}, 0, s{S_TMP2}")
        p.salu(f"s_cmp_eq_u32 s{S_TMP}, {200 * 8 + 3}")
        p.salu(f"s_cselect_b32 s{S_TMP2}, 32, s{S_TMP2}")
        p.valu(f"v_lshlrev_b32 v{t1}, 2, v{V_LANE}", wr={t1}, rd={V_LANE})
        p.valu(f"v_cmp_lt_u32 vcc, 7, v{V_LANE}", rd={V_LANE}, swr={"vcc"})
        p.valu(f"v_mov_b32 v{t3}, 0x1000", wr={t3})
        p.valu(f"v_cndmask_b32 v{t1}, v{t1}, v{t3}, vcc", wr={t1}, rd={t1, t3}, srd={"vcc"})
        p.valu(f"v_add_u32 v{t1}, s{S_TMP2}, v{t1}", wr={t1}, rd={t1})
        p.bstore(1, t2, t1, 56, "0", 0)
    else:
        p.valu(f"v_mov_b32 v{t1}, s2", wr={t1})
        p.valu(f"v_lshlrev_b32 v{t1}, 9, v{t1}", wr={t1}, rd={t1})
        p.valu(f"v_add_u32 v{t1}, v{t1}, v{V_TID}", wr={t1}, rd={t1, V_TID})
        p.valu(f"v_lshlrev_b32 v{t1}, 2, v{t1}", wr={t1}, rd={t1})
        p.bstore(1, t2, t1, 56, "0", 0)
p.label("L_end")
p.salu("s_endpgm")

p.label("L_producer")
p.lds_pend = []
p.vm_pend = []
p.salu(f"s_setprio {opt('pprio', 3)}")
load_v(RAWV1, f"s{S_KOFF}")
load_rows(RAWK1, V_GK, S_K, f"s{S_KOFF}")
consts()
p.salu(f"s_mov_b32 s{S_THR}, 0x{f32bits(2.0 ** -9):08x}")
p.salu(f"s_mov_b32 s{S_USED}, 0x{USED_MASK32:08x}")
p.salu(f"s_mov_b32 s{S_USED + 1}, 0x{USED_MASK32:08x}")
p.salu(f"s_mul_i32 s{S_PB}, s{S_W4}, {PAIR}")
p.valu(f"v_lshrrev_b32 v{t1}, 5, v{V_LANE}", wr={t1}, rd={V_LANE})
p.valu(f"v_lshl_add_u32 v{V_L16}, v{V_LANE}, 4, s{S_PB}", wr={V_L16}, rd={V_LANE})
p.valu(f"v_and_b32 v{t0}, 31, v{V_LANE}", wr={t0}, rd={V_LANE})
p.valu(f"v_lshl_add_u32 v{t2}, v{t0}, 4, s{S_PB}", wr={t2}, rd={t0})
p.valu(f"v_lshl_add_u32 v{V_WP0}, v{t1}, 10, v{t2}", wr={V_WP0}, rd={t1, t2})
p.valu(f"v_lshl_add_u32 v{V_WP1}, v{t1}, 3, v{t2}", wr={V_WP1}, rd={t1, t2})
ident()
p.valu(f"v_mov_b32 v{RAWV + 9}, 0x3f80", wr={RAWV + 9})
p.valu(f"v_mov_b32 v{RAWV1 + 9}, 0x3f80", wr={RAWV1 + 9})
p.valu(f"v_mov_b32 v{Y + 9}, 0x{MAGIC_A:08x}", wr={Y + 9})
p.valu(f"v_mov_b32 v{t1}, 0", wr={t1})
t_check("L_end2")
p.ds_write("ds_write_b32", V_FLAGV, t1, 1, 0)
set_waddr("0")
kv_compute(RAWK1, RAWV1, True)
for f in kv_writes():
    f()
for f in kv_loads(f"s{S_SOFF}"):
    f()
p.wait_lds(0)
p.raw("s_barrier", "salu")
p.salu(f"s_mov_b32 s{S_CNT}, 1")
p.salu(f"s_mov_b32 s{S_WB}, {BUF}")
p.nop(4)
p.label("L_ploop")
set_waddr(f"s{S_WB}")
p.wait_vm(0)
kv_compute(RAWK, RAWV, False)
p.salu(f"s_add_u32 s{S_SOFF}, s{S_SOFF}, {CHUNKB}")
p.salu(f"s_cmp_ge_u32 s{S_CNT}, 7")
p.salu("s_cbranch_scc1 L_plast")
idx = len(p.ins)
for f in kv_loads(f"s{S_SOFF}"):
    f()
for f in kv_writes():
    f()
p.wait_lds(0)
p.raw("s_barrier", "salu")
p.salu(f"s_add_u32 s{S_WB}, s{S_WB}, {BUF}")
p.salu(f"s_cmp_ge_u32 s{S_WB}, {NBUF * BUF}")
p.salu(f"s_cselect_b32 s{S_WB}, 0, s{S_WB}")
p.salu(f"s_add_u32 s{S_CNT}, s{S_CNT}, 1")
p.salu("s_branch L_ploop")
soft_label("L_plast")
zero_ws(idx)
p.vm_pend = []
p.lds_pend = []
for f in kv_writes():
    f()
p.salu(f"s_or_b32 s{S_BAD}, s{S_BADM}, s{S_BADM + 1}")
p.valu(f"v_mov_b32 v{t1}, s{S_BAD}", wr={t1})
p.ds_write("ds_or_b32", V_FLAGV, t1, 1, 0)
p.wait_lds(0)
p.raw("s_barrier", "salu")
p.label("L_end2")
p.salu("s_endpgm")

p.label("L_generic")
p.flush()
p.valu(f"v_mul_u32_u24 v{V_GK}, {ROWB}, v{V_LANE}", wr={V_GK}, rd={V_LANE})
p.valu(f"v_and_b32 v{t0}, 31, v{V_LANE}", wr={t0}, rd={V_LANE})
p.valu(f"v_mul_u32_u24 v{V_GV}, {ROWB}, v{t0}", wr={V_GV}, rd={t0})
p.valu(f"v_lshrrev_b32 v{t1}, 5, v{V_LANE}", wr={t1}, rd={V_LANE})
p.valu(f"v_lshl_add_u32 v{V_GV}, v{t1}, 4, v{V_GV}", wr={V_GV}, rd={t1, V_GV})
p.valu(f"v_mov_b32 v{RAWV + 9}, 0x3f80", wr={RAWV + 9})
ident()
p.salu(f"s_mov_b32 s{S_QH}, 0")
p.flush()
p.label("L_g_half")
load_rows(RAWK, V_GQ, S_Q, f"s{S_QOFF}")
q_prep(RAWK, 0, None, 0, False)
for o in GO:
    for r in range(16):
        p.valu(f"v_mov_b32 v{o + r}, 0", wr={o + r})
for g in GM:
    p.valu(f"v_mov_b32 v{g}, 0xff7fffff", wr={g})
p.salu(f"s_mov_b32 s{S_SOFF}, s{S_KOFF}")
p.salu(f"s_mov_b32 s{S_CNT}, 0")
p.flush()
p.label("L_g_pair")
load_rows(RAWK, V_GK, S_K, f"s{S_SOFF}")
load_v(RAWV, f"s{S_SOFF}")
norm_row(RAWK, None, False, [KM[0] + j for j in range(4)] + [KM[1] + j for j in range(4)] + [KE[0]])
p.valu(f"v_mov_b32 v{KE[0] + 2}, v{KE[0]}", wr={KE[0] + 2}, rd={KE[0]})
p.valu(f"v_mov_b32 v{KE[0] + 1}, 0", wr={KE[0] + 1})
p.valu(f"v_mov_b32 v{KE[0] + 3}, 0", wr={KE[0] + 3})
for j in range(4):
    a, b = KM[0] + j, KM[1] + j
    p.valu(f"v_permlane32_swap_b32 v{a}, v{b}", wr={a, b}, rd={a, b}, flags=("permlane",))
p.valu(f"v_permlane32_swap_b32 v{KE[0]}, v{KE[0] + 2}", wr={KE[0], KE[0] + 2}, rd={KE[0], KE[0] + 2},
       flags=("permlane",))
T12(RAWV)
T3(RAWV)
FR = [VA[0], VB[0], VA[1], VB[1]]
for f in range(4):
    for j in range(4):
        r = TD + 8 * f + 2 * j
        p.valu(f"v_cvt_pk_bf16_f32 v{FR[f] + j}, v{r}, v{r + 1}", wr={FR[f] + j}, rd={r, r + 1})
BF = "v_mfma_f32_32x32x16_bf16"
for tau in range(2):
    M1(2 * tau)
    M2(2 * tau)
    M3(2 * tau)
    S = SB[0]
    for ti, o in enumerate(GO):
        s = S + 16 * ti
        m = GM[ti]
        for r in range(16):
            p.valu(f"v_mul_f32 v{s + r}, v{s + r}, v{V_C}", wr={s + r}, rd={s + r, V_C})
        p.valu(f"v_max_f32 v{t0}, v{s}, v{s + 1}", wr={t0}, rd={s, s + 1})
        for r in range(2, 16, 2):
            p.valu(f"v_max3_f32 v{t0}, v{s + r}, v{s + r + 1}, v{t0}", wr={t0}, rd={s + r, s + r + 1, t0})
        p.valu(f"v_mov_b32 v{t1}, v{t0}", wr={t1}, rd={t0})
        p.valu(f"v_permlane32_swap_b32 v{t0}, v{t1}", wr={t0, t1}, rd={t0, t1}, flags=("permlane",))
        p.nop(2)
        p.valu(f"v_max3_f32 v{t0}, v{t0}, v{t1}, v{m}", wr={t0}, rd={t0, t1, m})
        p.valu(f"v_sub_f32 v{t1}, v{m}, v{t0}", wr={t1}, rd={m, t0})
        p.trans(f"v_exp_f32 v{t1}, v{t1}", wr={t1}, rd={t1})
        p.valu(f"v_mov_b32 v{m}, v{t0}", wr={m}, rd={t0})
        for r in range(16):
            p.valu(f"v_mul_f32 v{o + r}, v{o + r}, v{t1}", wr={o + r}, rd={o + r, t1})
        for r in range(16):
            p.valu(f"v_sub_f32 v{s + r}, v{s + r}, v{t0}", wr={s + r}, rd={s + r, t0})
        for r in range(16):
            p.trans(f"v_exp_f32 v{s + r}, v{s + r}", wr={s + r}, rd={s + r})
        for r in range(8):
            p.valu(f"v_cvt_pk_bf16_f32 v{P + 8 * ti + r}, v{s + 2 * r}, v{s + 2 * r + 1}", wr={P + 8 * ti + r},
                   rd={s + 2 * r, s + 2 * r + 1})
        p.mfma(BF, o, 16, VA[tau], 4, P + 8 * ti, 4, o, 8)
        p.mfma(BF, o, 16, VB[tau], 4, P + 8 * ti + 4, 4, o, 8)
p.flush()
p.salu(f"s_add_u32 s{S_SOFF}, s{S_SOFF}, {64 * ROWB}")
p.salu(f"s_add_u32 s{S_CNT}, s{S_CNT}, 1")
p.salu(f"s_cmp_lt_u32 s{S_CNT}, 32")
p.salu("s_cbranch_scc1 L_g_pair")
epilogue(GO, f"s{S_QOFF}", 0, P)
p.flush()
p.salu(f"s_add_u32 s{S_QOFF}, s{S_QOFF}, {64 * ROWB}")
p.salu(f"s_add_u32 s{S_QH}, s{S_QH}, 1")
p.salu(f"s_cmp_lt_u32 s{S_QH}, 2")
p.salu("s_cbranch_scc1 L_g_half")
p.salu("s_endpgm")

hdr = open(f"cdna_kernels/{NAME}.s.ref").read().split("\n")
top = []
for line in hdr:
    if line.startswith("; @launch"):
        top.append(f"; @launch grid=(256,1,1) block=(512,1,1) lds={LDS_BYTES}")
        break
    top.append(line)
body = []
for i in p.ins:
    if "ghost" in i.flags:
        continue
    if i.cls in ("label", "label2"):
        body.append(i.text)
    else:
        body.append("    " + i.text)
src = "\n".join(top) + f"""
.amdgcn_target "amdgcn-amd-amdhsa--gfx950"
.text
.globl {NAME}_kernel
.p2align 8
.type {NAME}_kernel,@function
{NAME}_kernel:
""" + "\n".join(body) + f"""
.section .rodata,"a"
.p2align 6
.amdhsa_kernel {NAME}_kernel
  .amdhsa_next_free_vgpr {NV + NACC}
  .amdhsa_next_free_sgpr {100 if STAMP else 64}
  .amdhsa_accum_offset {NV}
  .amdhsa_group_segment_fixed_size 0
  .amdhsa_kernarg_size 56
  .amdhsa_user_sgpr_count 2
  .amdhsa_user_sgpr_kernarg_segment_ptr 1
  .amdhsa_system_sgpr_workgroup_id_x 1
.end_amdhsa_kernel
"""
open(OUT, "w").write(src)
print("wrote", OUT, "instructions:", len(body), "auto nops:", p.nops_inserted, "lds", LDS_BYTES)
```

```python
import copy
import struct
import sys
from emit import Prog, Inst, vr, rng

NAME = "standalone__qk_norm__prompt"
OUT = sys.argv[1] if len(sys.argv) > 1 and not sys.argv[1].startswith("--") else f"cdna_kernels/{NAME}.s"
FLAGS = set(a for a in sys.argv[1:] if a.startswith("--"))
FORCE_GENERIC = "--generic" in FLAGS
STAMP = "--stamp" in FLAGS


def opt(name, default):
    for a in FLAGS:
        if a.startswith(f"--{name}="):
            return int(a.split("=")[1])
    return default


BAR_AT = opt("barat", 9)

TENSOR_BYTES = 2 * 32 * 2048 * 18 * 2
ROWB = 36
PAIR = 7168
BUF = 4 * PAIR
NBUF = 3
FLAG = NBUF * BUF
LDS_BYTES = FLAG + 64
CHUNKB = 256 * ROWB


def f32bits(x):
    return struct.unpack("<I", struct.pack("<f", x))[0]


def f16bits(x):
    return struct.unpack("<H", struct.pack("<e", x))[0]


LOG2E = 1.4426950408889634
MAGIC_A = f16bits(192.0) | (f16bits(220.0) << 16)
MAGIC_B = f16bits(192.0) | (f16bits(131.0) << 16)
T_MAX_BITS = 0x402F0000


def drow(d):
    if d < 10:
        r, h = d, 0
    else:
        r, h = d - 10, 1
    return 8 * (r // 4) + 4 * h + (r % 4)


USED_MASK32 = sum(1 << drow(d) for d in range(18))

S_Q, S_K, S_V, S_O = 16, 20, 24, 28
S_HEAD, S_QB, S_WAVE, S_T, S_KOFF, S_QOFF = 32, 33, 34, 35, 36, 37
S_TMP, S_TMP2 = 38, 39
S_BADM = 40
S_BAD = 42
S_QH = 43
S_HIMASK, S_EPS, S_CLS, S_THR, S_SOFF, S_CNT = 44, 45, 46, 47, 48, 49
S_WB, S_PB = 50, 51
S_W4 = 52
S_USED = 54
S_M1, S_M2 = 56, 58

V_TID, V_LANE = 0, 1
V_GK, V_GV, V_GQ, V_L16 = 2, 3, 4, 5
V_CUR, V_NXT = 6, 7
V_WP0, V_WP1 = 8, 9
V_W0, V_W1, V_W2 = 10, 11, 12
V_C, V_FLAGV = 13, 14
V_EA0, V_EA1 = 15, 28
V_T0 = 16
GM = [29, 30]
V_PF = 31
PF_LAST = 0x2180
QE = [32, 34]
QM0 = [36, 44]
QM1 = [40, 48]
KE = [52, 56]
KM = [60, 64]
VA = [68, 72]
VB = [76, 80]
P = 84
SB = [100, 132]
OA = [164, 180, 196, 212]
BE = 228
BI = 232
NV = 240
NACC = 0
RQ = [100, 112]
RAWK = 164
RAWV = 176
TD = 188
Y = 100
RAWK1, RAWV1 = 112, 124
GO = [132, 148]
UREG = 136
GREG = 156
PK = 32
I4 = 160

p = Prog()
t0, t1, t2, t3 = V_T0, V_T0 + 1, V_T0 + 2, V_T0 + 3
NSTAMP = [0]


def stamp():
    if STAMP:
        k = NSTAMP[0]
        NSTAMP[0] += 1
        p.salu(f"s_memtime s[{64 + 2 * k}:{65 + 2 * k}]")
        p.raw("s_waitcnt lgkmcnt(0)", "wait")
        p.lds_pend = []


def soft_label(name):
    p.ins.append(Inst(f"{name}:", "label2", ws=0))


def zero_ws(idx):
    for i in p.ins[idx:]:
        i.ws = 0


def load_rows(dst, voff, srd, soff, off=0):
    p.bload(4, dst, voff, srd, soff, off)
    p.bload(4, dst + 4, voff, srd, soff, off + 16)
    p.bload(1, dst + 8, voff, srd, soff, off + 32)


def load_v(dst, soff):
    p.bload(4, dst, V_GV, S_V, soff, 0)
    p.bload(4, dst + 4, V_GV, S_V, soff, 32 * ROWB)
    p.bload(1, dst + 8, V_GK, S_V, soff, 32)


def norm_row(x, scale_reg, check, dst, hooks=None):
    ops = []
    a, b = V_T0, V_T0 + 1
    for j in range(9):
        acc = a if j % 2 == 0 else b
        c = "0" if j < 2 else f"v{acc}"
        ops.append(lambda j=j, acc=acc, c=c: p.valu(f"v_dot2_f32_bf16 v{acc}, v{x + j}, v{x + j}, {c}", wr={acc},
                                                    rd={x + j}, flags=("dot", "dotc")))
    R = V_T0 + 2
    T = [V_T0 + 4, V_T0 + 6, V_T0 + 8, V_T0 + 10]

    def unpack(j):
        t = T[j % 4]
        ops.append(lambda: p.valu(f"v_lshlrev_b32 v{t}, 16, v{x + j}", wr={t}, rd={x + j}))
        ops.append(lambda: p.valu(f"v_and_b32 v{t + 1}, s{S_HIMASK}, v{x + j}", wr={t + 1}, rd={x + j},
                                  srd={S_HIMASK}))
    unpack(0)
    unpack(1)
    ops.append(lambda: p.valu(f"v_add_f32 v{a}, v{a}, v{b}", wr={a}, rd={a, b}))
    ops.append(lambda: p.trans(f"v_sqrt_f32 v{R}, v{a}", wr={R}, rd={a}))
    if check:
        ops.append(lambda: p.valu(f"v_cmp_class_f32 vcc, v{a}, s{S_CLS}", rd={a}, swr={"vcc"}, srd={S_CLS}))
    else:
        unpack(2)
    ops.append(lambda: p.valu(f"v_add_f32 v{R}, s{S_EPS}, v{R}", wr={R}, rd={R}, srd={S_EPS}))
    ops.append(lambda: p.trans(f"v_rcp_f32 v{R}, v{R}", wr={R}, rd={R}))
    if check:
        unpack(2)
        ops.append(lambda: p.salu(f"s_or_b64 s[{S_BADM}:{S_BADM + 1}], s[{S_BADM}:{S_BADM + 1}], vcc", srd={"vcc"}))
    if scale_reg is not None:
        ops.append(lambda: p.valu(f"v_mul_f32 v{R}, v{R}, v{scale_reg}", wr={R}, rd={R, scale_reg}))
    for j in range(9):
        t = T[j % 4]
        ops.append(lambda t=t: p.valu(f"v_pk_mul_f32 v[{t}:{t + 1}], v[{t}:{t + 1}], v[{R}:{R + 1}] op_sel_hi:[1,0]",
                                      wr={t, t + 1}, rd={t, t + 1, R}))
        if j + 3 < 9:
            unpack(j + 3)
        ops.append(lambda t=t, j=j: p.valu(f"v_cvt_pk_f16_f32 v{dst[j]}, v{t}, v{t + 1}", wr={dst[j]},
                                           rd={t, t + 1}))
    for n, f in enumerate(ops):
        if hooks and n in hooks:
            hooks[n]()
        f()


def norm_row_plain(x, dst, U, hooks=None):
    ops = []
    a, b = V_T0, V_T0 + 1
    R = V_T0 + 2
    for j in range(9):
        lo, hi = U + 2 * j, U + 2 * j + 1
        ops.append(lambda j=j, lo=lo: p.valu(f"v_lshlrev_b32 v{lo}, 16, v{x + j}", wr={lo}, rd={x + j}))
        ops.append(lambda j=j, hi=hi: p.valu(f"v_and_b32 v{hi}, s{S_HIMASK}, v{x + j}", wr={hi}, rd={x + j},
                                             srd={S_HIMASK}))
        for acc, u in ((a, lo), (b, hi)):
            if j == 0:
                ops.append(lambda acc=acc, u=u: p.valu(f"v_mul_f32 v{acc}, v{u}, v{u}", wr={acc}, rd={u}))
            else:
                ops.append(lambda acc=acc, u=u: p.valu(f"v_fmac_f32 v{acc}, v{u}, v{u}", wr={acc}, rd={u, acc}))
    ops.append(lambda: p.valu(f"v_add_f32 v{a}, v{a}, v{b}", wr={a}, rd={a, b}))
    ops.append(lambda: p.trans(f"v_sqrt_f32 v{R}, v{a}", wr={R}, rd={a}))
    ops.append(lambda: p.valu(f"v_cmp_class_f32 vcc, v{a}, s{S_CLS}", rd={a}, swr={"vcc"}, srd={S_CLS}))
    ops.append(lambda: p.valu(f"v_add_f32 v{R}, s{S_EPS}, v{R}", wr={R}, rd={R}, srd={S_EPS}))
    ops.append(lambda: p.trans(f"v_rcp_f32 v{R}, v{R}", wr={R}, rd={R}))
    ops.append(lambda: p.salu(f"s_or_b64 s[{S_BADM}:{S_BADM + 1}], s[{S_BADM}:{S_BADM + 1}], vcc", srd={"vcc"}))
    for j in range(9):
        lo, hi = U + 2 * j, U + 2 * j + 1
        ops.append(lambda lo=lo: p.valu(f"v_mul_f32 v{lo}, v{lo}, v{R}", wr={lo}, rd={lo, R}))
        ops.append(lambda hi=hi: p.valu(f"v_mul_f32 v{hi}, v{hi}, v{R}", wr={hi}, rd={hi, R}))
        ops.append(lambda j=j, lo=lo, hi=hi: p.valu(f"v_cvt_pk_f16_f32 v{dst[j]}, v{lo}, v{hi}", wr={dst[j]},
                                                    rd={lo, hi}))
    for n, f in enumerate(ops):
        if hooks and n in hooks:
            hooks[n]()
        f()


def norm_row_mfma(x, dst, U, GR, hooks=None, nops=True):
    ops = []
    a = V_T0
    R = V_T0 + 2
    OP = "v_mfma_f32_4x4x4_16b_bf16"
    for g in range(5):
        ops.append(lambda g=g: p.mfma(OP, GR, 4, x + 2 * g, 2, x + 2 * g, 2, None if g == 0 else GR, 2))
        ops.append(lambda g=g: p.mfma(OP, U + 4 * g, 4, I4, 2, x + 2 * g, 2, None, 2))
        ops.append(lambda: p.nop(1) if nops else None)
    ops.append(lambda: p.valu(f"v_cndmask_b32 v{a}, v{GR}, v{GR + 1}, s[{S_M1}:{S_M1 + 1}]", wr={a}, rd={GR, GR + 1}))
    ops.append(lambda: p.valu(f"v_cndmask_b32 v{a + 1}, v{GR + 2}, v{GR + 3}, s[{S_M1}:{S_M1 + 1}]", wr={a + 1},
                              rd={GR + 2, GR + 3}))
    ops.append(lambda: p.valu(f"v_cndmask_b32 v{a}, v{a}, v{a + 1}, s[{S_M2}:{S_M2 + 1}]", wr={a}, rd={a, a + 1}))
    ops.append(lambda: p.trans(f"v_sqrt_f32 v{R}, v{a}", wr={R}, rd={a}))
    ops.append(lambda: p.valu(f"v_cmp_class_f32 vcc, v{a}, s{S_CLS}", rd={a}, swr={"vcc"}, srd={S_CLS}))
    ops.append(lambda: p.valu(f"v_add_f32 v{R}, s{S_EPS}, v{R}", wr={R}, rd={R}, srd={S_EPS}))
    ops.append(lambda: p.trans(f"v_rcp_f32 v{R}, v{R}", wr={R}, rd={R}))
    ops.append(lambda: p.salu(f"s_or_b64 s[{S_BADM}:{S_BADM + 1}], s[{S_BADM}:{S_BADM + 1}], vcc", srd={"vcc"}))
    for j in range(9):
        lo, hi = U + 2 * j, U + 2 * j + 1
        ops.append(lambda lo=lo: p.valu(f"v_mul_f32 v{lo}, v{lo}, v{R}", wr={lo}, rd={lo, R}))
        ops.append(lambda hi=hi: p.valu(f"v_mul_f32 v{hi}, v{hi}, v{R}", wr={hi}, rd={hi, R}))
        ops.append(lambda j=j, lo=lo, hi=hi: p.valu(f"v_cvt_pk_f16_f32 v{dst[j]}, v{lo}, v{hi}", wr={dst[j]},
                                                    rd={lo, hi}))
    for n, f in enumerate(ops):
        if hooks and n in hooks:
            hooks[n]()
        f()


def T1(raw):
    p.mfma("v_mfma_f32_32x32x16_bf16", TD, 16, raw, 4, BI, 4, None, 8)


def T2(raw):
    p.mfma("v_mfma_f32_32x32x16_bf16", TD + 16, 16, raw + 4, 4, BI, 4, None, 8)


def T12(raw):
    T1(raw)
    T2(raw)


def T3(raw):
    p.mfma("v_mfma_f32_32x32x4_2b_bf16", TD, 32, raw + 8, 2, BE, 2, TD, 16)


def kv_compute(rawk, rawv, first, lead=0, fast=False):
    if fast:
        hooks = {21: lambda: T1(rawv), 22: lambda: T2(rawv), 34: lambda: T3(rawv)}
        T1(rawv)
        T2(rawv)
        norm_row(rawk, None, True, [Y + j for j in range(9)], hooks={10: lambda: T3(rawv)})
    else:
        if "--plain" in FLAGS:
            hooks = {lead: lambda: T1(rawv), lead + 8: lambda: T2(rawv), lead + 18: lambda: T3(rawv)}
            norm_row_plain(rawk, [Y + j for j in range(9)], UREG, hooks=hooks)
        else:
            hooks = {0: lambda: T12(rawv), 15: lambda: T3(rawv)}
            norm_row_mfma(rawk, [Y + j for j in range(9)], UREG, GREG, hooks=hooks)
    if first:
        p.salu(f"s_cmp_lg_u32 s{S_CNT}, 1")
        p.salu("s_cbranch_scc1 L_nosample")
        idx = len(p.ins)
        m = V_T0
        p.valu(f"v_max_f32 v{m}, |v{TD}|, |v{TD + 1}|", wr={m}, rd={TD, TD + 1})
        for r in range(2, 32, 2):
            p.valu(f"v_max3_f32 v{m}, |v{TD + r}|, |v{TD + r + 1}|, v{m}", wr={m}, rd={TD + r, TD + r + 1, m})
        p.valu(f"v_cmp_gt_f32 vcc, s{S_THR}, v{m}", rd={m}, swr={"vcc"}, srd={S_THR})
        p.salu(f"s_and_b64 vcc, vcc, s[{S_USED}:{S_USED + 1}]", srd={"vcc"})
        p.salu(f"s_or_b64 s[{S_BADM}:{S_BADM + 1}], s[{S_BADM}:{S_BADM + 1}], vcc")
        soft_label("L_nosample")
        zero_ws(idx)
    for f in range(4):
        for j in range(4):
            r = TD + 8 * f + 2 * j
            d = TD + 8 * f + j
            p.valu(f"v_cvt_pk_f16_f32 v{d}, v{r}, v{r + 1}", wr={d}, rd={r, r + 1})


def kv_writes():
    w = [lambda: p.ds_write("ds_write_b128", V_W0, Y, 4, 0),
         lambda: p.ds_write("ds_write_b128", V_W0, Y + 4, 4, 512),
         lambda: p.ds_write("ds_write_b64", V_W1, Y + 8, 2, 2048),
         lambda: p.ds_write("ds_write_b64", V_W1, Y + 8, 2, 2048 + 512)]
    for f in range(4):
        w.append(lambda f=f: p.ds_write("ds_write_b128", V_W2, TD + 8 * f, 4, 3072 + 1024 * f))
    return w


def kv_loads(soff):
    return [lambda: p.bload(4, RAWV, V_GV, S_V, soff, 0),
            lambda: p.bload(4, RAWV + 4, V_GV, S_V, soff, 32 * ROWB),
            lambda: p.bload(1, RAWV + 8, V_GK, S_V, soff, 32),
            lambda: p.bload(4, RAWK, V_GK, S_K, soff, 0),
            lambda: p.bload(4, RAWK + 4, V_GK, S_K, soff, 16),
            lambda: p.bload(1, RAWK + 8, V_GK, S_K, soff, 32)]


def set_waddr(sbase):
    p.valu(f"v_add_u32 v{V_W0}, {sbase}, v{V_WP0}", wr={V_W0}, rd={V_WP0})
    p.valu(f"v_add_u32 v{V_W1}, {sbase}, v{V_WP1}", wr={V_W1}, rd={V_WP1})
    p.valu(f"v_add_u32 v{V_W2}, {sbase}, v{V_L16}", wr={V_W2}, rd={V_L16})


def q_prep(raw, hq, scale_reg, magic, check, hooks=None):
    dst = [QM0[hq] + j for j in range(4)] + [QM1[hq] + j for j in range(4)] + [QE[hq]]
    norm_row(raw, scale_reg, check, dst, hooks)
    p.valu(f"v_mov_b32 v{QE[hq] + 1}, 0x{magic:08x}", wr={QE[hq] + 1})
    for j in range(4):
        a, b = QM0[hq] + j, QM1[hq] + j
        p.valu(f"v_permlane32_swap_b32 v{a}, v{b}", wr={a, b}, rd={a, b}, flags=("permlane",))


if STAMP:
    p.salu("s_memrealtime s[60:61]")
stamp()
p.salu("s_cmp_ge_u32 s2, 256")
p.salu("s_cbranch_scc1 L_end")
p.salu("s_load_dwordx8 s[4:11], s[0:1], 0")
p.salu("s_load_dwordx2 s[12:13], s[0:1], 32")
if "--pf" in FLAGS:
    p.salu("s_getpc_b64 s[14:15]")
    p.valu(f"v_lshlrev_b32 v{t3}, 7, v{V_TID}", wr={t3}, rd={V_TID})
    p.valu(f"v_min_u32 v{t3}, 0x{PF_LAST:x}, v{t3}", wr={t3}, rd={t3})
    p.add(Inst(f"global_load_dword v{V_PF}, v{t3}, s[14:15]", "vmem", wr={V_PF}, rd={t3}))
    p.vm_pend.append({V_PF})
p.valu(f"v_lshrrev_b32 v{t0}, 6, v{V_TID}", wr={t0}, rd={V_TID})
p.salu(f"s_and_b32 s{S_TMP}, s2, 7")
p.salu(f"s_lshr_b32 s{S_TMP2}, s2, 3")
p.valu(f"v_readfirstlane_b32 s{S_WAVE}, v{t0}", rd={t0}, swr={S_WAVE}, flags=("readlane",))
p.salu(f"s_and_b32 s{S_QB}, s{S_TMP2}, 3")
p.salu(f"s_lshr_b32 s{S_TMP2}, s{S_TMP2}, 2")
p.salu(f"s_lshl_b32 s{S_HEAD}, s{S_TMP}, 3")
p.salu(f"s_add_u32 s{S_HEAD}, s{S_HEAD}, s{S_TMP2}")
p.salu(f"s_mul_i32 s{S_KOFF}, s{S_HEAD}, {2048 * ROWB}")
p.salu(f"s_mul_i32 s{S_TMP}, s{S_QB}, {512 * ROWB}")
p.salu(f"s_add_u32 s{S_QOFF}, s{S_KOFF}, s{S_TMP}")
p.salu(f"s_and_b32 s{S_W4}, s{S_WAVE}, 3", srd={S_WAVE})
p.salu(f"s_mul_i32 s{S_TMP}, s{S_W4}, {128 * ROWB}")
p.salu(f"s_add_u32 s{S_QOFF}, s{S_QOFF}, s{S_TMP}")
p.valu(f"v_and_b32 v{V_LANE}, 63, v{V_TID}", wr={V_LANE}, rd={V_TID})
p.valu(f"v_and_b32 v{t0}, 0xff, v{V_TID}", wr={t0}, rd={V_TID})
p.valu(f"v_mul_u32_u24 v{V_GK}, {ROWB}, v{t0}", wr={V_GK}, rd={t0})
p.valu(f"v_mul_u32_u24 v{V_GQ}, {ROWB}, v{V_LANE}", wr={V_GQ}, rd={V_LANE})
p.valu(f"v_and_b32 v{t0}, 0xdf, v{V_TID}", wr={t0}, rd={V_TID})
p.valu(f"v_mul_u32_u24 v{V_GV}, {ROWB}, v{t0}", wr={V_GV}, rd={t0})
p.valu(f"v_lshrrev_b32 v{t1}, 5, v{V_LANE}", wr={t1}, rd={V_LANE})
p.valu(f"v_lshl_add_u32 v{V_GV}, v{t1}, 4, v{V_GV}", wr={V_GV}, rd={t1, V_GV})
p.salu(f"s_and_b32 s{S_TMP}, s{S_HEAD}, 30")
p.salu(f"s_lshl_b32 s{S_TMP}, s{S_TMP}, 1")
p.salu(f"s_add_u32 s{S_SOFF}, s{S_KOFF}, {CHUNKB}")
p.raw("s_waitcnt lgkmcnt(0)", "wait")
p.salu(f"s_load_dword s{S_T}, s[10:11], s{S_TMP}")
for srd, ptr in ((S_K, 6), (S_V, 8), (S_Q, 4), (S_O, 12)):
    p.salu(f"s_mov_b32 s{srd}, s{ptr}")
    p.salu(f"s_mov_b32 s{srd + 1}, s{ptr + 1}")
    p.salu(f"s_mov_b32 s{srd + 2}, {TENSOR_BYTES}")
    p.salu(f"s_mov_b32 s{srd + 3}, 0x00020000")


def consts():
    p.salu(f"s_mov_b32 s{S_HIMASK}, 0xffff0000")
    p.salu(f"s_mov_b32 s{S_EPS}, 0x{f32bits(1e-6):08x}")
    p.salu(f"s_mov_b32 s{S_CLS}, 0x207")
    p.salu(f"s_mov_b64 s[{S_BADM}:{S_BADM + 1}], 0")
    p.valu(f"v_mov_b32 v{V_FLAGV}, 0x{FLAG:x}", wr={V_FLAGV})


def ident():
    for i in range(4):
        p.valu(f"v_mov_b32 v{BI + i}, 0", wr={BI + i})
    p.valu(f"v_mov_b32 v{BE}, 0", wr={BE})
    p.valu(f"v_mov_b32 v{BE + 1}, 0", wr={BE + 1})
    p.salu(f"s_mov_b32 s{S_TMP}, 0x3f80")
    p.salu(f"s_mov_b32 s{S_TMP2}, 0x3f800000")
    for k in range(16):
        lane = (k // 8) * 32 + drow(k)
        i = (k % 8) // 2
        p.valu(f"v_writelane_b32 v{BI + i}, s{S_TMP if k % 2 == 0 else S_TMP2}, {lane}", wr={BI + i}, rd={BI + i})
    for col, reg, val in ((drow(16), BE, S_TMP), (drow(17), BE, S_TMP2), (18, BE + 1, S_TMP), (22, BE + 1, S_TMP)):
        for h in range(2):
            p.valu(f"v_writelane_b32 v{reg}, s{val}, {col + 32 * h}", wr={reg}, rd={reg})


def t_check(target):
    p.raw("s_waitcnt lgkmcnt(0)", "wait")
    p.salu(f"s_lshl_b32 s{S_TMP}, s{S_T}, 16")
    p.salu(f"s_and_b32 s{S_TMP2}, s{S_T}, 0xffff0000")
    p.salu(f"s_bitcmp1_b32 s{S_HEAD}, 0")
    p.salu(f"s_cselect_b32 s{S_T}, s{S_TMP2}, s{S_TMP}")
    p.valu(f"v_mov_b32 v{V_C}, 0x{f32bits(LOG2E):08x}", wr={V_C})
    p.valu(f"v_mul_f32 v{V_C}, s{S_T}, v{V_C}", wr={V_C}, rd={V_C})
    p.salu(f"s_and_b32 s{S_TMP}, s{S_T}, 0x7fffffff")
    if FORCE_GENERIC:
        p.salu(f"s_branch {target}")
    else:
        p.salu(f"s_cmp_gt_u32 s{S_TMP}, 0x{T_MAX_BITS:x}")
        p.salu(f"s_cbranch_scc1 {target}")


p.salu(f"s_cmp_ge_u32 s{S_WAVE}, 4")
p.salu("s_cbranch_scc0 L_compute" if "--prodlast" in FLAGS else "s_cbranch_scc1 L_compute")
idx = len(p.ins)
vm_save = list(p.vm_pend)
load_v(RAWV1, f"s{S_KOFF}")
load_rows(RAWK1, V_GK, S_K, f"s{S_KOFF}")
vm_prod = list(p.vm_pend)
p.salu("s_branch L_producer")
soft_label("L_compute")
zero_ws(idx)
p.vm_pend = vm_save

load_rows(RQ[0], V_GQ, S_Q, f"s{S_QOFF}")
if "--qtogether" in FLAGS:
    load_rows(RQ[1], V_GQ, S_Q, f"s{S_QOFF}", 64 * ROWB)
consts()
p.valu(f"v_lshlrev_b32 v{V_CUR}, 4, v{V_LANE}", wr={V_CUR}, rd={V_LANE})
p.valu(f"v_add_u32 v{V_NXT}, 0x{BUF:x}, v{V_CUR}", wr={V_NXT}, rd={V_CUR})
p.valu(f"v_and_b32 v{t0}, 31, v{V_LANE}", wr={t0}, rd={V_LANE})
p.valu(f"v_mul_u32_u24 v{t2}, {ROWB}, v{t0}", wr={t2}, rd={t0})
p.valu(f"v_mul_u32_u24 v{V_EA0}, 20, v{t1}", wr={V_EA0}, rd={t1})
p.valu(f"v_add_u32 v{V_EA0}, v{V_EA0}, v{t2}", wr={V_EA0}, rd={V_EA0, t2})
p.valu(f"v_lshl_add_u32 v{V_EA1}, v{t1}, 30, v{t2}", wr={V_EA1}, rd={t1, t2})
for r in list(range(OA[0], OA[0] + 64)) + list(range(P + 12, P + 16)) + list(range(VB[1], VB[1] + 4)):
    p.valu(f"v_mov_b32 v{r}, 0", wr={r})
if "--qtogether" not in FLAGS:
    load_rows(RQ[1], V_GQ, S_Q, f"s{S_QOFF}", 64 * ROWB)
t_check("L_generic")
stamp()
q_prep(RQ[0], 0, V_C, MAGIC_B, True)
q_prep(RQ[1], 1, V_C, MAGIC_B, True)
stamp()
p.raw("s_barrier", "salu")
stamp()

F16 = "v_mfma_f32_32x32x16_f16"


def taddr(j):
    return (V_CUR if j < 8 else V_NXT), ((j % 8) // 2) * PAIR, j % 2


def rd_km(j):
    a, o, tp = taddr(j)
    p.ds_read("ds_read_b128", KM[j % 2], 4, a, o + 1024 * tp)


def rd_ke(j):
    a, o, tp = taddr(j)
    assert tp == 0
    p.ds_read("ds_read_b128", KE[(j // 2) % 2], 4, a, o + 2048)


def rd_va(j):
    a, o, tp = taddr(j)
    p.ds_read("ds_read_b128", VA[j % 2], 4, a, o + 3072 + 2048 * tp)


def rd_vb(j):
    a, o, tp = taddr(j)
    p.ds_read("ds_read_b128", VB[j % 2], 4, a, o + 4096 + 2048 * tp)


def M1(m):
    p.mfma(F16, SB[m % 2], 16, KM[(m // 2) % 2], 4, QM0[m % 2], 4, None, 8)


def M2(m):
    p.mfma(F16, SB[m % 2] + 16, 16, KM[(m // 2) % 2], 4, QM1[m % 2], 4, None, 8)


def M3(m):
    j = m // 2
    p.mfma("v_mfma_f32_32x32x4_2b_f16", SB[m % 2], 32, KE[(j // 2) % 2] + 2 * (j % 2), 2, QE[m % 2], 2, SB[m % 2], 16)


def PV(which, m):
    j = m // 2
    o = OA[2 * (m % 2) + (0 if which <= 2 else 1)]
    v = VA[j % 2] if which % 2 == 1 else VB[j % 2]
    p.mfma(F16, o, 16, v, 4, P + 4 * (which - 1), 4, o, 8)


def G(g, m, mid=None):
    s = SB[m % 2] + 4 * g
    d = P + 2 * g
    p.trans(f"v_exp_f16 v{d}, v{s}", wr={d}, rd={s})
    p.trans(f"v_exp_f16 v{d + 1}, v{s + 2}", wr={d + 1}, rd={s + 2})
    p.trans(f"v_exp_f16_sdwa v{d}, v{s + 1} dst_sel:WORD_1 dst_unused:UNUSED_PRESERVE src0_sel:WORD_0",
            wr={d}, rd={s + 1, d}, flags=("sdwa",))
    if mid:
        mid()
    p.trans(f"v_exp_f16_sdwa v{d + 1}, v{s + 3} dst_sel:WORD_1 dst_unused:UNUSED_PRESERVE src0_sel:WORD_0",
            wr={d + 1}, rd={s + 3, d + 1}, flags=("sdwa",))


PREP_AT = opt("prepat", 5)


def chunk_body(tag):
    for m in range(16):
        j = m // 2
        sq = []
        if m == BAR_AT and "--nobar" not in FLAGS:
            assert m % 2 == 1
            sq = [None, None, None, None, None, lambda: p.raw("s_barrier", "salu")]
        if m == 15:
            sq = [lambda: p.salu(f"s_add_u32 s{S_WB}, s{S_WB}, {BUF}"),
                  lambda: p.salu(f"s_cmp_ge_u32 s{S_WB}, {NBUF * BUF}"),
                  lambda: p.salu(f"s_cselect_b32 s{S_WB}, 0, s{S_WB}"),
                  lambda: p.salu(f"s_add_u32 s{S_CNT}, s{S_CNT}, 1"),
                  lambda: p.salu(f"s_cmp_lt_u32 s{S_CNT}, 8")]

        def X():
            if sq:
                f = sq.pop(0)
                if f:
                    f()

        G(0, m)
        M2(m + 1)
        if m % 2 == 0:
            p.wait_lds(0)
            rd_km(j + 2)
            if j % 2 == 0:
                rd_ke(j + 2)
        X()
        G(1, m)
        PV(4, m - 1)
        if m % 2 == 0:
            rd_vb(j + 1)
            rd_va(j + 1)
        X()
        G(2, m)
        PV(1, m)
        X()
        G(3, m, mid=lambda: M3(m + 1))
        if m == 15:
            p.valu(f"v_mov_b32 v{V_CUR}, v{V_NXT}", wr={V_CUR}, rd={V_NXT})
            p.valu(f"v_lshl_add_u32 v{V_NXT}, v{V_LANE}, 4, s{S_WB}", wr={V_NXT}, rd={V_LANE})
        G(4, m)
        G(5, m)
        PV(2, m)
        X()
        G(6, m)
        M1(m + 2)
        X()
        G(7, m)
        PV(3, m)
        X()
        assert not sq


assert BAR_AT <= 11
p.salu(f"s_mov_b32 s{S_CNT}, 0")
p.salu(f"s_mov_b32 s{S_WB}, {BUF}")
rd_km(0)
rd_ke(0)
rd_km(1)
rd_vb(0)
rd_va(0)
M1(0)
M2(0)
M1(1)
M3(0)
p.wait_lds(0)
p.nop(18)

saved = (p.ins, p.nops_inserted)
p.ins = []
p.lds_pend = []
p.vm_pend = []
chunk_body("d")
tail = p.ins[-60:]
steady = list(p.lds_pend)
p.ins, p.nops_inserted = saved
p.ins.append(Inst(".p2align 6", "other", ws=0))
p.label("L_loop")
for i in tail:
    g = copy.copy(i)
    g.flags = set(g.flags) | {"ghost"}
    p.ins.append(g)
p.lds_pend = list(steady)
p.vm_pend = []
chunk_body("A")
assert [sorted(x) for x in p.lds_pend] == [sorted(x) for x in steady], (p.lds_pend, steady)
p.salu("s_cbranch_scc1 L_loop")
PV(4, 15)
stamp()
p.ds_read("ds_read_b32", V_FLAGV, 1, V_FLAGV, 0)


def epilogue(o_regs, soff, off0, ybase):
    for ti, o in enumerate(o_regs):
        R = V_T0 + 4 + 2 * ti
        y = ybase + 8 * ti
        p.trans(f"v_rcp_f32 v{R}, v{o + 10}", wr={R}, rd={o + 10})
        for j in range(5):
            p.valu(f"v_pk_mul_f32 v[{o + 2 * j}:{o + 2 * j + 1}], v[{o + 2 * j}:{o + 2 * j + 1}], v[{R}:{R + 1}] op_sel_hi:[1,0]",
                   wr={o + 2 * j, o + 2 * j + 1}, rd={o + 2 * j, o + 2 * j + 1, R})
        for j in range(5):
            p.valu(f"v_cvt_pk_bf16_f32 v{y + j}, v{o + 2 * j}, v{o + 2 * j + 1}", wr={y + j},
                   rd={o + 2 * j, o + 2 * j + 1})
        p.bstore(4, y, V_EA0, S_O, soff, off0 + ti * 32 * ROWB)
        p.bstore(1, y + 4, V_EA1, S_O, soff, off0 + ti * 32 * ROWB + 16)


o = OA[0]
p.valu(f"v_add_f32 v{t0}, |v{o}|, |v{o + 1}|", wr={t0}, rd={o, o + 1})
for r in range(2, 10):
    p.valu(f"v_add_f32 v{t0}, |v{o + r}|, v{t0}", wr={t0}, rd={o + r, t0})
p.valu(f"v_cmp_class_f32 vcc, v{t0}, s{S_CLS}", rd={t0}, swr={"vcc"}, srd={S_CLS})
p.valu(f"v_readfirstlane_b32 s{S_BAD}, v{V_FLAGV}", rd={V_FLAGV}, swr={S_BAD}, flags=("readlane",))
p.salu(f"s_or_b64 s[{S_BADM}:{S_BADM + 1}], s[{S_BADM}:{S_BADM + 1}], vcc", srd={"vcc"})
p.salu(f"s_or_b32 s{S_BAD}, s{S_BAD}, s{S_BADM}", srd={S_BAD})
p.salu(f"s_or_b32 s{S_BAD}, s{S_BAD}, s{S_BADM + 1}")
p.salu("s_cbranch_scc1 L_generic")
epilogue(OA[0:2], f"s{S_QOFF}", 0, P)
epilogue(OA[2:4], f"s{S_QOFF}", 64 * ROWB, KE[0])
if STAMP:
    stamp()
    p.salu("s_memrealtime s[62:63]")
    p.salu(f"s_load_dwordx2 s[56:57], s[0:1], {40 if '--dbgstamp' in FLAGS else 48}")
    p.raw("s_waitcnt lgkmcnt(0)", "wait")
    k = NSTAMP[0]
    NSTAMP[0] += 2
    p.salu(f"s_sub_u32 s{64 + 2 * k}, s62, s60")
    p.salu(f"s_add_u32 s{64 + 2 * k}, s{64 + 2 * k}, s64")
    p.salu(f"s_add_u32 s{66 + 2 * k}, s60, s64")
    p.salu("s_mov_b32 s58, 0x1000000")
    p.salu("s_mov_b32 s59, 0x00020000")
    p.valu(f"v_mov_b32 v{t2}, 0", wr={t2})
    for k in range(NSTAMP[0]):
        p.salu(f"s_sub_u32 s{S_TMP}, s{64 + 2 * k}, s64")
        p.valu(f"v_mov_b32 v{t1}, s{S_TMP}", wr={t1})
        p.valu(f"v_cmp_eq_u32 vcc, {k}, v{V_LANE}", rd={V_LANE}, swr={"vcc"})
        p.valu(f"v_cndmask_b32 v{t2}, v{t2}, v{t1}, vcc", wr={t2}, rd={t2, t1}, srd={"vcc"})
    if "--dbgstamp" in FLAGS:
        p.salu("s_mov_b32 s58, 64")
        p.salu(f"s_lshl_b32 s{S_TMP}, s2, 3")
        p.salu(f"s_add_u32 s{S_TMP}, s{S_TMP}, s{S_WAVE}")
        p.salu(f"s_mov_b32 s{S_TMP2}, 0x1000")
        p.salu(f"s_cmp_eq_u32 s{S_TMP}, {5 * 8}")
        p.salu(f"s_cselect_b32 s{S_TMP2}, 0, s{S_TMP2}")
        p.salu(f"s_cmp_eq_u32 s{S_TMP}, {200 * 8 + 3}")
        p.salu(f"s_cselect_b32 s{S_TMP2}, 32, s{S_TMP2}")
        p.valu(f"v_lshlrev_b32 v{t1}, 2, v{V_LANE}", wr={t1}, rd={V_LANE})
        p.valu(f"v_cmp_lt_u32 vcc, 7, v{V_LANE}", rd={V_LANE}, swr={"vcc"})
        p.valu(f"v_mov_b32 v{t3}, 0x1000", wr={t3})
        p.valu(f"v_cndmask_b32 v{t1}, v{t1}, v{t3}, vcc", wr={t1}, rd={t1, t3}, srd={"vcc"})
        p.valu(f"v_add_u32 v{t1}, s{S_TMP2}, v{t1}", wr={t1}, rd={t1})
        p.bstore(1, t2, t1, 56, "0", 0)
    else:
        p.valu(f"v_mov_b32 v{t1}, s2", wr={t1})
        p.valu(f"v_lshlrev_b32 v{t1}, 9, v{t1}", wr={t1}, rd={t1})
        p.valu(f"v_and_b32 v{t3}, 0xff, v{V_TID}", wr={t3}, rd={V_TID})
        p.valu(f"v_add_u32 v{t1}, v{t1}, v{t3}", wr={t1}, rd={t1, t3})
        p.valu(f"v_lshlrev_b32 v{t1}, 2, v{t1}", wr={t1}, rd={t1})
        p.bstore(1, t2, t1, 56, "0", 0)
p.label("L_end")
p.salu("s_endpgm")

p.label("L_producer")
p.lds_pend = []
p.vm_pend = vm_prod
p.salu(f"s_setprio {opt('pprio', 3)}")
consts()
p.salu(f"s_mov_b32 s{S_THR}, 0x{f32bits(2.0 ** -9):08x}")
p.salu(f"s_mov_b32 s{S_USED}, 0x{USED_MASK32:08x}")
p.salu(f"s_mov_b32 s{S_USED + 1}, 0x{USED_MASK32:08x}")
p.salu(f"s_mul_i32 s{S_PB}, s{S_W4}, {PAIR}")
p.valu(f"v_lshrrev_b32 v{t1}, 5, v{V_LANE}", wr={t1}, rd={V_LANE})
p.valu(f"v_lshl_add_u32 v{V_L16}, v{V_LANE}, 4, s{S_PB}", wr={V_L16}, rd={V_LANE})
p.valu(f"v_and_b32 v{t0}, 31, v{V_LANE}", wr={t0}, rd={V_LANE})
p.valu(f"v_lshl_add_u32 v{t2}, v{t0}, 4, s{S_PB}", wr={t2}, rd={t0})
p.valu(f"v_lshl_add_u32 v{V_WP0}, v{t1}, 10, v{t2}", wr={V_WP0}, rd={t1, t2})
p.valu(f"v_lshl_add_u32 v{V_WP1}, v{t1}, 3, v{t2}", wr={V_WP1}, rd={t1, t2})
ident()
p.valu(f"v_mov_b32 v{RAWV + 9}, 0x3f80", wr={RAWV + 9})
p.valu(f"v_mov_b32 v{RAWV1 + 9}, 0x3f80", wr={RAWV1 + 9})
p.valu(f"v_mov_b32 v{Y + 9}, 0x{MAGIC_A:08x}", wr={Y + 9})
p.valu(f"v_mov_b32 v{RAWK + 9}, 0", wr={RAWK + 9})
p.salu(f"s_mov_b32 s{S_M1}, 0xaaaaaaaa")
p.salu(f"s_mov_b32 s{S_M1 + 1}, 0xaaaaaaaa")
p.salu(f"s_mov_b32 s{S_M2}, 0xcccccccc")
p.salu(f"s_mov_b32 s{S_M2 + 1}, 0xcccccccc")
p.valu(f"v_mov_b32 v{t2}, 0x3f80", wr={t2})
p.valu(f"v_mov_b32 v{t3}, 0x3f800000", wr={t3})
p.valu(f"v_cndmask_b32 v{t2}, v{t2}, v{t3}, s[{S_M1}:{S_M1 + 1}]", wr={t2}, rd={t2, t3})
p.valu(f"v_mov_b32 v{t1}, 0", wr={t1})
p.valu(f"v_cndmask_b32 v{I4}, v{t2}, v{t1}, s[{S_M2}:{S_M2 + 1}]", wr={I4}, rd={t2, t1})
p.valu(f"v_cndmask_b32 v{I4 + 1}, v{t1}, v{t2}, s[{S_M2}:{S_M2 + 1}]", wr={I4 + 1}, rd={t2, t1})
p.ds_write("ds_write_b32", V_FLAGV, t1, 1, 0)
set_waddr("0")
kv_compute(RAWK1, RAWV1, False, fast=("--slowfirst" not in FLAGS))
for f in kv_writes():
    f()
t_check("L_end2")
p.lds_pend = []
p.raw("s_barrier", "salu")
S_VOFF = S_QH
ld = kv_loads(f"s{S_SOFF}")
for f in ld:
    f()
p.salu(f"s_mov_b32 s{S_CNT}, 1")
p.salu(f"s_mov_b32 s{S_WB}, {BUF}")
p.salu(f"s_add_u32 s{S_VOFF}, s{S_SOFF}, {CHUNKB}")
T12(RAWV)
T3(RAWV)
for f in kv_loads(f"s{S_VOFF}")[:3]:
    f()
m = V_T0
p.valu(f"v_max_f32 v{m}, |v{TD}|, |v{TD + 1}|", wr={m}, rd={TD, TD + 1})
for r in range(2, 32, 2):
    p.valu(f"v_max3_f32 v{m}, |v{TD + r}|, |v{TD + r + 1}|, v{m}", wr={m}, rd={TD + r, TD + r + 1, m})
p.valu(f"v_cmp_gt_f32 vcc, s{S_THR}, v{m}", rd={m}, swr={"vcc"}, srd={S_THR})
p.salu(f"s_and_b64 vcc, vcc, s[{S_USED}:{S_USED + 1}]", srd={"vcc"})
p.salu(f"s_or_b64 s[{S_BADM}:{S_BADM + 1}], s[{S_BADM}:{S_BADM + 1}], vcc")
p.nop(4)
p.label("L_ploop")
p.vm_pend = [rng(RAWK, 4), rng(RAWK + 4, 4), rng(RAWK + 8, 1), rng(RAWV, 4), rng(RAWV + 4, 4), rng(RAWV + 8, 1)]
if "--pidle" in FLAGS:
    p.salu("s_branch L_pnoflag")
set_waddr(f"s{S_WB}")
W = kv_writes()
cv = []
for f in range(4):
    for j in range(4):
        r = TD + 8 * f + 2 * j
        d = PK + 4 * f + j
        cv.append(lambda r=r, d=d: p.valu(f"v_cvt_pk_f16_f32 v{d}, v{r}, v{r + 1}", wr={d}, rd={r, r + 1}))


def cvn(n):
    def f():
        for _ in range(n):
            if cv:
                cv.pop(0)()
    return f


def wv(f):
    return lambda: p.ds_write("ds_write_b128", V_W2, PK + 4 * f, 4, 3072 + 1024 * f)


def seq(*fs):
    def g():
        for f in fs:
            f()
    return g


def next_k():
    p.salu(f"s_add_u32 s{S_SOFF}, s{S_SOFF}, {CHUNKB}")
    p.salu(f"s_cmp_ge_u32 s{S_CNT}, 7")
    p.salu(f"s_cselect_b32 s{S_SOFF}, 0x40000000, s{S_SOFF}")
    for f in kv_loads(f"s{S_SOFF}")[3:]:
        f()


def next_v():
    p.salu(f"s_add_u32 s{S_VOFF}, s{S_VOFF}, {CHUNKB}")
    p.salu(f"s_cmp_ge_u32 s{S_CNT}, 6")
    p.salu(f"s_cselect_b32 s{S_VOFF}, 0x40000000, s{S_VOFF}")
    for f in kv_loads(f"s{S_VOFF}")[:3]:
        f()


hooks = {}
for g in range(5):
    hooks[3 * g + 1] = cvn(1)
    hooks[3 * g + 2] = cvn(2)
hooks[5] = seq(cvn(2), wv(0))
hooks[8] = seq(cvn(2), wv(1))
hooks[14] = seq(cvn(2), wv(2))
hooks[15] = seq(cvn(4), wv(3), next_k)
hooks[16] = lambda: T1(RAWV)
hooks[23] = lambda: T2(RAWV)
hooks[33] = lambda: T3(RAWV)
hooks[36] = W[0]
norm_row_mfma(RAWK, [Y + j for j in range(9)], UREG, GREG, hooks=hooks, nops=False)
assert not cv
for f in W[1:4]:
    f()
next_v()
p.salu(f"s_cmp_lg_u32 s{S_CNT}, 7")
p.salu("s_cbranch_scc1 L_pnoflag")
idx = len(p.ins)
p.salu(f"s_or_b32 s{S_BAD}, s{S_BADM}, s{S_BADM + 1}")
p.valu(f"v_mov_b32 v{t1}, s{S_BAD}", wr={t1})
p.ds_write("ds_or_b32", V_FLAGV, t1, 1, 0)
soft_label("L_pnoflag")
zero_ws(idx)
p.wait_lds(0)
p.raw("s_barrier", "salu")
p.salu(f"s_add_u32 s{S_WB}, s{S_WB}, {BUF}")
p.salu(f"s_cmp_ge_u32 s{S_WB}, {NBUF * BUF}")
p.salu(f"s_cselect_b32 s{S_WB}, 0, s{S_WB}")
p.salu(f"s_add_u32 s{S_CNT}, s{S_CNT}, 1")
p.salu(f"s_cmp_lt_u32 s{S_CNT}, 8")
p.nop(8)
p.salu("s_cbranch_scc1 L_ploop")
p.label("L_end2")
p.salu("s_endpgm")

p.label("L_generic")
p.flush()
p.valu(f"v_mul_u32_u24 v{V_GK}, {ROWB}, v{V_LANE}", wr={V_GK}, rd={V_LANE})
p.valu(f"v_and_b32 v{t0}, 31, v{V_LANE}", wr={t0}, rd={V_LANE})
p.valu(f"v_mul_u32_u24 v{V_GV}, {ROWB}, v{t0}", wr={V_GV}, rd={t0})
p.valu(f"v_lshrrev_b32 v{t1}, 5, v{V_LANE}", wr={t1}, rd={V_LANE})
p.valu(f"v_lshl_add_u32 v{V_GV}, v{t1}, 4, v{V_GV}", wr={V_GV}, rd={t1, V_GV})
p.valu(f"v_mov_b32 v{RAWV + 9}, 0x3f80", wr={RAWV + 9})
ident()
p.salu(f"s_mov_b32 s{S_QH}, 0")
p.flush()
p.label("L_g_half")
load_rows(RAWK, V_GQ, S_Q, f"s{S_QOFF}")
q_prep(RAWK, 0, None, 0, False)
for o in GO:
    for r in range(16):
        p.valu(f"v_mov_b32 v{o + r}, 0", wr={o + r})
for g in GM:
    p.valu(f"v_mov_b32 v{g}, 0xff7fffff", wr={g})
p.salu(f"s_mov_b32 s{S_SOFF}, s{S_KOFF}")
p.salu(f"s_mov_b32 s{S_CNT}, 0")
p.flush()
p.label("L_g_pair")
load_rows(RAWK, V_GK, S_K, f"s{S_SOFF}")
load_v(RAWV, f"s{S_SOFF}")
norm_row(RAWK, None, False, [KM[0] + j for j in range(4)] + [KM[1] + j for j in range(4)] + [KE[0]])
p.valu(f"v_mov_b32 v{KE[0] + 2}, v{KE[0]}", wr={KE[0] + 2}, rd={KE[0]})
p.valu(f"v_mov_b32 v{KE[0] + 1}, 0", wr={KE[0] + 1})
p.valu(f"v_mov_b32 v{KE[0] + 3}, 0", wr={KE[0] + 3})
for j in range(4):
    a, b = KM[0] + j, KM[1] + j
    p.valu(f"v_permlane32_swap_b32 v{a}, v{b}", wr={a, b}, rd={a, b}, flags=("permlane",))
p.valu(f"v_permlane32_swap_b32 v{KE[0]}, v{KE[0] + 2}", wr={KE[0], KE[0] + 2}, rd={KE[0], KE[0] + 2},
       flags=("permlane",))
T12(RAWV)
T3(RAWV)
FR = [VA[0], VB[0], VA[1], VB[1]]
for f in range(4):
    for j in range(4):
        r = TD + 8 * f + 2 * j
        p.valu(f"v_cvt_pk_bf16_f32 v{FR[f] + j}, v{r}, v{r + 1}", wr={FR[f] + j}, rd={r, r + 1})
BF = "v_mfma_f32_32x32x16_bf16"
for tau in range(2):
    M1(2 * tau)
    M2(2 * tau)
    M3(2 * tau)
    S = SB[0]
    for ti, o in enumerate(GO):
        s = S + 16 * ti
        m = GM[ti]
        for r in range(16):
            p.valu(f"v_mul_f32 v{s + r}, v{s + r}, v{V_C}", wr={s + r}, rd={s + r, V_C})
        p.valu(f"v_max_f32 v{t0}, v{s}, v{s + 1}", wr={t0}, rd={s, s + 1})
        for r in range(2, 16, 2):
            p.valu(f"v_max3_f32 v{t0}, v{s + r}, v{s + r + 1}, v{t0}", wr={t0}, rd={s + r, s + r + 1, t0})
        p.valu(f"v_mov_b32 v{t1}, v{t0}", wr={t1}, rd={t0})
        p.valu(f"v_permlane32_swap_b32 v{t0}, v{t1}", wr={t0, t1}, rd={t0, t1}, flags=("permlane",))
        p.nop(2)
        p.valu(f"v_max3_f32 v{t0}, v{t0}, v{t1}, v{m}", wr={t0}, rd={t0, t1, m})
        p.valu(f"v_sub_f32 v{t1}, v{m}, v{t0}", wr={t1}, rd={m, t0})
        p.trans(f"v_exp_f32 v{t1}, v{t1}", wr={t1}, rd={t1})
        p.valu(f"v_mov_b32 v{m}, v{t0}", wr={m}, rd={t0})
        for r in range(16):
            p.valu(f"v_mul_f32 v{o + r}, v{o + r}, v{t1}", wr={o + r}, rd={o + r, t1})
        for r in range(16):
            p.valu(f"v_sub_f32 v{s + r}, v{s + r}, v{t0}", wr={s + r}, rd={s + r, t0})
        for r in range(16):
            p.trans(f"v_exp_f32 v{s + r}, v{s + r}", wr={s + r}, rd={s + r})
        for r in range(8):
            p.valu(f"v_cvt_pk_bf16_f32 v{P + 8 * ti + r}, v{s + 2 * r}, v{s + 2 * r + 1}", wr={P + 8 * ti + r},
                   rd={s + 2 * r, s + 2 * r + 1})
        p.mfma(BF, o, 16, VA[tau], 4, P + 8 * ti, 4, o, 8)
        p.mfma(BF, o, 16, VB[tau], 4, P + 8 * ti + 4, 4, o, 8)
p.flush()
p.salu(f"s_add_u32 s{S_SOFF}, s{S_SOFF}, {64 * ROWB}")
p.salu(f"s_add_u32 s{S_CNT}, s{S_CNT}, 1")
p.salu(f"s_cmp_lt_u32 s{S_CNT}, 32")
p.salu("s_cbranch_scc1 L_g_pair")
epilogue(GO, f"s{S_QOFF}", 0, P)
p.flush()
p.salu(f"s_add_u32 s{S_QOFF}, s{S_QOFF}, {64 * ROWB}")
p.salu(f"s_add_u32 s{S_QH}, s{S_QH}, 1")
p.salu(f"s_cmp_lt_u32 s{S_QH}, 2")
p.salu("s_cbranch_scc1 L_g_half")
p.salu("s_endpgm")

hdr = open(f"cdna_kernels/{NAME}.s.ref").read().split("\n")
top = []
for line in hdr:
    if line.startswith("; @launch"):
        top.append(f"; @launch grid=(256,1,1) block=(512,1,1) lds={LDS_BYTES}")
        break
    top.append(line)
body = []
for i in p.ins:
    if "ghost" in i.flags:
        continue
    if i.cls in ("label", "label2"):
        body.append(i.text)
    else:
        body.append("    " + i.text)
src = "\n".join(top) + f"""
.amdgcn_target "amdgcn-amd-amdhsa--gfx950"
.text
.globl {NAME}_kernel
.p2align 12
.p2align 8
.type {NAME}_kernel,@function
{NAME}_kernel:
""" + "\n".join(body) + f"""
.section .rodata,"a"
.p2align 6
.amdhsa_kernel {NAME}_kernel
  .amdhsa_next_free_vgpr {NV + NACC}
  .amdhsa_next_free_sgpr {100 if STAMP else 64}
  .amdhsa_accum_offset {NV}
  .amdhsa_group_segment_fixed_size 0
  .amdhsa_kernarg_size 56
  .amdhsa_user_sgpr_count 2
  .amdhsa_user_sgpr_kernarg_segment_ptr 1
  .amdhsa_system_sgpr_workgroup_id_x 1
.end_amdhsa_kernel
"""
open(OUT, "w").write(src)
print("wrote", OUT, "instructions:", len(body), "auto nops:", p.nops_inserted, "lds", LDS_BYTES)
```

```python
import copy
import struct
import sys
from emit import Prog, Inst, vr, rng

NAME = "standalone__qk_norm__prompt"
OUT = sys.argv[1] if len(sys.argv) > 1 and not sys.argv[1].startswith("--") else f"cdna_kernels/{NAME}.s"
FLAGS = set(a for a in sys.argv[1:] if a.startswith("--"))
FORCE_GENERIC = "--generic" in FLAGS
STAMP = "--stamp" in FLAGS


def opt(name, default):
    for a in FLAGS:
        if a.startswith(f"--{name}="):
            return int(a.split("=")[1])
    return default


BAR_AT = opt("barat", 9)

TENSOR_BYTES = 2 * 32 * 2048 * 18 * 2
ROWB = 36
PAIR = 7168
BUF = 4 * PAIR
NBUF = 3
FLAG = NBUF * BUF
LDS_BYTES = FLAG + 64
CHUNKB = 256 * ROWB


def f32bits(x):
    return struct.unpack("<I", struct.pack("<f", x))[0]


def f16bits(x):
    return struct.unpack("<H", struct.pack("<e", x))[0]


LOG2E = 1.4426950408889634
MAGIC_A = f16bits(192.0) | (f16bits(220.0) << 16)
MAGIC_B = f16bits(192.0) | (f16bits(131.0) << 16)
T_MAX_BITS = 0x402F0000


def drow(d):
    if d < 10:
        r, h = d, 0
    else:
        r, h = d - 10, 1
    return 8 * (r // 4) + 4 * h + (r % 4)


USED_MASK32 = sum(1 << drow(d) for d in range(18))

S_Q, S_K, S_V, S_O = 16, 20, 24, 28
S_HEAD, S_QB, S_WAVE, S_T, S_KOFF, S_QOFF = 32, 33, 34, 35, 36, 37
S_TMP, S_TMP2 = 38, 39
S_BADM = 40
S_BAD = 42
S_QH = 43
S_HIMASK, S_EPS, S_CLS, S_THR, S_SOFF, S_CNT = 44, 45, 46, 47, 48, 49
S_WB, S_PB = 50, 51
S_W4 = 52
S_USED = 54
S_M1, S_M2 = 56, 58

V_TID, V_LANE = 0, 1
V_GK, V_GV, V_GQ, V_L16 = 2, 3, 4, 5
V_CUR, V_NXT = 6, 7
V_WP0, V_WP1 = 8, 9
V_W0, V_W1, V_W2 = 10, 11, 12
V_C, V_FLAGV = 13, 14
V_EA0, V_EA1 = 15, 28
V_T0 = 16
GM = [29, 30]
V_PF = 31
PF_LAST = 0x2180
QE = [32, 34]
QM0 = [36, 44]
QM1 = [40, 48]
KE = [52, 56]
KM = [60, 64]
VA = [68, 72]
VB = [76, 80]
P = 84
SB = [100, 132]
OA = [164, 180, 196, 212]
BE = 228
BI = 232
NV = 240
NACC = 0
RQ = [100, 112]
RAWK = 164
RAWV = 176
TD = 188
Y = 100
RAWK1, RAWV1 = 112, 124
GO = [132, 148]
UREG = 136
GREG = 156
PK = 32
I4 = 160

p = Prog()
t0, t1, t2, t3 = V_T0, V_T0 + 1, V_T0 + 2, V_T0 + 3
NSTAMP = [0]


def stamp():
    if STAMP:
        k = NSTAMP[0]
        NSTAMP[0] += 1
        p.salu(f"s_memtime s[{64 + 2 * k}:{65 + 2 * k}]")
        p.raw("s_waitcnt lgkmcnt(0)", "wait")
        p.lds_pend = []


def soft_label(name):
    p.ins.append(Inst(f"{name}:", "label2", ws=0))


def zero_ws(idx):
    for i in p.ins[idx:]:
        i.ws = 0


def load_rows(dst, voff, srd, soff, off=0):
    p.bload(4, dst, voff, srd, soff, off)
    p.bload(4, dst + 4, voff, srd, soff, off + 16)
    p.bload(1, dst + 8, voff, srd, soff, off + 32)


def load_v(dst, soff):
    p.bload(4, dst, V_GV, S_V, soff, 0)
    p.bload(4, dst + 4, V_GV, S_V, soff, 32 * ROWB)
    p.bload(1, dst + 8, V_GK, S_V, soff, 32)


def norm_row(x, scale_reg, check, dst, hooks=None):
    ops = []
    a, b = V_T0, V_T0 + 1
    for j in range(9):
        acc = a if j % 2 == 0 else b
        c = "0" if j < 2 else f"v{acc}"
        ops.append(lambda j=j, acc=acc, c=c: p.valu(f"v_dot2_f32_bf16 v{acc}, v{x + j}, v{x + j}, {c}", wr={acc},
                                                    rd={x + j}, flags=("dot", "dotc")))
    R = V_T0 + 2
    T = [V_T0 + 4, V_T0 + 6, V_T0 + 8, V_T0 + 10]

    def unpack(j):
        t = T[j % 4]
        ops.append(lambda: p.valu(f"v_lshlrev_b32 v{t}, 16, v{x + j}", wr={t}, rd={x + j}))
        ops.append(lambda: p.valu(f"v_and_b32 v{t + 1}, s{S_HIMASK}, v{x + j}", wr={t + 1}, rd={x + j},
                                  srd={S_HIMASK}))
    unpack(0)
    unpack(1)
    ops.append(lambda: p.valu(f"v_add_f32 v{a}, v{a}, v{b}", wr={a}, rd={a, b}))
    ops.append(lambda: p.trans(f"v_sqrt_f32 v{R}, v{a}", wr={R}, rd={a}))
    if check:
        ops.append(lambda: p.valu(f"v_cmp_class_f32 vcc, v{a}, s{S_CLS}", rd={a}, swr={"vcc"}, srd={S_CLS}))
    else:
        unpack(2)
    ops.append(lambda: p.valu(f"v_add_f32 v{R}, s{S_EPS}, v{R}", wr={R}, rd={R}, srd={S_EPS}))
    ops.append(lambda: p.trans(f"v_rcp_f32 v{R}, v{R}", wr={R}, rd={R}))
    if check:
        unpack(2)
        ops.append(lambda: p.salu(f"s_or_b64 s[{S_BADM}:{S_BADM + 1}], s[{S_BADM}:{S_BADM + 1}], vcc", srd={"vcc"}))
    if scale_reg is not None:
        ops.append(lambda: p.valu(f"v_mul_f32 v{R}, v{R}, v{scale_reg}", wr={R}, rd={R, scale_reg}))
    for j in range(9):
        t = T[j % 4]
        ops.append(lambda t=t: p.valu(f"v_pk_mul_f32 v[{t}:{t + 1}], v[{t}:{t + 1}], v[{R}:{R + 1}] op_sel_hi:[1,0]",
                                      wr={t, t + 1}, rd={t, t + 1, R}))
        if j + 3 < 9:
            unpack(j + 3)
        ops.append(lambda t=t, j=j: p.valu(f"v_cvt_pk_f16_f32 v{dst[j]}, v{t}, v{t + 1}", wr={dst[j]},
                                           rd={t, t + 1}))
    for n, f in enumerate(ops):
        if hooks and n in hooks:
            hooks[n]()
        f()


def norm_row_plain(x, dst, U, hooks=None):
    ops = []
    a, b = V_T0, V_T0 + 1
    R = V_T0 + 2
    for j in range(9):
        lo, hi = U + 2 * j, U + 2 * j + 1
        ops.append(lambda j=j, lo=lo: p.valu(f"v_lshlrev_b32 v{lo}, 16, v{x + j}", wr={lo}, rd={x + j}))
        ops.append(lambda j=j, hi=hi: p.valu(f"v_and_b32 v{hi}, s{S_HIMASK}, v{x + j}", wr={hi}, rd={x + j},
                                             srd={S_HIMASK}))
        for acc, u in ((a, lo), (b, hi)):
            if j == 0:
                ops.append(lambda acc=acc, u=u: p.valu(f"v_mul_f32 v{acc}, v{u}, v{u}", wr={acc}, rd={u}))
            else:
                ops.append(lambda acc=acc, u=u: p.valu(f"v_fmac_f32 v{acc}, v{u}, v{u}", wr={acc}, rd={u, acc}))
    ops.append(lambda: p.valu(f"v_add_f32 v{a}, v{a}, v{b}", wr={a}, rd={a, b}))
    ops.append(lambda: p.trans(f"v_sqrt_f32 v{R}, v{a}", wr={R}, rd={a}))
    ops.append(lambda: p.valu(f"v_cmp_class_f32 vcc, v{a}, s{S_CLS}", rd={a}, swr={"vcc"}, srd={S_CLS}))
    ops.append(lambda: p.valu(f"v_add_f32 v{R}, s{S_EPS}, v{R}", wr={R}, rd={R}, srd={S_EPS}))
    ops.append(lambda: p.trans(f"v_rcp_f32 v{R}, v{R}", wr={R}, rd={R}))
    ops.append(lambda: p.salu(f"s_or_b64 s[{S_BADM}:{S_BADM + 1}], s[{S_BADM}:{S_BADM + 1}], vcc", srd={"vcc"}))
    for j in range(9):
        lo, hi = U + 2 * j, U + 2 * j + 1
        ops.append(lambda lo=lo: p.valu(f"v_mul_f32 v{lo}, v{lo}, v{R}", wr={lo}, rd={lo, R}))
        ops.append(lambda hi=hi: p.valu(f"v_mul_f32 v{hi}, v{hi}, v{R}", wr={hi}, rd={hi, R}))
        ops.append(lambda j=j, lo=lo, hi=hi: p.valu(f"v_cvt_pk_f16_f32 v{dst[j]}, v{lo}, v{hi}", wr={dst[j]},
                                                    rd={lo, hi}))
    for n, f in enumerate(ops):
        if hooks and n in hooks:
            hooks[n]()
        f()


def norm_row_mfma(x, dst, U, GR, hooks=None, nops=True):
    ops = []
    a = V_T0
    R = V_T0 + 2
    OP = "v_mfma_f32_4x4x4_16b_bf16"
    for g in range(5):
        ops.append(lambda g=g: p.mfma(OP, GR, 4, x + 2 * g, 2, x + 2 * g, 2, None if g == 0 else GR, 2))
        ops.append(lambda g=g: p.mfma(OP, U + 4 * g, 4, I4, 2, x + 2 * g, 2, None, 2))
        ops.append(lambda: p.nop(1) if nops else None)
    ops.append(lambda: p.valu(f"v_cndmask_b32 v{a}, v{GR}, v{GR + 1}, s[{S_M1}:{S_M1 + 1}]", wr={a}, rd={GR, GR + 1}))
    ops.append(lambda: p.valu(f"v_cndmask_b32 v{a + 1}, v{GR + 2}, v{GR + 3}, s[{S_M1}:{S_M1 + 1}]", wr={a + 1},
                              rd={GR + 2, GR + 3}))
    ops.append(lambda: p.valu(f"v_cndmask_b32 v{a}, v{a}, v{a + 1}, s[{S_M2}:{S_M2 + 1}]", wr={a}, rd={a, a + 1}))
    ops.append(lambda: p.trans(f"v_sqrt_f32 v{R}, v{a}", wr={R}, rd={a}))
    ops.append(lambda: p.valu(f"v_cmp_class_f32 vcc, v{a}, s{S_CLS}", rd={a}, swr={"vcc"}, srd={S_CLS}))
    ops.append(lambda: p.valu(f"v_add_f32 v{R}, s{S_EPS}, v{R}", wr={R}, rd={R}, srd={S_EPS}))
    ops.append(lambda: p.trans(f"v_rcp_f32 v{R}, v{R}", wr={R}, rd={R}))
    ops.append(lambda: p.salu(f"s_or_b64 s[{S_BADM}:{S_BADM + 1}], s[{S_BADM}:{S_BADM + 1}], vcc", srd={"vcc"}))
    for j in range(9):
        lo, hi = U + 2 * j, U + 2 * j + 1
        ops.append(lambda lo=lo: p.valu(f"v_mul_f32 v{lo}, v{lo}, v{R}", wr={lo}, rd={lo, R}))
        ops.append(lambda hi=hi: p.valu(f"v_mul_f32 v{hi}, v{hi}, v{R}", wr={hi}, rd={hi, R}))
        ops.append(lambda j=j, lo=lo, hi=hi: p.valu(f"v_cvt_pk_f16_f32 v{dst[j]}, v{lo}, v{hi}", wr={dst[j]},
                                                    rd={lo, hi}))
    for n, f in enumerate(ops):
        if hooks and n in hooks:
            hooks[n]()
        f()


def T1(raw):
    p.mfma("v_mfma_f32_32x32x16_bf16", TD, 16, raw, 4, BI, 4, None, 8)


def T2(raw):
    p.mfma("v_mfma_f32_32x32x16_bf16", TD + 16, 16, raw + 4, 4, BI, 4, None, 8)


def T12(raw):
    T1(raw)
    T2(raw)


def T3(raw):
    p.mfma("v_mfma_f32_32x32x4_2b_bf16", TD, 32, raw + 8, 2, BE, 2, TD, 16)


def kv_compute(rawk, rawv, first, lead=0, fast=False):
    if fast:
        hooks = {21: lambda: T1(rawv), 22: lambda: T2(rawv), 34: lambda: T3(rawv)}
        T1(rawv)
        T2(rawv)
        norm_row(rawk, None, True, [Y + j for j in range(9)], hooks={10: lambda: T3(rawv)})
    else:
        if "--plain" in FLAGS:
            hooks = {lead: lambda: T1(rawv), lead + 8: lambda: T2(rawv), lead + 18: lambda: T3(rawv)}
            norm_row_plain(rawk, [Y + j for j in range(9)], UREG, hooks=hooks)
        else:
            hooks = {0: lambda: T12(rawv), 15: lambda: T3(rawv)}
            norm_row_mfma(rawk, [Y + j for j in range(9)], UREG, GREG, hooks=hooks)
    if first:
        p.salu(f"s_cmp_lg_u32 s{S_CNT}, 1")
        p.salu("s_cbranch_scc1 L_nosample")
        idx = len(p.ins)
        m = V_T0
        p.valu(f"v_max_f32 v{m}, |v{TD}|, |v{TD + 1}|", wr={m}, rd={TD, TD + 1})
        for r in range(2, 32, 2):
            p.valu(f"v_max3_f32 v{m}, |v{TD + r}|, |v{TD + r + 1}|, v{m}", wr={m}, rd={TD + r, TD + r + 1, m})
        p.valu(f"v_cmp_gt_f32 vcc, s{S_THR}, v{m}", rd={m}, swr={"vcc"}, srd={S_THR})
        p.salu(f"s_and_b64 vcc, vcc, s[{S_USED}:{S_USED + 1}]", srd={"vcc"})
        p.salu(f"s_or_b64 s[{S_BADM}:{S_BADM + 1}], s[{S_BADM}:{S_BADM + 1}], vcc")
        soft_label("L_nosample")
        zero_ws(idx)
    for f in range(4):
        for j in range(4):
            r = TD + 8 * f + 2 * j
            d = TD + 8 * f + j
            p.valu(f"v_cvt_pk_f16_f32 v{d}, v{r}, v{r + 1}", wr={d}, rd={r, r + 1})


def kv_writes():
    w = [lambda: p.ds_write("ds_write_b128", V_W0, Y, 4, 0),
         lambda: p.ds_write("ds_write_b128", V_W0, Y + 4, 4, 512),
         lambda: p.ds_write("ds_write_b64", V_W1, Y + 8, 2, 2048),
         lambda: p.ds_write("ds_write_b64", V_W1, Y + 8, 2, 2048 + 512)]
    for f in range(4):
        w.append(lambda f=f: p.ds_write("ds_write_b128", V_W2, TD + 8 * f, 4, 3072 + 1024 * f))
    return w


def kv_loads(soff):
    return [lambda: p.bload(4, RAWV, V_GV, S_V, soff, 0),
            lambda: p.bload(4, RAWV + 4, V_GV, S_V, soff, 32 * ROWB),
            lambda: p.bload(1, RAWV + 8, V_GK, S_V, soff, 32),
            lambda: p.bload(4, RAWK, V_GK, S_K, soff, 0),
            lambda: p.bload(4, RAWK + 4, V_GK, S_K, soff, 16),
            lambda: p.bload(1, RAWK + 8, V_GK, S_K, soff, 32)]


def set_waddr(sbase):
    p.valu(f"v_add_u32 v{V_W0}, {sbase}, v{V_WP0}", wr={V_W0}, rd={V_WP0})
    p.valu(f"v_add_u32 v{V_W1}, {sbase}, v{V_WP1}", wr={V_W1}, rd={V_WP1})
    p.valu(f"v_add_u32 v{V_W2}, {sbase}, v{V_L16}", wr={V_W2}, rd={V_L16})


def q_prep(raw, hq, scale_reg, magic, check, hooks=None):
    dst = [QM0[hq] + j for j in range(4)] + [QM1[hq] + j for j in range(4)] + [QE[hq]]
    norm_row(raw, scale_reg, check, dst, hooks)
    p.valu(f"v_mov_b32 v{QE[hq] + 1}, 0x{magic:08x}", wr={QE[hq] + 1})
    for j in range(4):
        a, b = QM0[hq] + j, QM1[hq] + j
        p.valu(f"v_permlane32_swap_b32 v{a}, v{b}", wr={a, b}, rd={a, b}, flags=("permlane",))


if STAMP:
    p.salu("s_memrealtime s[60:61]")
stamp()
p.salu("s_cmp_ge_u32 s2, 256")
p.salu("s_cbranch_scc1 L_end")
p.salu("s_load_dwordx8 s[4:11], s[0:1], 0")
p.salu("s_load_dwordx2 s[12:13], s[0:1], 32")
if "--pf" in FLAGS:
    p.salu("s_getpc_b64 s[14:15]")
    p.valu(f"v_lshlrev_b32 v{t3}, 7, v{V_TID}", wr={t3}, rd={V_TID})
    p.valu(f"v_min_u32 v{t3}, 0x{PF_LAST:x}, v{t3}", wr={t3}, rd={t3})
    p.add(Inst(f"global_load_dword v{V_PF}, v{t3}, s[14:15]", "vmem", wr={V_PF}, rd={t3}))
    p.vm_pend.append({V_PF})
p.valu(f"v_lshrrev_b32 v{t0}, 6, v{V_TID}", wr={t0}, rd={V_TID})
p.salu(f"s_and_b32 s{S_TMP}, s2, 7")
p.salu(f"s_lshr_b32 s{S_TMP2}, s2, 3")
p.valu(f"v_readfirstlane_b32 s{S_WAVE}, v{t0}", rd={t0}, swr={S_WAVE}, flags=("readlane",))
p.salu(f"s_and_b32 s{S_QB}, s{S_TMP2}, 3")
p.salu(f"s_lshr_b32 s{S_TMP2}, s{S_TMP2}, 2")
p.salu(f"s_lshl_b32 s{S_HEAD}, s{S_TMP}, 3")
p.salu(f"s_add_u32 s{S_HEAD}, s{S_HEAD}, s{S_TMP2}")
p.salu(f"s_mul_i32 s{S_KOFF}, s{S_HEAD}, {2048 * ROWB}")
p.salu(f"s_mul_i32 s{S_TMP}, s{S_QB}, {512 * ROWB}")
p.salu(f"s_add_u32 s{S_QOFF}, s{S_KOFF}, s{S_TMP}")
p.salu(f"s_and_b32 s{S_W4}, s{S_WAVE}, 3", srd={S_WAVE})
p.salu(f"s_mul_i32 s{S_TMP}, s{S_W4}, {128 * ROWB}")
p.salu(f"s_add_u32 s{S_QOFF}, s{S_QOFF}, s{S_TMP}")
p.valu(f"v_and_b32 v{V_LANE}, 63, v{V_TID}", wr={V_LANE}, rd={V_TID})
p.valu(f"v_and_b32 v{t0}, 0xff, v{V_TID}", wr={t0}, rd={V_TID})
p.valu(f"v_mul_u32_u24 v{V_GK}, {ROWB}, v{t0}", wr={V_GK}, rd={t0})
p.valu(f"v_mul_u32_u24 v{V_GQ}, {ROWB}, v{V_LANE}", wr={V_GQ}, rd={V_LANE})
p.valu(f"v_and_b32 v{t0}, 0xdf, v{V_TID}", wr={t0}, rd={V_TID})
p.valu(f"v_mul_u32_u24 v{V_GV}, {ROWB}, v{t0}", wr={V_GV}, rd={t0})
p.valu(f"v_lshrrev_b32 v{t1}, 5, v{V_LANE}", wr={t1}, rd={V_LANE})
p.valu(f"v_lshl_add_u32 v{V_GV}, v{t1}, 4, v{V_GV}", wr={V_GV}, rd={t1, V_GV})
p.salu(f"s_and_b32 s{S_TMP}, s{S_HEAD}, 30")
p.salu(f"s_lshl_b32 s{S_TMP}, s{S_TMP}, 1")
p.salu(f"s_add_u32 s{S_SOFF}, s{S_KOFF}, {CHUNKB}")
p.raw("s_waitcnt lgkmcnt(0)", "wait")
p.salu(f"s_load_dword s{S_T}, s[10:11], s{S_TMP}")
for srd, ptr in ((S_K, 6), (S_V, 8), (S_Q, 4), (S_O, 12)):
    p.salu(f"s_mov_b32 s{srd}, s{ptr}")
    p.salu(f"s_mov_b32 s{srd + 1}, s{ptr + 1}")
    p.salu(f"s_mov_b32 s{srd + 2}, {TENSOR_BYTES}")
    p.salu(f"s_mov_b32 s{srd + 3}, 0x00020000")


def consts():
    p.salu(f"s_mov_b32 s{S_HIMASK}, 0xffff0000")
    p.salu(f"s_mov_b32 s{S_EPS}, 0x{f32bits(1e-6):08x}")
    p.salu(f"s_mov_b32 s{S_CLS}, 0x207")
    p.salu(f"s_mov_b64 s[{S_BADM}:{S_BADM + 1}], 0")
    p.valu(f"v_mov_b32 v{V_FLAGV}, 0x{FLAG:x}", wr={V_FLAGV})


def ident():
    for i in range(4):
        p.valu(f"v_mov_b32 v{BI + i}, 0", wr={BI + i})
    p.valu(f"v_mov_b32 v{BE}, 0", wr={BE})
    p.valu(f"v_mov_b32 v{BE + 1}, 0", wr={BE + 1})
    p.salu(f"s_mov_b32 s{S_TMP}, 0x3f80")
    p.salu(f"s_mov_b32 s{S_TMP2}, 0x3f800000")
    for k in range(16):
        lane = (k // 8) * 32 + drow(k)
        i = (k % 8) // 2
        p.valu(f"v_writelane_b32 v{BI + i}, s{S_TMP if k % 2 == 0 else S_TMP2}, {lane}", wr={BI + i}, rd={BI + i})
    for col, reg, val in ((drow(16), BE, S_TMP), (drow(17), BE, S_TMP2), (18, BE + 1, S_TMP), (22, BE + 1, S_TMP)):
        for h in range(2):
            p.valu(f"v_writelane_b32 v{reg}, s{val}, {col + 32 * h}", wr={reg}, rd={reg})


def t_check(target):
    p.raw("s_waitcnt lgkmcnt(0)", "wait")
    p.salu(f"s_lshl_b32 s{S_TMP}, s{S_T}, 16")
    p.salu(f"s_and_b32 s{S_TMP2}, s{S_T}, 0xffff0000")
    p.salu(f"s_bitcmp1_b32 s{S_HEAD}, 0")
    p.salu(f"s_cselect_b32 s{S_T}, s{S_TMP2}, s{S_TMP}")
    p.valu(f"v_mov_b32 v{V_C}, 0x{f32bits(LOG2E):08x}", wr={V_C})
    p.valu(f"v_mul_f32 v{V_C}, s{S_T}, v{V_C}", wr={V_C}, rd={V_C})
    p.salu(f"s_and_b32 s{S_TMP}, s{S_T}, 0x7fffffff")
    if FORCE_GENERIC:
        p.salu(f"s_branch {target}")
    else:
        p.salu(f"s_cmp_gt_u32 s{S_TMP}, 0x{T_MAX_BITS:x}")
        p.salu(f"s_cbranch_scc1 {target}")


p.salu(f"s_cmp_ge_u32 s{S_WAVE}, 4")
p.salu("s_cbranch_scc0 L_compute" if "--prodlast" in FLAGS else "s_cbranch_scc1 L_compute")
idx = len(p.ins)
vm_save = list(p.vm_pend)
load_v(RAWV1, f"s{S_KOFF}")
load_rows(RAWK1, V_GK, S_K, f"s{S_KOFF}")
vm_prod = list(p.vm_pend)
p.salu("s_branch L_producer")
soft_label("L_compute")
zero_ws(idx)
p.vm_pend = vm_save

load_rows(RQ[0], V_GQ, S_Q, f"s{S_QOFF}")
if "--qtogether" in FLAGS:
    load_rows(RQ[1], V_GQ, S_Q, f"s{S_QOFF}", 64 * ROWB)
consts()
p.valu(f"v_lshlrev_b32 v{V_CUR}, 4, v{V_LANE}", wr={V_CUR}, rd={V_LANE})
p.valu(f"v_add_u32 v{V_NXT}, 0x{BUF:x}, v{V_CUR}", wr={V_NXT}, rd={V_CUR})
p.valu(f"v_and_b32 v{t0}, 31, v{V_LANE}", wr={t0}, rd={V_LANE})
p.valu(f"v_mul_u32_u24 v{t2}, {ROWB}, v{t0}", wr={t2}, rd={t0})
p.valu(f"v_mul_u32_u24 v{V_EA0}, 20, v{t1}", wr={V_EA0}, rd={t1})
p.valu(f"v_add_u32 v{V_EA0}, v{V_EA0}, v{t2}", wr={V_EA0}, rd={V_EA0, t2})
p.valu(f"v_lshl_add_u32 v{V_EA1}, v{t1}, 30, v{t2}", wr={V_EA1}, rd={t1, t2})
for r in list(range(OA[0], OA[0] + 64)) + list(range(P + 8, P + 16)) + list(range(VB[1], VB[1] + 4)) + list(range(VA[1], VA[1] + 4)):
    p.valu(f"v_mov_b32 v{r}, 0", wr={r})
if "--qtogether" not in FLAGS:
    load_rows(RQ[1], V_GQ, S_Q, f"s{S_QOFF}", 64 * ROWB)
t_check("L_generic")
stamp()
q_prep(RQ[0], 0, V_C, MAGIC_B, True)
q_prep(RQ[1], 1, V_C, MAGIC_B, True)
stamp()
p.raw("s_barrier", "salu")
stamp()

F16 = "v_mfma_f32_32x32x16_f16"


def taddr(j):
    return (V_CUR if j < 8 else V_NXT), ((j % 8) // 2) * PAIR, j % 2


def rd_km(j):
    a, o, tp = taddr(j)
    p.ds_read("ds_read_b128", KM[j % 2], 4, a, o + 1024 * tp)


def rd_ke(j):
    a, o, tp = taddr(j)
    assert tp == 0
    p.ds_read("ds_read_b128", KE[(j // 2) % 2], 4, a, o + 2048)


def rd_va(j):
    a, o, tp = taddr(j)
    p.ds_read("ds_read_b128", VA[j % 2], 4, a, o + 3072 + 2048 * tp)


def rd_vb(j):
    a, o, tp = taddr(j)
    p.ds_read("ds_read_b128", VB[j % 2], 4, a, o + 4096 + 2048 * tp)


M3F = ["--m3first" in FLAGS]
SCHED2 = "--sched1" not in FLAGS and not M3F[0]


def M1(m):
    p.mfma(F16, SB[m % 2], 16, KM[(m // 2) % 2], 4, QM0[m % 2], 4, SB[m % 2] if M3F[0] else None, 8)


def M2(m):
    p.mfma(F16, SB[m % 2] + 16, 16, KM[(m // 2) % 2], 4, QM1[m % 2], 4, SB[m % 2] + 16 if M3F[0] else None, 8)


def M3(m):
    j = m // 2
    p.mfma("v_mfma_f32_32x32x4_2b_f16", SB[m % 2], 32, KE[(j // 2) % 2] + 2 * (j % 2), 2, QE[m % 2], 2,
           None if M3F[0] else SB[m % 2], 16)


def PV(which, m):
    j = m // 2
    o = OA[2 * (m % 2) + (0 if which <= 2 else 1)]
    v = VA[j % 2] if which % 2 == 1 else VB[j % 2]
    p.mfma(F16, o, 16, v, 4, P + 4 * (which - 1), 4, o, 8)


def G(g, m, mid=None):
    s = SB[m % 2] + 4 * g
    d = P + 2 * g
    p.trans(f"v_exp_f16 v{d}, v{s}", wr={d}, rd={s})
    p.trans(f"v_exp_f16 v{d + 1}, v{s + 2}", wr={d + 1}, rd={s + 2})
    p.trans(f"v_exp_f16_sdwa v{d}, v{s + 1} dst_sel:WORD_1 dst_unused:UNUSED_PRESERVE src0_sel:WORD_0",
            wr={d}, rd={s + 1, d}, flags=("sdwa",))
    if mid:
        mid()
    p.trans(f"v_exp_f16_sdwa v{d + 1}, v{s + 3} dst_sel:WORD_1 dst_unused:UNUSED_PRESERVE src0_sel:WORD_0",
            wr={d + 1}, rd={s + 3, d + 1}, flags=("sdwa",))


PREP_AT = opt("prepat", 5)


def chunk_body(tag):
    for m in range(16):
        j = m // 2
        sq = []
        if m == BAR_AT and "--nobar" not in FLAGS:
            assert m % 2 == 1
            sq = [None, None, None, None, None, lambda: p.raw("s_barrier", "salu")]
        if m == 15:
            sq = [lambda: p.salu(f"s_add_u32 s{S_WB}, s{S_WB}, {BUF}"),
                  lambda: p.salu(f"s_cmp_ge_u32 s{S_WB}, {NBUF * BUF}"),
                  lambda: p.salu(f"s_cselect_b32 s{S_WB}, 0, s{S_WB}"),
                  lambda: p.salu(f"s_add_u32 s{S_CNT}, s{S_CNT}, 1"),
                  lambda: p.salu(f"s_cmp_lt_u32 s{S_CNT}, 8")]

        def X():
            if sq:
                f = sq.pop(0)
                if f:
                    f()

        if SCHED2:
            G(0, m)
            PV(3, m - 1)
            if m % 2 == 0:
                p.wait_lds(0)
                rd_km(j + 2)
                if j % 2 == 0:
                    rd_ke(j + 2)
            X()
            G(1, m)
            PV(4, m - 1)
            if m % 2 == 0:
                rd_vb(j + 1)
                rd_va(j + 1)
            X()
            G(2, m)
            M3(m + 1)
            G(3, m)
            if opt("idle", 0):
                p.nop(opt("idle", 0))
            G(4, m)
            PV(1, m)
            X()
            if m == 15:
                p.valu(f"v_mov_b32 v{V_CUR}, v{V_NXT}", wr={V_CUR}, rd={V_NXT})
                p.valu(f"v_lshl_add_u32 v{V_NXT}, v{V_LANE}, 4, s{S_WB}", wr={V_NXT}, rd={V_LANE})
            G(5, m)
            PV(2, m)
            X()
            G(6, m)
            M1(m + 2)
            X()
            G(7, m)
            M2(m + 2)
            X()
            assert not sq
            continue
        if M3F[0]:
            G(0, m)
            G(1, m)
            PV(4, m - 1)
            if m % 2 == 0:
                p.wait_lds(0)
                rd_vb(j + 1)
                rd_va(j + 1)
            X()
            G(2, m)
            PV(1, m)
            X()
            G(3, m)
            M1(m + 1)
            X()
            if m == 15:
                p.valu(f"v_mov_b32 v{V_CUR}, v{V_NXT}", wr={V_CUR}, rd={V_NXT})
                p.valu(f"v_lshl_add_u32 v{V_NXT}, v{V_LANE}, 4, s{S_WB}", wr={V_NXT}, rd={V_LANE})
            G(4, m)
            PV(2, m)
            X()
            G(5, m)
            M2(m + 1)
            if m % 2 == 0:
                rd_km(j + 2)
                if j % 2 == 0:
                    rd_ke(j + 2)
            X()
            G(6, m)
            PV(3, m)
            X()
            G(7, m)
            M3(m + 2)
            assert not sq
            continue
        G(0, m)
        M2(m + 1)
        if m % 2 == 0:
            p.wait_lds(0)
            rd_km(j + 2)
            if j % 2 == 0:
                rd_ke(j + 2)
        X()
        G(1, m)
        PV(4, m - 1)
        if m % 2 == 0:
            rd_vb(j + 1)
            rd_va(j + 1)
        X()
        G(2, m)
        PV(1, m)
        X()
        G(3, m, mid=lambda: M3(m + 1))
        if m == 15:
            p.valu(f"v_mov_b32 v{V_CUR}, v{V_NXT}", wr={V_CUR}, rd={V_NXT})
            p.valu(f"v_lshl_add_u32 v{V_NXT}, v{V_LANE}, 4, s{S_WB}", wr={V_NXT}, rd={V_LANE})
        G(4, m)
        G(5, m)
        PV(2, m)
        X()
        G(6, m)
        M1(m + 2)
        X()
        G(7, m)
        PV(3, m)
        X()
        assert not sq


assert BAR_AT <= 11
p.salu(f"s_mov_b32 s{S_CNT}, 0")
p.salu(f"s_mov_b32 s{S_WB}, {BUF}")
rd_km(0)
rd_ke(0)
rd_km(1)
rd_vb(0)
rd_va(0)
if M3F[0]:
    M3(0)
    M1(0)
    M2(0)
    M3(1)
elif SCHED2:
    M1(0)
    M2(0)
    M1(1)
    M2(1)
    M3(0)
else:
    M1(0)
    M2(0)
    M1(1)
    M3(0)
p.wait_lds(0)
p.nop(20)

saved = (p.ins, p.nops_inserted)
p.ins = []
p.lds_pend = []
p.vm_pend = []
chunk_body("d")
tail = p.ins[-60:]
steady = list(p.lds_pend)
p.ins, p.nops_inserted = saved
p.ins.append(Inst(".p2align 6", "other", ws=0))
p.label("L_loop")
for i in tail:
    g = copy.copy(i)
    g.flags = set(g.flags) | {"ghost"}
    p.ins.append(g)
p.lds_pend = list(steady)
p.vm_pend = []
chunk_body("A")
assert [sorted(x) for x in p.lds_pend] == [sorted(x) for x in steady], (p.lds_pend, steady)
p.salu("s_cbranch_scc1 L_loop")
if SCHED2:
    PV(3, 15)
PV(4, 15)
stamp()
p.ds_read("ds_read_b32", V_FLAGV, 1, V_FLAGV, 0)


def epilogue(o_regs, soff, off0, ybase):
    for ti, o in enumerate(o_regs):
        R = V_T0 + 4 + 2 * ti
        y = ybase + 8 * ti
        p.trans(f"v_rcp_f32 v{R}, v{o + 10}", wr={R}, rd={o + 10})
        for j in range(5):
            p.valu(f"v_pk_mul_f32 v[{o + 2 * j}:{o + 2 * j + 1}], v[{o + 2 * j}:{o + 2 * j + 1}], v[{R}:{R + 1}] op_sel_hi:[1,0]",
                   wr={o + 2 * j, o + 2 * j + 1}, rd={o + 2 * j, o + 2 * j + 1, R})
        for j in range(5):
            p.valu(f"v_cvt_pk_bf16_f32 v{y + j}, v{o + 2 * j}, v{o + 2 * j + 1}", wr={y + j},
                   rd={o + 2 * j, o + 2 * j + 1})
        p.bstore(4, y, V_EA0, S_O, soff, off0 + ti * 32 * ROWB)
        p.bstore(1, y + 4, V_EA1, S_O, soff, off0 + ti * 32 * ROWB + 16)


o = OA[0]
p.valu(f"v_add_f32 v{t0}, |v{o}|, |v{o + 1}|", wr={t0}, rd={o, o + 1})
for r in range(2, 10):
    p.valu(f"v_add_f32 v{t0}, |v{o + r}|, v{t0}", wr={t0}, rd={o + r, t0})
p.valu(f"v_cmp_class_f32 vcc, v{t0}, s{S_CLS}", rd={t0}, swr={"vcc"}, srd={S_CLS})
p.valu(f"v_readfirstlane_b32 s{S_BAD}, v{V_FLAGV}", rd={V_FLAGV}, swr={S_BAD}, flags=("readlane",))
p.salu(f"s_or_b64 s[{S_BADM}:{S_BADM + 1}], s[{S_BADM}:{S_BADM + 1}], vcc", srd={"vcc"})
p.salu(f"s_or_b32 s{S_BAD}, s{S_BAD}, s{S_BADM}", srd={S_BAD})
p.salu(f"s_or_b32 s{S_BAD}, s{S_BAD}, s{S_BADM + 1}")
p.salu("s_cbranch_scc1 L_generic")
epilogue(OA[0:2], f"s{S_QOFF}", 0, P)
epilogue(OA[2:4], f"s{S_QOFF}", 64 * ROWB, KE[0])
if STAMP:
    stamp()
    p.salu("s_memrealtime s[62:63]")
    p.salu(f"s_load_dwordx2 s[56:57], s[0:1], {40 if '--dbgstamp' in FLAGS else 48}")
    p.raw("s_waitcnt lgkmcnt(0)", "wait")
    k = NSTAMP[0]
    NSTAMP[0] += 2
    p.salu(f"s_sub_u32 s{64 + 2 * k}, s62, s60")
    p.salu(f"s_add_u32 s{64 + 2 * k}, s{64 + 2 * k}, s64")
    p.salu(f"s_add_u32 s{66 + 2 * k}, s60, s64")
    p.salu("s_mov_b32 s58, 0x1000000")
    p.salu("s_mov_b32 s59, 0x00020000")
    p.valu(f"v_mov_b32 v{t2}, 0", wr={t2})
    for k in range(NSTAMP[0]):
        p.salu(f"s_sub_u32 s{S_TMP}, s{64 + 2 * k}, s64")
        p.valu(f"v_mov_b32 v{t1}, s{S_TMP}", wr={t1})
        p.valu(f"v_cmp_eq_u32 vcc, {k}, v{V_LANE}", rd={V_LANE}, swr={"vcc"})
        p.valu(f"v_cndmask_b32 v{t2}, v{t2}, v{t1}, vcc", wr={t2}, rd={t2, t1}, srd={"vcc"})
    if "--dbgstamp" in FLAGS:
        p.salu("s_mov_b32 s58, 64")
        p.salu(f"s_lshl_b32 s{S_TMP}, s2, 3")
        p.salu(f"s_add_u32 s{S_TMP}, s{S_TMP}, s{S_WAVE}")
        p.salu(f"s_mov_b32 s{S_TMP2}, 0x1000")
        p.salu(f"s_cmp_eq_u32 s{S_TMP}, {5 * 8}")
        p.salu(f"s_cselect_b32 s{S_TMP2}, 0, s{S_TMP2}")
        p.salu(f"s_cmp_eq_u32 s{S_TMP}, {200 * 8 + 3}")
        p.salu(f"s_cselect_b32 s{S_TMP2}, 32, s{S_TMP2}")
        p.valu(f"v_lshlrev_b32 v{t1}, 2, v{V_LANE}", wr={t1}, rd={V_LANE})
        p.valu(f"v_cmp_lt_u32 vcc, 7, v{V_LANE}", rd={V_LANE}, swr={"vcc"})
        p.valu(f"v_mov_b32 v{t3}, 0x1000", wr={t3})
        p.valu(f"v_cndmask_b32 v{t1}, v{t1}, v{t3}, vcc", wr={t1}, rd={t1, t3}, srd={"vcc"})
        p.valu(f"v_add_u32 v{t1}, s{S_TMP2}, v{t1}", wr={t1}, rd={t1})
        p.bstore(1, t2, t1, 56, "0", 0)
    else:
        p.valu(f"v_mov_b32 v{t1}, s2", wr={t1})
        p.valu(f"v_lshlrev_b32 v{t1}, 9, v{t1}", wr={t1}, rd={t1})
        p.valu(f"v_and_b32 v{t3}, 0xff, v{V_TID}", wr={t3}, rd={V_TID})
        p.valu(f"v_add_u32 v{t1}, v{t1}, v{t3}", wr={t1}, rd={t1, t3})
        p.valu(f"v_lshlrev_b32 v{t1}, 2, v{t1}", wr={t1}, rd={t1})
        p.bstore(1, t2, t1, 56, "0", 0)
p.label("L_end")
p.salu("s_endpgm")

p.label("L_producer")
p.lds_pend = []
p.vm_pend = vm_prod
p.salu(f"s_setprio {opt('pprio', 3)}")
consts()
p.salu(f"s_mov_b32 s{S_THR}, 0x{f32bits(2.0 ** -9):08x}")
p.salu(f"s_mov_b32 s{S_USED}, 0x{USED_MASK32:08x}")
p.salu(f"s_mov_b32 s{S_USED + 1}, 0x{USED_MASK32:08x}")
p.salu(f"s_mul_i32 s{S_PB}, s{S_W4}, {PAIR}")
p.valu(f"v_lshrrev_b32 v{t1}, 5, v{V_LANE}", wr={t1}, rd={V_LANE})
p.valu(f"v_lshl_add_u32 v{V_L16}, v{V_LANE}, 4, s{S_PB}", wr={V_L16}, rd={V_LANE})
p.valu(f"v_and_b32 v{t0}, 31, v{V_LANE}", wr={t0}, rd={V_LANE})
p.valu(f"v_lshl_add_u32 v{t2}, v{t0}, 4, s{S_PB}", wr={t2}, rd={t0})
p.valu(f"v_lshl_add_u32 v{V_WP0}, v{t1}, 10, v{t2}", wr={V_WP0}, rd={t1, t2})
p.valu(f"v_lshl_add_u32 v{V_WP1}, v{t1}, 3, v{t2}", wr={V_WP1}, rd={t1, t2})
ident()
p.valu(f"v_mov_b32 v{RAWV + 9}, 0x3f80", wr={RAWV + 9})
p.valu(f"v_mov_b32 v{RAWV1 + 9}, 0x3f80", wr={RAWV1 + 9})
p.valu(f"v_mov_b32 v{Y + 9}, 0x{MAGIC_A:08x}", wr={Y + 9})
p.valu(f"v_mov_b32 v{RAWK + 9}, 0", wr={RAWK + 9})
p.salu(f"s_mov_b32 s{S_M1}, 0xaaaaaaaa")
p.salu(f"s_mov_b32 s{S_M1 + 1}, 0xaaaaaaaa")
p.salu(f"s_mov_b32 s{S_M2}, 0xcccccccc")
p.salu(f"s_mov_b32 s{S_M2 + 1}, 0xcccccccc")
p.valu(f"v_mov_b32 v{t2}, 0x3f80", wr={t2})
p.valu(f"v_mov_b32 v{t3}, 0x3f800000", wr={t3})
p.valu(f"v_cndmask_b32 v{t2}, v{t2}, v{t3}, s[{S_M1}:{S_M1 + 1}]", wr={t2}, rd={t2, t3})
p.valu(f"v_mov_b32 v{t1}, 0", wr={t1})
p.valu(f"v_cndmask_b32 v{I4}, v{t2}, v{t1}, s[{S_M2}:{S_M2 + 1}]", wr={I4}, rd={t2, t1})
p.valu(f"v_cndmask_b32 v{I4 + 1}, v{t1}, v{t2}, s[{S_M2}:{S_M2 + 1}]", wr={I4 + 1}, rd={t2, t1})
p.ds_write("ds_write_b32", V_FLAGV, t1, 1, 0)
set_waddr("0")
kv_compute(RAWK1, RAWV1, False, fast=("--slowfirst" not in FLAGS))
for f in kv_writes():
    f()
t_check("L_end2")
p.lds_pend = []
p.raw("s_barrier", "salu")
S_VOFF = S_QH
ld = kv_loads(f"s{S_SOFF}")
for f in ld:
    f()
p.salu(f"s_mov_b32 s{S_CNT}, 1")
p.salu(f"s_mov_b32 s{S_WB}, {BUF}")
p.salu(f"s_add_u32 s{S_VOFF}, s{S_SOFF}, {CHUNKB}")
T12(RAWV)
T3(RAWV)
for f in kv_loads(f"s{S_VOFF}")[:3]:
    f()
m = V_T0
p.valu(f"v_max_f32 v{m}, |v{TD}|, |v{TD + 1}|", wr={m}, rd={TD, TD + 1})
for r in range(2, 32, 2):
    p.valu(f"v_max3_f32 v{m}, |v{TD + r}|, |v{TD + r + 1}|, v{m}", wr={m}, rd={TD + r, TD + r + 1, m})
p.valu(f"v_cmp_gt_f32 vcc, s{S_THR}, v{m}", rd={m}, swr={"vcc"}, srd={S_THR})
p.salu(f"s_and_b64 vcc, vcc, s[{S_USED}:{S_USED + 1}]", srd={"vcc"})
p.salu(f"s_or_b64 s[{S_BADM}:{S_BADM + 1}], s[{S_BADM}:{S_BADM + 1}], vcc")
p.nop(4)
p.label("L_ploop")
p.vm_pend = [rng(RAWK, 4), rng(RAWK + 4, 4), rng(RAWK + 8, 1), rng(RAWV, 4), rng(RAWV + 4, 4), rng(RAWV + 8, 1)]
if "--pidle" in FLAGS:
    p.salu("s_branch L_pnoflag")
set_waddr(f"s{S_WB}")
W = kv_writes()
cv = []
for f in range(4):
    for j in range(4):
        r = TD + 8 * f + 2 * j
        d = PK + 4 * f + j
        cv.append(lambda r=r, d=d: p.valu(f"v_cvt_pk_f16_f32 v{d}, v{r}, v{r + 1}", wr={d}, rd={r, r + 1}))


def cvn(n):
    def f():
        for _ in range(n):
            if cv:
                cv.pop(0)()
    return f


def wv(f):
    return lambda: p.ds_write("ds_write_b128", V_W2, PK + 4 * f, 4, 3072 + 1024 * f)


def seq(*fs):
    def g():
        for f in fs:
            f()
    return g


def next_k():
    p.salu(f"s_add_u32 s{S_SOFF}, s{S_SOFF}, {CHUNKB}")
    p.salu(f"s_cmp_ge_u32 s{S_CNT}, 7")
    p.salu(f"s_cselect_b32 s{S_SOFF}, 0x40000000, s{S_SOFF}")
    for f in kv_loads(f"s{S_SOFF}")[3:]:
        f()


def next_v():
    p.salu(f"s_add_u32 s{S_VOFF}, s{S_VOFF}, {CHUNKB}")
    p.salu(f"s_cmp_ge_u32 s{S_CNT}, 6")
    p.salu(f"s_cselect_b32 s{S_VOFF}, 0x40000000, s{S_VOFF}")
    for f in kv_loads(f"s{S_VOFF}")[:3]:
        f()


hooks = {}
for g in range(5):
    hooks[3 * g + 1] = cvn(1)
    hooks[3 * g + 2] = cvn(2)
hooks[5] = seq(cvn(2), wv(0))
hooks[8] = seq(cvn(2), wv(1))
hooks[14] = seq(cvn(2), wv(2))
hooks[15] = seq(cvn(4), wv(3), next_k)
hooks[16] = lambda: T1(RAWV)
hooks[23] = lambda: T2(RAWV)
hooks[33] = lambda: T3(RAWV)
hooks[36] = W[0]
norm_row_mfma(RAWK, [Y + j for j in range(9)], UREG, GREG, hooks=hooks, nops=False)
assert not cv
for f in W[1:4]:
    f()
next_v()
p.salu(f"s_cmp_lg_u32 s{S_CNT}, 7")
p.salu("s_cbranch_scc1 L_pnoflag")
idx = len(p.ins)
p.salu(f"s_or_b32 s{S_BAD}, s{S_BADM}, s{S_BADM + 1}")
p.valu(f"v_mov_b32 v{t1}, s{S_BAD}", wr={t1})
p.ds_write("ds_or_b32", V_FLAGV, t1, 1, 0)
soft_label("L_pnoflag")
zero_ws(idx)
p.wait_lds(0)
p.raw("s_barrier", "salu")
p.salu(f"s_add_u32 s{S_WB}, s{S_WB}, {BUF}")
p.salu(f"s_cmp_ge_u32 s{S_WB}, {NBUF * BUF}")
p.salu(f"s_cselect_b32 s{S_WB}, 0, s{S_WB}")
p.salu(f"s_add_u32 s{S_CNT}, s{S_CNT}, 1")
p.salu(f"s_cmp_lt_u32 s{S_CNT}, 8")
p.nop(8)
p.salu("s_cbranch_scc1 L_ploop")
p.label("L_end2")
p.salu("s_endpgm")

M3F[0] = False
p.label("L_generic")
p.flush()
p.valu(f"v_mul_u32_u24 v{V_GK}, {ROWB}, v{V_LANE}", wr={V_GK}, rd={V_LANE})
p.valu(f"v_and_b32 v{t0}, 31, v{V_LANE}", wr={t0}, rd={V_LANE})
p.valu(f"v_mul_u32_u24 v{V_GV}, {ROWB}, v{t0}", wr={V_GV}, rd={t0})
p.valu(f"v_lshrrev_b32 v{t1}, 5, v{V_LANE}", wr={t1}, rd={V_LANE})
p.valu(f"v_lshl_add_u32 v{V_GV}, v{t1}, 4, v{V_GV}", wr={V_GV}, rd={t1, V_GV})
p.valu(f"v_mov_b32 v{RAWV + 9}, 0x3f80", wr={RAWV + 9})
ident()
p.salu(f"s_mov_b32 s{S_QH}, 0")
p.flush()
p.label("L_g_half")
load_rows(RAWK, V_GQ, S_Q, f"s{S_QOFF}")
q_prep(RAWK, 0, None, 0, False)
for o in GO:
    for r in range(16):
        p.valu(f"v_mov_b32 v{o + r}, 0", wr={o + r})
for g in GM:
    p.valu(f"v_mov_b32 v{g}, 0xff7fffff", wr={g})
p.salu(f"s_mov_b32 s{S_SOFF}, s{S_KOFF}")
p.salu(f"s_mov_b32 s{S_CNT}, 0")
p.flush()
p.label("L_g_pair")
load_rows(RAWK, V_GK, S_K, f"s{S_SOFF}")
load_v(RAWV, f"s{S_SOFF}")
norm_row(RAWK, None, False, [KM[0] + j for j in range(4)] + [KM[1] + j for j in range(4)] + [KE[0]])
p.valu(f"v_mov_b32 v{KE[0] + 2}, v{KE[0]}", wr={KE[0] + 2}, rd={KE[0]})
p.valu(f"v_mov_b32 v{KE[0] + 1}, 0", wr={KE[0] + 1})
p.valu(f"v_mov_b32 v{KE[0] + 3}, 0", wr={KE[0] + 3})
for j in range(4):
    a, b = KM[0] + j, KM[1] + j
    p.valu(f"v_permlane32_swap_b32 v{a}, v{b}", wr={a, b}, rd={a, b}, flags=("permlane",))
p.valu(f"v_permlane32_swap_b32 v{KE[0]}, v{KE[0] + 2}", wr={KE[0], KE[0] + 2}, rd={KE[0], KE[0] + 2},
       flags=("permlane",))
T12(RAWV)
T3(RAWV)
FR = [VA[0], VB[0], VA[1], VB[1]]
for f in range(4):
    for j in range(4):
        r = TD + 8 * f + 2 * j
        p.valu(f"v_cvt_pk_bf16_f32 v{FR[f] + j}, v{r}, v{r + 1}", wr={FR[f] + j}, rd={r, r + 1})
BF = "v_mfma_f32_32x32x16_bf16"
for tau in range(2):
    M1(2 * tau)
    M2(2 * tau)
    M3(2 * tau)
    S = SB[0]
    for ti, o in enumerate(GO):
        s = S + 16 * ti
        m = GM[ti]
        for r in range(16):
            p.valu(f"v_mul_f32 v{s + r}, v{s + r}, v{V_C}", wr={s + r}, rd={s + r, V_C})
        p.valu(f"v_max_f32 v{t0}, v{s}, v{s + 1}", wr={t0}, rd={s, s + 1})
        for r in range(2, 16, 2):
            p.valu(f"v_max3_f32 v{t0}, v{s + r}, v{s + r + 1}, v{t0}", wr={t0}, rd={s + r, s + r + 1, t0})
        p.valu(f"v_mov_b32 v{t1}, v{t0}", wr={t1}, rd={t0})
        p.valu(f"v_permlane32_swap_b32 v{t0}, v{t1}", wr={t0, t1}, rd={t0, t1}, flags=("permlane",))
        p.nop(2)
        p.valu(f"v_max3_f32 v{t0}, v{t0}, v{t1}, v{m}", wr={t0}, rd={t0, t1, m})
        p.valu(f"v_sub_f32 v{t1}, v{m}, v{t0}", wr={t1}, rd={m, t0})
        p.trans(f"v_exp_f32 v{t1}, v{t1}", wr={t1}, rd={t1})
        p.valu(f"v_mov_b32 v{m}, v{t0}", wr={m}, rd={t0})
        for r in range(16):
            p.valu(f"v_mul_f32 v{o + r}, v{o + r}, v{t1}", wr={o + r}, rd={o + r, t1})
        for r in range(16):
            p.valu(f"v_sub_f32 v{s + r}, v{s + r}, v{t0}", wr={s + r}, rd={s + r, t0})
        for r in range(16):
            p.trans(f"v_exp_f32 v{s + r}, v{s + r}", wr={s + r}, rd={s + r})
        for r in range(8):
            p.valu(f"v_cvt_pk_bf16_f32 v{P + 8 * ti + r}, v{s + 2 * r}, v{s + 2 * r + 1}", wr={P + 8 * ti + r},
                   rd={s + 2 * r, s + 2 * r + 1})
        p.mfma(BF, o, 16, VA[tau], 4, P + 8 * ti, 4, o, 8)
        p.mfma(BF, o, 16, VB[tau], 4, P + 8 * ti + 4, 4, o, 8)
p.flush()
p.salu(f"s_add_u32 s{S_SOFF}, s{S_SOFF}, {64 * ROWB}")
p.salu(f"s_add_u32 s{S_CNT}, s{S_CNT}, 1")
p.salu(f"s_cmp_lt_u32 s{S_CNT}, 32")
p.salu("s_cbranch_scc1 L_g_pair")
epilogue(GO, f"s{S_QOFF}", 0, P)
p.flush()
p.salu(f"s_add_u32 s{S_QOFF}, s{S_QOFF}, {64 * ROWB}")
p.salu(f"s_add_u32 s{S_QH}, s{S_QH}, 1")
p.salu(f"s_cmp_lt_u32 s{S_QH}, 2")
p.salu("s_cbranch_scc1 L_g_half")
p.salu("s_endpgm")

hdr = open(f"cdna_kernels/{NAME}.s.ref").read().split("\n")
top = []
for line in hdr:
    if line.startswith("; @launch"):
        top.append(f"; @launch grid=(256,1,1) block=(512,1,1) lds={LDS_BYTES}")
        break
    top.append(line)
body = []
for i in p.ins:
    if "ghost" in i.flags:
        continue
    if i.cls in ("label", "label2"):
        body.append(i.text)
    else:
        body.append("    " + i.text)
DOC = """
;
;   sampled magnitude is too small for f16."""
src = "\n".join(top) + DOC + f"""
.amdgcn_target "amdgcn-amd-amdhsa--gfx950"
.text
.globl {NAME}_kernel
.p2align 12
.p2align 8
.type {NAME}_kernel,@function
{NAME}_kernel:
""" + "\n".join(body) + f"""
.section .rodata,"a"
.p2align 6
.amdhsa_kernel {NAME}_kernel
  .amdhsa_next_free_vgpr {NV + NACC}
  .amdhsa_next_free_sgpr {100 if STAMP else 64}
  .amdhsa_accum_offset {NV}
  .amdhsa_group_segment_fixed_size 0
  .amdhsa_kernarg_size 56
  .amdhsa_user_sgpr_count 2
  .amdhsa_user_sgpr_kernarg_segment_ptr 1
  .amdhsa_system_sgpr_workgroup_id_x 1
.end_amdhsa_kernel
"""
open(OUT, "w").write(src)
print("wrote", OUT, "instructions:", len(body), "auto nops:", p.nops_inserted, "lds", LDS_BYTES)
```

```python
import copy
import struct
import sys
from emit import Prog, Inst, vr, rng

NAME = "standalone__qk_norm__prompt"
OUT = sys.argv[1] if len(sys.argv) > 1 and not sys.argv[1].startswith("--") else f"cdna_kernels/{NAME}.s"
FLAGS = set(a for a in sys.argv[1:] if a.startswith("--"))
FORCE_GENERIC = "--generic" in FLAGS
STAMP = "--stamp" in FLAGS


def opt(name, default):
    for a in FLAGS:
        if a.startswith(f"--{name}="):
            return int(a.split("=")[1])
    return default


BAR_AT = opt("barat", 9)

TENSOR_BYTES = 2 * 32 * 2048 * 18 * 2
ROWB = 36
PAIR = 7168
BUF = 4 * PAIR
NBUF = 3
FLAG = NBUF * BUF
LDS_BYTES = FLAG + 64
CHUNKB = 256 * ROWB


def f32bits(x):
    return struct.unpack("<I", struct.pack("<f", x))[0]


def f16bits(x):
    return struct.unpack("<H", struct.pack("<e", x))[0]


LOG2E = 1.4426950408889634
MAGIC_A = f16bits(192.0) | (f16bits(220.0) << 16)
MAGIC_B = f16bits(192.0) | (f16bits(131.0) << 16)
T_MAX_BITS = 0x402F0000


def drow(d):
    if d < 10:
        r, h = d, 0
    else:
        r, h = d - 10, 1
    return 8 * (r // 4) + 4 * h + (r % 4)


USED_MASK32 = sum(1 << drow(d) for d in range(18))

S_Q, S_K, S_V, S_O = 16, 20, 24, 28
S_HEAD, S_QB, S_WAVE, S_T, S_KOFF, S_QOFF = 32, 33, 34, 35, 36, 37
S_TMP, S_TMP2 = 38, 39
S_BADM = 40
S_BAD = 42
S_QH = 43
S_HIMASK, S_EPS, S_CLS, S_THR, S_SOFF, S_CNT = 44, 45, 46, 47, 48, 49
S_WB, S_PB = 50, 51
S_W4 = 52
S_USED = 54
S_M1, S_M2 = 56, 58

V_TID, V_LANE = 0, 1
V_GK, V_GV, V_GQ, V_L16 = 2, 3, 4, 5
V_CUR, V_NXT = 6, 7
V_WP0, V_WP1 = 8, 9
V_W0, V_W1, V_W2 = 10, 11, 12
V_C, V_FLAGV = 13, 14
V_EA0, V_EA1 = 15, 28
V_T0 = 16
GM = [29, 30]
V_PF = 31
PF_LAST = 0x2180
QE = [32, 34]
QM0 = [36, 44]
QM1 = [40, 48]
KE = [52, 56]
KM = [60, 64]
VA = [68, 72]
VB = [76, 80]
P = 84
SB = [100, 132]
OA = [164, 180, 196, 212]
BE = 228
BI = 232
NV = 240
NACC = 0
RQ = [100, 112]
RAWK = 164
RAWV = 176
TD = 188
Y = 100
RAWK1, RAWV1 = 112, 124
GO = [132, 148]
UREG = 136
GREG = 156
PK = 32
I4 = 160

p = Prog()
t0, t1, t2, t3 = V_T0, V_T0 + 1, V_T0 + 2, V_T0 + 3
NSTAMP = [0]


def stamp():
    if STAMP:
        k = NSTAMP[0]
        NSTAMP[0] += 1
        p.salu(f"s_memtime s[{64 + 2 * k}:{65 + 2 * k}]")
        p.raw("s_waitcnt lgkmcnt(0)", "wait")
        p.lds_pend = []


def soft_label(name):
    p.ins.append(Inst(f"{name}:", "label2", ws=0))


def zero_ws(idx):
    for i in p.ins[idx:]:
        i.ws = 0


def load_rows(dst, voff, srd, soff, off=0):
    p.bload(4, dst, voff, srd, soff, off)
    p.bload(4, dst + 4, voff, srd, soff, off + 16)
    p.bload(1, dst + 8, voff, srd, soff, off + 32)


def load_v(dst, soff):
    p.bload(4, dst, V_GV, S_V, soff, 0)
    p.bload(4, dst + 4, V_GV, S_V, soff, 32 * ROWB)
    p.bload(1, dst + 8, V_GK, S_V, soff, 32)


def norm_row(x, scale_reg, check, dst, hooks=None):
    ops = []
    a, b = V_T0, V_T0 + 1
    for j in range(9):
        acc = a if j % 2 == 0 else b
        c = "0" if j < 2 else f"v{acc}"
        ops.append(lambda j=j, acc=acc, c=c: p.valu(f"v_dot2_f32_bf16 v{acc}, v{x + j}, v{x + j}, {c}", wr={acc},
                                                    rd={x + j}, flags=("dot", "dotc")))
    R = V_T0 + 2
    T = [V_T0 + 4, V_T0 + 6, V_T0 + 8, V_T0 + 10]

    def unpack(j):
        t = T[j % 4]
        ops.append(lambda: p.valu(f"v_lshlrev_b32 v{t}, 16, v{x + j}", wr={t}, rd={x + j}))
        ops.append(lambda: p.valu(f"v_and_b32 v{t + 1}, s{S_HIMASK}, v{x + j}", wr={t + 1}, rd={x + j},
                                  srd={S_HIMASK}))
    unpack(0)
    unpack(1)
    ops.append(lambda: p.valu(f"v_add_f32 v{a}, v{a}, v{b}", wr={a}, rd={a, b}))
    ops.append(lambda: p.trans(f"v_sqrt_f32 v{R}, v{a}", wr={R}, rd={a}))
    if check:
        ops.append(lambda: p.valu(f"v_cmp_class_f32 vcc, v{a}, s{S_CLS}", rd={a}, swr={"vcc"}, srd={S_CLS}))
    else:
        unpack(2)
    ops.append(lambda: p.valu(f"v_add_f32 v{R}, s{S_EPS}, v{R}", wr={R}, rd={R}, srd={S_EPS}))
    ops.append(lambda: p.trans(f"v_rcp_f32 v{R}, v{R}", wr={R}, rd={R}))
    if check:
        unpack(2)
        ops.append(lambda: p.salu(f"s_or_b64 s[{S_BADM}:{S_BADM + 1}], s[{S_BADM}:{S_BADM + 1}], vcc", srd={"vcc"}))
    if scale_reg is not None:
        ops.append(lambda: p.valu(f"v_mul_f32 v{R}, v{R}, v{scale_reg}", wr={R}, rd={R, scale_reg}))
    for j in range(9):
        t = T[j % 4]
        ops.append(lambda t=t: p.valu(f"v_pk_mul_f32 v[{t}:{t + 1}], v[{t}:{t + 1}], v[{R}:{R + 1}] op_sel_hi:[1,0]",
                                      wr={t, t + 1}, rd={t, t + 1, R}))
        if j + 3 < 9:
            unpack(j + 3)
        ops.append(lambda t=t, j=j: p.valu(f"v_cvt_pk_f16_f32 v{dst[j]}, v{t}, v{t + 1}", wr={dst[j]},
                                           rd={t, t + 1}))
    for n, f in enumerate(ops):
        if hooks and n in hooks:
            hooks[n]()
        f()


def norm_row_plain(x, dst, U, hooks=None):
    ops = []
    a, b = V_T0, V_T0 + 1
    R = V_T0 + 2
    for j in range(9):
        lo, hi = U + 2 * j, U + 2 * j + 1
        ops.append(lambda j=j, lo=lo: p.valu(f"v_lshlrev_b32 v{lo}, 16, v{x + j}", wr={lo}, rd={x + j}))
        ops.append(lambda j=j, hi=hi: p.valu(f"v_and_b32 v{hi}, s{S_HIMASK}, v{x + j}", wr={hi}, rd={x + j},
                                             srd={S_HIMASK}))
        for acc, u in ((a, lo), (b, hi)):
            if j == 0:
                ops.append(lambda acc=acc, u=u: p.valu(f"v_mul_f32 v{acc}, v{u}, v{u}", wr={acc}, rd={u}))
            else:
                ops.append(lambda acc=acc, u=u: p.valu(f"v_fmac_f32 v{acc}, v{u}, v{u}", wr={acc}, rd={u, acc}))
    ops.append(lambda: p.valu(f"v_add_f32 v{a}, v{a}, v{b}", wr={a}, rd={a, b}))
    ops.append(lambda: p.trans(f"v_sqrt_f32 v{R}, v{a}", wr={R}, rd={a}))
    ops.append(lambda: p.valu(f"v_cmp_class_f32 vcc, v{a}, s{S_CLS}", rd={a}, swr={"vcc"}, srd={S_CLS}))
    ops.append(lambda: p.valu(f"v_add_f32 v{R}, s{S_EPS}, v{R}", wr={R}, rd={R}, srd={S_EPS}))
    ops.append(lambda: p.trans(f"v_rcp_f32 v{R}, v{R}", wr={R}, rd={R}))
    ops.append(lambda: p.salu(f"s_or_b64 s[{S_BADM}:{S_BADM + 1}], s[{S_BADM}:{S_BADM + 1}], vcc", srd={"vcc"}))
    for j in range(9):
        lo, hi = U + 2 * j, U + 2 * j + 1
        ops.append(lambda lo=lo: p.valu(f"v_mul_f32 v{lo}, v{lo}, v{R}", wr={lo}, rd={lo, R}))
        ops.append(lambda hi=hi: p.valu(f"v_mul_f32 v{hi}, v{hi}, v{R}", wr={hi}, rd={hi, R}))
        ops.append(lambda j=j, lo=lo, hi=hi: p.valu(f"v_cvt_pk_f16_f32 v{dst[j]}, v{lo}, v{hi}", wr={dst[j]},
                                                    rd={lo, hi}))
    for n, f in enumerate(ops):
        if hooks and n in hooks:
            hooks[n]()
        f()


def norm_row_mfma(x, dst, U, GR, hooks=None, nops=True):
    ops = []
    a = V_T0
    R = V_T0 + 2
    OP = "v_mfma_f32_4x4x4_16b_bf16"
    for g in range(5):
        ops.append(lambda g=g: p.mfma(OP, GR, 4, x + 2 * g, 2, x + 2 * g, 2, None if g == 0 else GR, 2))
        ops.append(lambda g=g: p.mfma(OP, U + 4 * g, 4, I4, 2, x + 2 * g, 2, None, 2))
        ops.append(lambda: p.nop(1) if nops else None)
    ops.append(lambda: p.valu(f"v_cndmask_b32 v{a}, v{GR}, v{GR + 1}, s[{S_M1}:{S_M1 + 1}]", wr={a}, rd={GR, GR + 1}))
    ops.append(lambda: p.valu(f"v_cndmask_b32 v{a + 1}, v{GR + 2}, v{GR + 3}, s[{S_M1}:{S_M1 + 1}]", wr={a + 1},
                              rd={GR + 2, GR + 3}))
    ops.append(lambda: p.valu(f"v_cndmask_b32 v{a}, v{a}, v{a + 1}, s[{S_M2}:{S_M2 + 1}]", wr={a}, rd={a, a + 1}))
    ops.append(lambda: p.trans(f"v_sqrt_f32 v{R}, v{a}", wr={R}, rd={a}))
    ops.append(lambda: p.valu(f"v_cmp_class_f32 vcc, v{a}, s{S_CLS}", rd={a}, swr={"vcc"}, srd={S_CLS}))
    ops.append(lambda: p.valu(f"v_add_f32 v{R}, s{S_EPS}, v{R}", wr={R}, rd={R}, srd={S_EPS}))
    ops.append(lambda: p.trans(f"v_rcp_f32 v{R}, v{R}", wr={R}, rd={R}))
    ops.append(lambda: p.salu(f"s_or_b64 s[{S_BADM}:{S_BADM + 1}], s[{S_BADM}:{S_BADM + 1}], vcc", srd={"vcc"}))
    for j in range(9):
        lo, hi = U + 2 * j, U + 2 * j + 1
        ops.append(lambda lo=lo: p.valu(f"v_mul_f32 v{lo}, v{lo}, v{R}", wr={lo}, rd={lo, R}))
        ops.append(lambda hi=hi: p.valu(f"v_mul_f32 v{hi}, v{hi}, v{R}", wr={hi}, rd={hi, R}))
        ops.append(lambda j=j, lo=lo, hi=hi: p.valu(f"v_cvt_pk_f16_f32 v{dst[j]}, v{lo}, v{hi}", wr={dst[j]},
                                                    rd={lo, hi}))
    for n, f in enumerate(ops):
        if hooks and n in hooks:
            hooks[n]()
        f()


def T1(raw):
    p.mfma("v_mfma_f32_32x32x16_bf16", TD, 16, raw, 4, BI, 4, None, 8)


def T2(raw):
    p.mfma("v_mfma_f32_32x32x16_bf16", TD + 16, 16, raw + 4, 4, BI, 4, None, 8)


def T12(raw):
    T1(raw)
    T2(raw)


def T3(raw):
    p.mfma("v_mfma_f32_32x32x4_2b_bf16", TD, 32, raw + 8, 2, BE, 2, TD, 16)


def kv_compute(rawk, rawv, first, lead=0, fast=False):
    if fast:
        hooks = {21: lambda: T1(rawv), 22: lambda: T2(rawv), 34: lambda: T3(rawv)}
        T1(rawv)
        T2(rawv)
        norm_row(rawk, None, True, [Y + j for j in range(9)], hooks={10: lambda: T3(rawv)})
    else:
        if "--plain" in FLAGS:
            hooks = {lead: lambda: T1(rawv), lead + 8: lambda: T2(rawv), lead + 18: lambda: T3(rawv)}
            norm_row_plain(rawk, [Y + j for j in range(9)], UREG, hooks=hooks)
        else:
            hooks = {0: lambda: T12(rawv), 15: lambda: T3(rawv)}
            norm_row_mfma(rawk, [Y + j for j in range(9)], UREG, GREG, hooks=hooks)
    if first:
        p.salu(f"s_cmp_lg_u32 s{S_CNT}, 1")
        p.salu("s_cbranch_scc1 L_nosample")
        idx = len(p.ins)
        m = V_T0
        p.valu(f"v_max_f32 v{m}, |v{TD}|, |v{TD + 1}|", wr={m}, rd={TD, TD + 1})
        for r in range(2, 32, 2):
            p.valu(f"v_max3_f32 v{m}, |v{TD + r}|, |v{TD + r + 1}|, v{m}", wr={m}, rd={TD + r, TD + r + 1, m})
        p.valu(f"v_cmp_gt_f32 vcc, s{S_THR}, v{m}", rd={m}, swr={"vcc"}, srd={S_THR})
        p.salu(f"s_and_b64 vcc, vcc, s[{S_USED}:{S_USED + 1}]", srd={"vcc"})
        p.salu(f"s_or_b64 s[{S_BADM}:{S_BADM + 1}], s[{S_BADM}:{S_BADM + 1}], vcc")
        soft_label("L_nosample")
        zero_ws(idx)
    for f in range(4):
        for j in range(4):
            r = TD + 8 * f + 2 * j
            d = TD + 8 * f + j
            p.valu(f"v_cvt_pk_f16_f32 v{d}, v{r}, v{r + 1}", wr={d}, rd={r, r + 1})


def kv_writes():
    w = [lambda: p.ds_write("ds_write_b128", V_W0, Y, 4, 0),
         lambda: p.ds_write("ds_write_b128", V_W0, Y + 4, 4, 512),
         lambda: p.ds_write("ds_write_b64", V_W1, Y + 8, 2, 2048),
         lambda: p.ds_write("ds_write_b64", V_W1, Y + 8, 2, 2048 + 512)]
    for f in range(4):
        w.append(lambda f=f: p.ds_write("ds_write_b128", V_W2, TD + 8 * f, 4, 3072 + 1024 * f))
    return w


def kv_loads(soff):
    return [lambda: p.bload(4, RAWV, V_GV, S_V, soff, 0),
            lambda: p.bload(4, RAWV + 4, V_GV, S_V, soff, 32 * ROWB),
            lambda: p.bload(1, RAWV + 8, V_GK, S_V, soff, 32),
            lambda: p.bload(4, RAWK, V_GK, S_K, soff, 0),
            lambda: p.bload(4, RAWK + 4, V_GK, S_K, soff, 16),
            lambda: p.bload(1, RAWK + 8, V_GK, S_K, soff, 32)]


def set_waddr(sbase):
    p.valu(f"v_add_u32 v{V_W0}, {sbase}, v{V_WP0}", wr={V_W0}, rd={V_WP0})
    p.valu(f"v_add_u32 v{V_W1}, {sbase}, v{V_WP1}", wr={V_W1}, rd={V_WP1})
    p.valu(f"v_add_u32 v{V_W2}, {sbase}, v{V_L16}", wr={V_W2}, rd={V_L16})


def q_prep(raw, hq, scale_reg, magic, check, hooks=None):
    dst = [QM0[hq] + j for j in range(4)] + [QM1[hq] + j for j in range(4)] + [QE[hq]]
    norm_row(raw, scale_reg, check, dst, hooks)
    p.valu(f"v_mov_b32 v{QE[hq] + 1}, 0x{magic:08x}", wr={QE[hq] + 1})
    for j in range(4):
        a, b = QM0[hq] + j, QM1[hq] + j
        p.valu(f"v_permlane32_swap_b32 v{a}, v{b}", wr={a, b}, rd={a, b}, flags=("permlane",))


if STAMP:
    p.salu("s_memrealtime s[60:61]")
stamp()
p.salu("s_cmp_ge_u32 s2, 256")
p.salu("s_cbranch_scc1 L_end")
p.salu("s_load_dwordx8 s[4:11], s[0:1], 0")
p.salu("s_load_dwordx2 s[12:13], s[0:1], 32")
if "--pf" in FLAGS:
    p.salu("s_getpc_b64 s[14:15]")
    p.valu(f"v_lshlrev_b32 v{t3}, 7, v{V_TID}", wr={t3}, rd={V_TID})
    p.valu(f"v_min_u32 v{t3}, 0x{PF_LAST:x}, v{t3}", wr={t3}, rd={t3})
    p.add(Inst(f"global_load_dword v{V_PF}, v{t3}, s[14:15]", "vmem", wr={V_PF}, rd={t3}))
    p.vm_pend.append({V_PF})
p.valu(f"v_lshrrev_b32 v{t0}, 6, v{V_TID}", wr={t0}, rd={V_TID})
p.salu(f"s_and_b32 s{S_TMP}, s2, 7")
p.salu(f"s_lshr_b32 s{S_TMP2}, s2, 3")
p.valu(f"v_readfirstlane_b32 s{S_WAVE}, v{t0}", rd={t0}, swr={S_WAVE}, flags=("readlane",))
p.salu(f"s_and_b32 s{S_QB}, s{S_TMP2}, 3")
p.salu(f"s_lshr_b32 s{S_TMP2}, s{S_TMP2}, 2")
p.salu(f"s_lshl_b32 s{S_HEAD}, s{S_TMP}, 3")
p.salu(f"s_add_u32 s{S_HEAD}, s{S_HEAD}, s{S_TMP2}")
p.salu(f"s_mul_i32 s{S_KOFF}, s{S_HEAD}, {2048 * ROWB}")
p.salu(f"s_mul_i32 s{S_TMP}, s{S_QB}, {512 * ROWB}")
p.salu(f"s_add_u32 s{S_QOFF}, s{S_KOFF}, s{S_TMP}")
p.salu(f"s_and_b32 s{S_W4}, s{S_WAVE}, 3", srd={S_WAVE})
p.salu(f"s_mul_i32 s{S_TMP}, s{S_W4}, {128 * ROWB}")
p.salu(f"s_add_u32 s{S_QOFF}, s{S_QOFF}, s{S_TMP}")
p.valu(f"v_and_b32 v{V_LANE}, 63, v{V_TID}", wr={V_LANE}, rd={V_TID})
p.valu(f"v_and_b32 v{t0}, 0xff, v{V_TID}", wr={t0}, rd={V_TID})
p.valu(f"v_mul_u32_u24 v{V_GK}, {ROWB}, v{t0}", wr={V_GK}, rd={t0})
p.valu(f"v_mul_u32_u24 v{V_GQ}, {ROWB}, v{V_LANE}", wr={V_GQ}, rd={V_LANE})
p.valu(f"v_and_b32 v{t0}, 0xdf, v{V_TID}", wr={t0}, rd={V_TID})
p.valu(f"v_mul_u32_u24 v{V_GV}, {ROWB}, v{t0}", wr={V_GV}, rd={t0})
p.valu(f"v_lshrrev_b32 v{t1}, 5, v{V_LANE}", wr={t1}, rd={V_LANE})
p.valu(f"v_lshl_add_u32 v{V_GV}, v{t1}, 4, v{V_GV}", wr={V_GV}, rd={t1, V_GV})
p.salu(f"s_and_b32 s{S_TMP}, s{S_HEAD}, 30")
p.salu(f"s_lshl_b32 s{S_TMP}, s{S_TMP}, 1")
p.salu(f"s_add_u32 s{S_SOFF}, s{S_KOFF}, {CHUNKB}")
p.raw("s_waitcnt lgkmcnt(0)", "wait")
p.salu(f"s_load_dword s{S_T}, s[10:11], s{S_TMP}")
for srd, ptr in ((S_K, 6), (S_V, 8), (S_Q, 4), (S_O, 12)):
    p.salu(f"s_mov_b32 s{srd}, s{ptr}")
    p.salu(f"s_mov_b32 s{srd + 1}, s{ptr + 1}")
    p.salu(f"s_mov_b32 s{srd + 2}, {TENSOR_BYTES}")
    p.salu(f"s_mov_b32 s{srd + 3}, 0x00020000")


def consts():
    p.salu(f"s_mov_b32 s{S_HIMASK}, 0xffff0000")
    p.salu(f"s_mov_b32 s{S_EPS}, 0x{f32bits(1e-6):08x}")
    p.salu(f"s_mov_b32 s{S_CLS}, 0x207")
    p.salu(f"s_mov_b64 s[{S_BADM}:{S_BADM + 1}], 0")
    p.valu(f"v_mov_b32 v{V_FLAGV}, 0x{FLAG:x}", wr={V_FLAGV})


def ident():
    for i in range(4):
        p.valu(f"v_mov_b32 v{BI + i}, 0", wr={BI + i})
    p.valu(f"v_mov_b32 v{BE}, 0", wr={BE})
    p.valu(f"v_mov_b32 v{BE + 1}, 0", wr={BE + 1})
    p.salu(f"s_mov_b32 s{S_TMP}, 0x3f80")
    p.salu(f"s_mov_b32 s{S_TMP2}, 0x3f800000")
    for k in range(16):
        lane = (k // 8) * 32 + drow(k)
        i = (k % 8) // 2
        p.valu(f"v_writelane_b32 v{BI + i}, s{S_TMP if k % 2 == 0 else S_TMP2}, {lane}", wr={BI + i}, rd={BI + i})
    for col, reg, val in ((drow(16), BE, S_TMP), (drow(17), BE, S_TMP2), (18, BE + 1, S_TMP), (22, BE + 1, S_TMP)):
        for h in range(2):
            p.valu(f"v_writelane_b32 v{reg}, s{val}, {col + 32 * h}", wr={reg}, rd={reg})


def t_check(target):
    p.raw("s_waitcnt lgkmcnt(0)", "wait")
    p.salu(f"s_lshl_b32 s{S_TMP}, s{S_T}, 16")
    p.salu(f"s_and_b32 s{S_TMP2}, s{S_T}, 0xffff0000")
    p.salu(f"s_bitcmp1_b32 s{S_HEAD}, 0")
    p.salu(f"s_cselect_b32 s{S_T}, s{S_TMP2}, s{S_TMP}")
    p.valu(f"v_mov_b32 v{V_C}, 0x{f32bits(LOG2E):08x}", wr={V_C})
    p.valu(f"v_mul_f32 v{V_C}, s{S_T}, v{V_C}", wr={V_C}, rd={V_C})
    p.salu(f"s_and_b32 s{S_TMP}, s{S_T}, 0x7fffffff")
    if FORCE_GENERIC:
        p.salu(f"s_branch {target}")
    else:
        p.salu(f"s_cmp_gt_u32 s{S_TMP}, 0x{T_MAX_BITS:x}")
        p.salu(f"s_cbranch_scc1 {target}")


p.salu(f"s_cmp_ge_u32 s{S_WAVE}, 4")
p.salu("s_cbranch_scc0 L_compute" if "--prodlast" in FLAGS else "s_cbranch_scc1 L_compute")
idx = len(p.ins)
vm_save = list(p.vm_pend)
load_v(RAWV1, f"s{S_KOFF}")
load_rows(RAWK1, V_GK, S_K, f"s{S_KOFF}")
vm_prod = list(p.vm_pend)
p.salu("s_branch L_producer")
soft_label("L_compute")
zero_ws(idx)
p.vm_pend = vm_save

load_rows(RQ[0], V_GQ, S_Q, f"s{S_QOFF}")
if "--qtogether" in FLAGS:
    load_rows(RQ[1], V_GQ, S_Q, f"s{S_QOFF}", 64 * ROWB)
consts()
p.valu(f"v_lshlrev_b32 v{V_CUR}, 4, v{V_LANE}", wr={V_CUR}, rd={V_LANE})
p.valu(f"v_add_u32 v{V_NXT}, 0x{BUF:x}, v{V_CUR}", wr={V_NXT}, rd={V_CUR})
p.valu(f"v_and_b32 v{t0}, 31, v{V_LANE}", wr={t0}, rd={V_LANE})
p.valu(f"v_mul_u32_u24 v{t2}, {ROWB}, v{t0}", wr={t2}, rd={t0})
p.valu(f"v_mul_u32_u24 v{V_EA0}, 20, v{t1}", wr={V_EA0}, rd={t1})
p.valu(f"v_add_u32 v{V_EA0}, v{V_EA0}, v{t2}", wr={V_EA0}, rd={V_EA0, t2})
p.valu(f"v_lshl_add_u32 v{V_EA1}, v{t1}, 30, v{t2}", wr={V_EA1}, rd={t1, t2})
for r in list(range(OA[0], OA[0] + 64)) + list(range(P + 8, P + 16)) + list(range(VB[1], VB[1] + 4)) + list(range(VA[1], VA[1] + 4)):
    p.valu(f"v_mov_b32 v{r}, 0", wr={r})
if "--qtogether" not in FLAGS:
    load_rows(RQ[1], V_GQ, S_Q, f"s{S_QOFF}", 64 * ROWB)
t_check("L_generic")
stamp()
q_prep(RQ[0], 0, V_C, MAGIC_B, True)
q_prep(RQ[1], 1, V_C, MAGIC_B, True)
stamp()
p.raw("s_barrier", "salu")
stamp()

F16 = "v_mfma_f32_32x32x16_f16"


def taddr(j):
    return (V_CUR if j < 8 else V_NXT), ((j % 8) // 2) * PAIR, j % 2


def rd_km(j):
    a, o, tp = taddr(j)
    p.ds_read("ds_read_b128", KM[j % 2], 4, a, o + 1024 * tp)


def rd_ke(j):
    a, o, tp = taddr(j)
    assert tp == 0
    p.ds_read("ds_read_b128", KE[(j // 2) % 2], 4, a, o + 2048)


def rd_va(j):
    a, o, tp = taddr(j)
    p.ds_read("ds_read_b128", VA[j % 2], 4, a, o + 3072 + 2048 * tp)


def rd_vb(j):
    a, o, tp = taddr(j)
    p.ds_read("ds_read_b128", VB[j % 2], 4, a, o + 4096 + 2048 * tp)


XP = [True]
M3F = ["--m3first" in FLAGS]
SCHED2 = "--sched1" not in FLAGS and not M3F[0]


def M1(m):
    p.mfma(F16, SB[m % 2], 16, KM[(m // 2) % 2], 4, QM0[m % 2], 4, SB[m % 2] if M3F[0] else None, 8)


def M2(m):
    p.mfma(F16, SB[m % 2] + 16, 16, KM[(m // 2) % 2], 4, QM1[m % 2], 4, SB[m % 2] + 16 if M3F[0] else None, 8)


def M3(m):
    j = m // 2
    if "--m3x8" in FLAGS and XP[0]:
        for h in range(2):
            p.mfma("v_mfma_f32_32x32x8_f16", SB[m % 2] + 16 * h, 16, KE[(j // 2) % 2] + 2 * (j % 2), 2, QE[m % 2], 2,
                   SB[m % 2] + 16 * h, 8)
        return
    if "--nom3" in FLAGS and XP[0]:
        return
    p.mfma("v_mfma_f32_32x32x4_2b_f16", SB[m % 2], 32, KE[(j // 2) % 2] + 2 * (j % 2), 2, QE[m % 2], 2,
           None if M3F[0] else SB[m % 2], 16)


def PV(which, m):
    if "--nopv" in FLAGS:
        return
    j = m // 2
    o = OA[2 * (m % 2) + (0 if which <= 2 else 1)]
    v = VA[j % 2] if which % 2 == 1 else VB[j % 2]
    if "--pvswap" in FLAGS:
        p.mfma(F16, o, 16, P + 4 * (which - 1), 4, v, 4, o, 8)
        return
    p.mfma(F16, o, 16, v, 4, P + 4 * (which - 1), 4, o, 8)


def G(g, m, mid=None):
    s = SB[m % 2] + 4 * g
    d = P + 2 * g
    p.trans(f"v_exp_f16 v{d}, v{s}", wr={d}, rd={s})
    p.trans(f"v_exp_f16 v{d + 1}, v{s + 2}", wr={d + 1}, rd={s + 2})
    p.trans(f"v_exp_f16_sdwa v{d}, v{s + 1} dst_sel:WORD_1 dst_unused:UNUSED_PRESERVE src0_sel:WORD_0",
            wr={d}, rd={s + 1, d}, flags=("sdwa",))
    if mid:
        mid()
    p.trans(f"v_exp_f16_sdwa v{d + 1}, v{s + 3} dst_sel:WORD_1 dst_unused:UNUSED_PRESERVE src0_sel:WORD_0",
            wr={d + 1}, rd={s + 3, d + 1}, flags=("sdwa",))


PREP_AT = opt("prepat", 5)


def chunk_body(tag):
    for m in range(16):
        j = m // 2
        sq = []
        if m == BAR_AT and "--nobar" not in FLAGS:
            assert m % 2 == 1
            sq = [None, None, None, None, None, lambda: p.raw("s_barrier", "salu")]
        if m == 15:
            sq = [lambda: p.salu(f"s_add_u32 s{S_WB}, s{S_WB}, {BUF}"),
                  lambda: p.salu(f"s_cmp_ge_u32 s{S_WB}, {NBUF * BUF}"),
                  lambda: p.salu(f"s_cselect_b32 s{S_WB}, 0, s{S_WB}"),
                  lambda: p.salu(f"s_add_u32 s{S_CNT}, s{S_CNT}, 1"),
                  lambda: p.salu(f"s_cmp_lt_u32 s{S_CNT}, 8")]

        def X():
            if sq:
                f = sq.pop(0)
                if f:
                    f()

        if SCHED2:
            G(0, m)
            PV(3, m - 1)
            if m % 2 == 0:
                p.wait_lds(0)
                rd_km(j + 2)
                if j % 2 == 0:
                    rd_ke(j + 2)
            X()
            G(1, m)
            PV(4, m - 1)
            if m % 2 == 0:
                rd_vb(j + 1)
                rd_va(j + 1)
            X()
            G(2, m)
            M3(m + 1)
            G(3, m)
            if opt("idle", 0):
                p.nop(opt("idle", 0))
            G(4, m)
            PV(1, m)
            X()
            if m == 15:
                p.valu(f"v_mov_b32 v{V_CUR}, v{V_NXT}", wr={V_CUR}, rd={V_NXT})
                p.valu(f"v_lshl_add_u32 v{V_NXT}, v{V_LANE}, 4, s{S_WB}", wr={V_NXT}, rd={V_LANE})
            G(5, m)
            PV(2, m)
            X()
            G(6, m)
            M1(m + 2)
            X()
            G(7, m)
            M2(m + 2)
            X()
            assert not sq
            continue
        if M3F[0]:
            G(0, m)
            G(1, m)
            PV(4, m - 1)
            if m % 2 == 0:
                p.wait_lds(0)
                rd_vb(j + 1)
                rd_va(j + 1)
            X()
            G(2, m)
            PV(1, m)
            X()
            G(3, m)
            M1(m + 1)
            X()
            if m == 15:
                p.valu(f"v_mov_b32 v{V_CUR}, v{V_NXT}", wr={V_CUR}, rd={V_NXT})
                p.valu(f"v_lshl_add_u32 v{V_NXT}, v{V_LANE}, 4, s{S_WB}", wr={V_NXT}, rd={V_LANE})
            G(4, m)
            PV(2, m)
            X()
            G(5, m)
            M2(m + 1)
            if m % 2 == 0:
                rd_km(j + 2)
                if j % 2 == 0:
                    rd_ke(j + 2)
            X()
            G(6, m)
            PV(3, m)
            X()
            G(7, m)
            M3(m + 2)
            assert not sq
            continue
        G(0, m)
        M2(m + 1)
        if m % 2 == 0:
            p.wait_lds(0)
            rd_km(j + 2)
            if j % 2 == 0:
                rd_ke(j + 2)
        X()
        G(1, m)
        PV(4, m - 1)
        if m % 2 == 0:
            rd_vb(j + 1)
            rd_va(j + 1)
        X()
        G(2, m)
        PV(1, m)
        X()
        G(3, m, mid=lambda: M3(m + 1))
        if m == 15:
            p.valu(f"v_mov_b32 v{V_CUR}, v{V_NXT}", wr={V_CUR}, rd={V_NXT})
            p.valu(f"v_lshl_add_u32 v{V_NXT}, v{V_LANE}, 4, s{S_WB}", wr={V_NXT}, rd={V_LANE})
        G(4, m)
        G(5, m)
        PV(2, m)
        X()
        G(6, m)
        M1(m + 2)
        X()
        G(7, m)
        PV(3, m)
        X()
        assert not sq


assert BAR_AT <= 11
p.salu(f"s_mov_b32 s{S_CNT}, 0")
p.salu(f"s_mov_b32 s{S_WB}, {BUF}")
rd_km(0)
rd_ke(0)
rd_km(1)
rd_vb(0)
rd_va(0)
if M3F[0]:
    M3(0)
    M1(0)
    M2(0)
    M3(1)
elif SCHED2:
    M1(0)
    M2(0)
    M1(1)
    M2(1)
    M3(0)
else:
    M1(0)
    M2(0)
    M1(1)
    M3(0)
p.wait_lds(0)
p.nop(20)

saved = (p.ins, p.nops_inserted)
p.ins = []
p.lds_pend = []
p.vm_pend = []
chunk_body("d")
tail = p.ins[-60:]
steady = list(p.lds_pend)
p.ins, p.nops_inserted = saved
p.ins.append(Inst(".p2align 6", "other", ws=0))
p.label("L_loop")
for i in tail:
    g = copy.copy(i)
    g.flags = set(g.flags) | {"ghost"}
    p.ins.append(g)
p.lds_pend = list(steady)
p.vm_pend = []
chunk_body("A")
assert [sorted(x) for x in p.lds_pend] == [sorted(x) for x in steady], (p.lds_pend, steady)
p.salu("s_cbranch_scc1 L_loop")
if SCHED2:
    PV(3, 15)
PV(4, 15)
stamp()
p.ds_read("ds_read_b32", V_FLAGV, 1, V_FLAGV, 0)


def epilogue(o_regs, soff, off0, ybase):
    for ti, o in enumerate(o_regs):
        R = V_T0 + 4 + 2 * ti
        y = ybase + 8 * ti
        p.trans(f"v_rcp_f32 v{R}, v{o + 10}", wr={R}, rd={o + 10})
        for j in range(5):
            p.valu(f"v_pk_mul_f32 v[{o + 2 * j}:{o + 2 * j + 1}], v[{o + 2 * j}:{o + 2 * j + 1}], v[{R}:{R + 1}] op_sel_hi:[1,0]",
                   wr={o + 2 * j, o + 2 * j + 1}, rd={o + 2 * j, o + 2 * j + 1, R})
        for j in range(5):
            p.valu(f"v_cvt_pk_bf16_f32 v{y + j}, v{o + 2 * j}, v{o + 2 * j + 1}", wr={y + j},
                   rd={o + 2 * j, o + 2 * j + 1})
        p.bstore(4, y, V_EA0, S_O, soff, off0 + ti * 32 * ROWB)
        p.bstore(1, y + 4, V_EA1, S_O, soff, off0 + ti * 32 * ROWB + 16)


o = OA[0]
p.valu(f"v_add_f32 v{t0}, |v{o}|, |v{o + 1}|", wr={t0}, rd={o, o + 1})
for r in range(2, 10):
    p.valu(f"v_add_f32 v{t0}, |v{o + r}|, v{t0}", wr={t0}, rd={o + r, t0})
p.valu(f"v_cmp_class_f32 vcc, v{t0}, s{S_CLS}", rd={t0}, swr={"vcc"}, srd={S_CLS})
p.valu(f"v_readfirstlane_b32 s{S_BAD}, v{V_FLAGV}", rd={V_FLAGV}, swr={S_BAD}, flags=("readlane",))
p.salu(f"s_or_b64 s[{S_BADM}:{S_BADM + 1}], s[{S_BADM}:{S_BADM + 1}], vcc", srd={"vcc"})
p.salu(f"s_or_b32 s{S_BAD}, s{S_BAD}, s{S_BADM}", srd={S_BAD})
p.salu(f"s_or_b32 s{S_BAD}, s{S_BAD}, s{S_BADM + 1}")
if not ({"--m3x8", "--nom3", "--nopv", "--pvswap"} & FLAGS):
    p.salu("s_cbranch_scc1 L_generic")
epilogue(OA[0:2], f"s{S_QOFF}", 0, P)
epilogue(OA[2:4], f"s{S_QOFF}", 64 * ROWB, KE[0])
if STAMP:
    stamp()
    p.salu("s_memrealtime s[62:63]")
    p.salu(f"s_load_dwordx2 s[56:57], s[0:1], {40 if '--dbgstamp' in FLAGS else 48}")
    p.raw("s_waitcnt lgkmcnt(0)", "wait")
    k = NSTAMP[0]
    NSTAMP[0] += 2
    p.salu(f"s_sub_u32 s{64 + 2 * k}, s62, s60")
    p.salu(f"s_add_u32 s{64 + 2 * k}, s{64 + 2 * k}, s64")
    p.salu(f"s_add_u32 s{66 + 2 * k}, s60, s64")
    p.salu("s_mov_b32 s58, 0x1000000")
    p.salu("s_mov_b32 s59, 0x00020000")
    p.valu(f"v_mov_b32 v{t2}, 0", wr={t2})
    for k in range(NSTAMP[0]):
        p.salu(f"s_sub_u32 s{S_TMP}, s{64 + 2 * k}, s64")
        p.valu(f"v_mov_b32 v{t1}, s{S_TMP}", wr={t1})
        p.valu(f"v_cmp_eq_u32 vcc, {k}, v{V_LANE}", rd={V_LANE}, swr={"vcc"})
        p.valu(f"v_cndmask_b32 v{t2}, v{t2}, v{t1}, vcc", wr={t2}, rd={t2, t1}, srd={"vcc"})
    if "--dbgstamp" in FLAGS:
        p.salu("s_mov_b32 s58, 64")
        p.salu(f"s_lshl_b32 s{S_TMP}, s2, 3")
        p.salu(f"s_add_u32 s{S_TMP}, s{S_TMP}, s{S_WAVE}")
        p.salu(f"s_mov_b32 s{S_TMP2}, 0x1000")
        p.salu(f"s_cmp_eq_u32 s{S_TMP}, {5 * 8}")
        p.salu(f"s_cselect_b32 s{S_TMP2}, 0, s{S_TMP2}")
        p.salu(f"s_cmp_eq_u32 s{S_TMP}, {200 * 8 + 3}")
        p.salu(f"s_cselect_b32 s{S_TMP2}, 32, s{S_TMP2}")
        p.valu(f"v_lshlrev_b32 v{t1}, 2, v{V_LANE}", wr={t1}, rd={V_LANE})
        p.valu(f"v_cmp_lt_u32 vcc, 7, v{V_LANE}", rd={V_LANE}, swr={"vcc"})
        p.valu(f"v_mov_b32 v{t3}, 0x1000", wr={t3})
        p.valu(f"v_cndmask_b32 v{t1}, v{t1}, v{t3}, vcc", wr={t1}, rd={t1, t3}, srd={"vcc"})
        p.valu(f"v_add_u32 v{t1}, s{S_TMP2}, v{t1}", wr={t1}, rd={t1})
        p.bstore(1, t2, t1, 56, "0", 0)
    else:
        p.valu(f"v_mov_b32 v{t1}, s2", wr={t1})
        p.valu(f"v_lshlrev_b32 v{t1}, 9, v{t1}", wr={t1}, rd={t1})
        p.valu(f"v_and_b32 v{t3}, 0xff, v{V_TID}", wr={t3}, rd={V_TID})
        p.valu(f"v_add_u32 v{t1}, v{t1}, v{t3}", wr={t1}, rd={t1, t3})
        p.valu(f"v_lshlrev_b32 v{t1}, 2, v{t1}", wr={t1}, rd={t1})
        p.bstore(1, t2, t1, 56, "0", 0)
p.label("L_end")
p.salu("s_endpgm")

p.label("L_producer")
p.lds_pend = []
p.vm_pend = vm_prod
p.salu(f"s_setprio {opt('pprio', 3)}")
consts()
p.salu(f"s_mov_b32 s{S_THR}, 0x{f32bits(2.0 ** -9):08x}")
p.salu(f"s_mov_b32 s{S_USED}, 0x{USED_MASK32:08x}")
p.salu(f"s_mov_b32 s{S_USED + 1}, 0x{USED_MASK32:08x}")
p.salu(f"s_mul_i32 s{S_PB}, s{S_W4}, {PAIR}")
p.valu(f"v_lshrrev_b32 v{t1}, 5, v{V_LANE}", wr={t1}, rd={V_LANE})
p.valu(f"v_lshl_add_u32 v{V_L16}, v{V_LANE}, 4, s{S_PB}", wr={V_L16}, rd={V_LANE})
p.valu(f"v_and_b32 v{t0}, 31, v{V_LANE}", wr={t0}, rd={V_LANE})
p.valu(f"v_lshl_add_u32 v{t2}, v{t0}, 4, s{S_PB}", wr={t2}, rd={t0})
p.valu(f"v_lshl_add_u32 v{V_WP0}, v{t1}, 10, v{t2}", wr={V_WP0}, rd={t1, t2})
p.valu(f"v_lshl_add_u32 v{V_WP1}, v{t1}, 3, v{t2}", wr={V_WP1}, rd={t1, t2})
ident()
p.valu(f"v_mov_b32 v{RAWV + 9}, 0x3f80", wr={RAWV + 9})
p.valu(f"v_mov_b32 v{RAWV1 + 9}, 0x3f80", wr={RAWV1 + 9})
p.valu(f"v_mov_b32 v{Y + 9}, 0x{MAGIC_A:08x}", wr={Y + 9})
p.valu(f"v_mov_b32 v{RAWK + 9}, 0", wr={RAWK + 9})
p.salu(f"s_mov_b32 s{S_M1}, 0xaaaaaaaa")
p.salu(f"s_mov_b32 s{S_M1 + 1}, 0xaaaaaaaa")
p.salu(f"s_mov_b32 s{S_M2}, 0xcccccccc")
p.salu(f"s_mov_b32 s{S_M2 + 1}, 0xcccccccc")
p.valu(f"v_mov_b32 v{t2}, 0x3f80", wr={t2})
p.valu(f"v_mov_b32 v{t3}, 0x3f800000", wr={t3})
p.valu(f"v_cndmask_b32 v{t2}, v{t2}, v{t3}, s[{S_M1}:{S_M1 + 1}]", wr={t2}, rd={t2, t3})
p.valu(f"v_mov_b32 v{t1}, 0", wr={t1})
p.valu(f"v_cndmask_b32 v{I4}, v{t2}, v{t1}, s[{S_M2}:{S_M2 + 1}]", wr={I4}, rd={t2, t1})
p.valu(f"v_cndmask_b32 v{I4 + 1}, v{t1}, v{t2}, s[{S_M2}:{S_M2 + 1}]", wr={I4 + 1}, rd={t2, t1})
p.ds_write("ds_write_b32", V_FLAGV, t1, 1, 0)
set_waddr("0")
PST = "--pstamp" in FLAGS


def pstamp(k):
    if PST:
        p.salu(f"s_memtime s[{64 + 2 * k}:{65 + 2 * k}]")
        p.raw("s_waitcnt lgkmcnt(0)", "wait")
        p.lds_pend = []


pstamp(1)
if PST:
    p.wait_vm(0)
pstamp(2)
kv_compute(RAWK1, RAWV1, False, fast=("--slowfirst" not in FLAGS))
pstamp(3)
for f in kv_writes():
    f()
t_check("L_end2")
p.lds_pend = []
pstamp(4)
p.raw("s_barrier", "salu")
pstamp(5)
if PST:
    p.salu("s_load_dwordx2 s[80:81], s[0:1], 48")
    p.raw("s_waitcnt lgkmcnt(0)", "wait")
    p.salu("s_mov_b32 s82, 0x1000000")
    p.salu("s_mov_b32 s83, 0x00020000")
    p.valu(f"v_mov_b32 v{t2}, 0", wr={t2})
    for k in range(6):
        p.salu(f"s_sub_u32 s{S_TMP}, s{64 + 2 * k}, s64")
        p.valu(f"v_mov_b32 v{t1}, s{S_TMP}", wr={t1})
        p.valu(f"v_cmp_eq_u32 vcc, {k}, v{V_LANE}", rd={V_LANE}, swr={"vcc"})
        p.valu(f"v_cndmask_b32 v{t2}, v{t2}, v{t1}, vcc", wr={t2}, rd={t2, t1}, srd={"vcc"})
    p.valu(f"v_mov_b32 v{t1}, s2", wr={t1})
    p.valu(f"v_lshlrev_b32 v{t1}, 9, v{t1}", wr={t1}, rd={t1})
    p.valu(f"v_add_u32 v{t1}, v{t1}, v{V_TID}", wr={t1}, rd={t1, V_TID})
    p.valu(f"v_add_u32 v{t1}, 0x100, v{t1}", wr={t1}, rd={t1})
    p.valu(f"v_lshlrev_b32 v{t1}, 2, v{t1}", wr={t1}, rd={t1})
    p.bstore(1, t2, t1, 80, "0", 0)
    p.wait_vm(0)
S_VOFF = S_QH
ld = kv_loads(f"s{S_SOFF}")
for f in ld:
    f()
p.salu(f"s_mov_b32 s{S_CNT}, 1")
p.salu(f"s_mov_b32 s{S_WB}, {BUF}")
p.salu(f"s_add_u32 s{S_VOFF}, s{S_SOFF}, {CHUNKB}")
T12(RAWV)
T3(RAWV)
for f in kv_loads(f"s{S_VOFF}")[:3]:
    f()
m = V_T0
p.valu(f"v_max_f32 v{m}, |v{TD}|, |v{TD + 1}|", wr={m}, rd={TD, TD + 1})
for r in range(2, 32, 2):
    p.valu(f"v_max3_f32 v{m}, |v{TD + r}|, |v{TD + r + 1}|, v{m}", wr={m}, rd={TD + r, TD + r + 1, m})
p.valu(f"v_cmp_gt_f32 vcc, s{S_THR}, v{m}", rd={m}, swr={"vcc"}, srd={S_THR})
p.salu(f"s_and_b64 vcc, vcc, s[{S_USED}:{S_USED + 1}]", srd={"vcc"})
p.salu(f"s_or_b64 s[{S_BADM}:{S_BADM + 1}], s[{S_BADM}:{S_BADM + 1}], vcc")
p.nop(4)
p.label("L_ploop")
p.vm_pend = [rng(RAWK, 4), rng(RAWK + 4, 4), rng(RAWK + 8, 1), rng(RAWV, 4), rng(RAWV + 4, 4), rng(RAWV + 8, 1)]
if "--pidle" in FLAGS:
    p.salu("s_branch L_pnoflag")
set_waddr(f"s{S_WB}")
W = kv_writes()
cv = []
for f in range(4):
    for j in range(4):
        r = TD + 8 * f + 2 * j
        d = PK + 4 * f + j
        cv.append(lambda r=r, d=d: p.valu(f"v_cvt_pk_f16_f32 v{d}, v{r}, v{r + 1}", wr={d}, rd={r, r + 1}))


def cvn(n):
    def f():
        for _ in range(n):
            if cv:
                cv.pop(0)()
    return f


def wv(f):
    return lambda: p.ds_write("ds_write_b128", V_W2, PK + 4 * f, 4, 3072 + 1024 * f)


def seq(*fs):
    def g():
        for f in fs:
            f()
    return g


def next_k():
    p.salu(f"s_add_u32 s{S_SOFF}, s{S_SOFF}, {CHUNKB}")
    p.salu(f"s_cmp_ge_u32 s{S_CNT}, 7")
    p.salu(f"s_cselect_b32 s{S_SOFF}, 0x40000000, s{S_SOFF}")
    for f in kv_loads(f"s{S_SOFF}")[3:]:
        f()


def next_v():
    p.salu(f"s_add_u32 s{S_VOFF}, s{S_VOFF}, {CHUNKB}")
    p.salu(f"s_cmp_ge_u32 s{S_CNT}, 6")
    p.salu(f"s_cselect_b32 s{S_VOFF}, 0x40000000, s{S_VOFF}")
    for f in kv_loads(f"s{S_VOFF}")[:3]:
        f()


hooks = {}
for g in range(5):
    hooks[3 * g + 1] = cvn(1)
    hooks[3 * g + 2] = cvn(2)
hooks[5] = seq(cvn(2), wv(0))
hooks[8] = seq(cvn(2), wv(1))
hooks[14] = seq(cvn(2), wv(2))
hooks[15] = seq(cvn(4), wv(3), next_k)
hooks[16] = lambda: T1(RAWV)
hooks[23] = lambda: T2(RAWV)
hooks[33] = lambda: T3(RAWV)
hooks[36] = W[0]
norm_row_mfma(RAWK, [Y + j for j in range(9)], UREG, GREG, hooks=hooks, nops=False)
assert not cv
for f in W[1:4]:
    f()
next_v()
p.salu(f"s_cmp_lg_u32 s{S_CNT}, 7")
p.salu("s_cbranch_scc1 L_pnoflag")
idx = len(p.ins)
p.salu(f"s_or_b32 s{S_BAD}, s{S_BADM}, s{S_BADM + 1}")
p.valu(f"v_mov_b32 v{t1}, s{S_BAD}", wr={t1})
p.ds_write("ds_or_b32", V_FLAGV, t1, 1, 0)
soft_label("L_pnoflag")
zero_ws(idx)
p.wait_lds(0)
p.raw("s_barrier", "salu")
p.salu(f"s_add_u32 s{S_WB}, s{S_WB}, {BUF}")
p.salu(f"s_cmp_ge_u32 s{S_WB}, {NBUF * BUF}")
p.salu(f"s_cselect_b32 s{S_WB}, 0, s{S_WB}")
p.salu(f"s_add_u32 s{S_CNT}, s{S_CNT}, 1")
p.salu(f"s_cmp_lt_u32 s{S_CNT}, 8")
p.nop(8)
p.salu("s_cbranch_scc1 L_ploop")
p.label("L_end2")
p.salu("s_endpgm")

M3F[0] = False
XP[0] = False
p.label("L_generic")
p.flush()
p.valu(f"v_mul_u32_u24 v{V_GK}, {ROWB}, v{V_LANE}", wr={V_GK}, rd={V_LANE})
p.valu(f"v_and_b32 v{t0}, 31, v{V_LANE}", wr={t0}, rd={V_LANE})
p.valu(f"v_mul_u32_u24 v{V_GV}, {ROWB}, v{t0}", wr={V_GV}, rd={t0})
p.valu(f"v_lshrrev_b32 v{t1}, 5, v{V_LANE}", wr={t1}, rd={V_LANE})
p.valu(f"v_lshl_add_u32 v{V_GV}, v{t1}, 4, v{V_GV}", wr={V_GV}, rd={t1, V_GV})
p.valu(f"v_mov_b32 v{RAWV + 9}, 0x3f80", wr={RAWV + 9})
ident()
p.salu(f"s_mov_b32 s{S_QH}, 0")
p.flush()
p.label("L_g_half")
load_rows(RAWK, V_GQ, S_Q, f"s{S_QOFF}")
q_prep(RAWK, 0, None, 0, False)
for o in GO:
    for r in range(16):
        p.valu(f"v_mov_b32 v{o + r}, 0", wr={o + r})
for g in GM:
    p.valu(f"v_mov_b32 v{g}, 0xff7fffff", wr={g})
p.salu(f"s_mov_b32 s{S_SOFF}, s{S_KOFF}")
p.salu(f"s_mov_b32 s{S_CNT}, 0")
p.flush()
p.label("L_g_pair")
load_rows(RAWK, V_GK, S_K, f"s{S_SOFF}")
load_v(RAWV, f"s{S_SOFF}")
norm_row(RAWK, None, False, [KM[0] + j for j in range(4)] + [KM[1] + j for j in range(4)] + [KE[0]])
p.valu(f"v_mov_b32 v{KE[0] + 2}, v{KE[0]}", wr={KE[0] + 2}, rd={KE[0]})
p.valu(f"v_mov_b32 v{KE[0] + 1}, 0", wr={KE[0] + 1})
p.valu(f"v_mov_b32 v{KE[0] + 3}, 0", wr={KE[0] + 3})
for j in range(4):
    a, b = KM[0] + j, KM[1] + j
    p.valu(f"v_permlane32_swap_b32 v{a}, v{b}", wr={a, b}, rd={a, b}, flags=("permlane",))
p.valu(f"v_permlane32_swap_b32 v{KE[0]}, v{KE[0] + 2}", wr={KE[0], KE[0] + 2}, rd={KE[0], KE[0] + 2},
       flags=("permlane",))
T12(RAWV)
T3(RAWV)
FR = [VA[0], VB[0], VA[1], VB[1]]
for f in range(4):
    for j in range(4):
        r = TD + 8 * f + 2 * j
        p.valu(f"v_cvt_pk_bf16_f32 v{FR[f] + j}, v{r}, v{r + 1}", wr={FR[f] + j}, rd={r, r + 1})
BF = "v_mfma_f32_32x32x16_bf16"
for tau in range(2):
    M1(2 * tau)
    M2(2 * tau)
    M3(2 * tau)
    S = SB[0]
    for ti, o in enumerate(GO):
        s = S + 16 * ti
        m = GM[ti]
        for r in range(16):
            p.valu(f"v_mul_f32 v{s + r}, v{s + r}, v{V_C}", wr={s + r}, rd={s + r, V_C})
        p.valu(f"v_max_f32 v{t0}, v{s}, v{s + 1}", wr={t0}, rd={s, s + 1})
        for r in range(2, 16, 2):
            p.valu(f"v_max3_f32 v{t0}, v{s + r}, v{s + r + 1}, v{t0}", wr={t0}, rd={s + r, s + r + 1, t0})
        p.valu(f"v_mov_b32 v{t1}, v{t0}", wr={t1}, rd={t0})
        p.valu(f"v_permlane32_swap_b32 v{t0}, v{t1}", wr={t0, t1}, rd={t0, t1}, flags=("permlane",))
        p.nop(2)
        p.valu(f"v_max3_f32 v{t0}, v{t0}, v{t1}, v{m}", wr={t0}, rd={t0, t1, m})
        p.valu(f"v_sub_f32 v{t1}, v{m}, v{t0}", wr={t1}, rd={m, t0})
        p.trans(f"v_exp_f32 v{t1}, v{t1}", wr={t1}, rd={t1})
        p.valu(f"v_mov_b32 v{m}, v{t0}", wr={m}, rd={t0})
        for r in range(16):
            p.valu(f"v_mul_f32 v{o + r}, v{o + r}, v{t1}", wr={o + r}, rd={o + r, t1})
        for r in range(16):
            p.valu(f"v_sub_f32 v{s + r}, v{s + r}, v{t0}", wr={s + r}, rd={s + r, t0})
        for r in range(16):
            p.trans(f"v_exp_f32 v{s + r}, v{s + r}", wr={s + r}, rd={s + r})
        for r in range(8):
            p.valu(f"v_cvt_pk_bf16_f32 v{P + 8 * ti + r}, v{s + 2 * r}, v{s + 2 * r + 1}", wr={P + 8 * ti + r},
                   rd={s + 2 * r, s + 2 * r + 1})
        p.mfma(BF, o, 16, VA[tau], 4, P + 8 * ti, 4, o, 8)
        p.mfma(BF, o, 16, VB[tau], 4, P + 8 * ti + 4, 4, o, 8)
p.flush()
p.salu(f"s_add_u32 s{S_SOFF}, s{S_SOFF}, {64 * ROWB}")
p.salu(f"s_add_u32 s{S_CNT}, s{S_CNT}, 1")
p.salu(f"s_cmp_lt_u32 s{S_CNT}, 32")
p.salu("s_cbranch_scc1 L_g_pair")
epilogue(GO, f"s{S_QOFF}", 0, P)
p.flush()
p.salu(f"s_add_u32 s{S_QOFF}, s{S_QOFF}, {64 * ROWB}")
p.salu(f"s_add_u32 s{S_QH}, s{S_QH}, 1")
p.salu(f"s_cmp_lt_u32 s{S_QH}, 2")
p.salu("s_cbranch_scc1 L_g_half")
p.salu("s_endpgm")

hdr = open(f"cdna_kernels/{NAME}.s.ref").read().split("\n")
top = []
for line in hdr:
    if line.startswith("; @launch"):
        top.append(f"; @launch grid=(256,1,1) block=(512,1,1) lds={LDS_BYTES}")
        break
    top.append(line)
body = []
for i in p.ins:
    if "ghost" in i.flags:
        continue
    if i.cls in ("label", "label2"):
        body.append(i.text)
    else:
        body.append("    " + i.text)
DOC = """
;
;   sampled magnitude is too small for f16."""
src = "\n".join(top) + DOC + f"""
.amdgcn_target "amdgcn-amd-amdhsa--gfx950"
.text
.globl {NAME}_kernel
.p2align 12
.p2align 8
.type {NAME}_kernel,@function
{NAME}_kernel:
""" + "\n".join(body) + f"""
.section .rodata,"a"
.p2align 6
.amdhsa_kernel {NAME}_kernel
  .amdhsa_next_free_vgpr {NV + NACC}
  .amdhsa_next_free_sgpr {100 if STAMP else 64}
  .amdhsa_accum_offset {NV}
  .amdhsa_group_segment_fixed_size 0
  .amdhsa_kernarg_size 56
  .amdhsa_user_sgpr_count 2
  .amdhsa_user_sgpr_kernarg_segment_ptr 1
  .amdhsa_system_sgpr_workgroup_id_x 1
.end_amdhsa_kernel
"""
open(OUT, "w").write(src)
print("wrote", OUT, "instructions:", len(body), "auto nops:", p.nops_inserted, "lds", LDS_BYTES)
```

```python
import copy
import struct
import sys
from emit import Prog, Inst, vr, rng

NAME = "standalone__qk_norm__prompt"
OUT = sys.argv[1] if len(sys.argv) > 1 and not sys.argv[1].startswith("--") else f"cdna_kernels/{NAME}.s"
FLAGS = set(a for a in sys.argv[1:] if a.startswith("--"))
FORCE_GENERIC = "--generic" in FLAGS
STAMP = "--stamp" in FLAGS


def opt(name, default):
    for a in FLAGS:
        if a.startswith(f"--{name}="):
            return int(a.split("=")[1])
    return default


BAR_AT = opt("barat", 9)

TENSOR_BYTES = 2 * 32 * 2048 * 18 * 2
ROWB = 36
PAIR = 7168
BUF = 4 * PAIR
NBUF = 3
FLAG = NBUF * BUF
LDS_BYTES = FLAG + 64
CHUNKB = 256 * ROWB


def f32bits(x):
    return struct.unpack("<I", struct.pack("<f", x))[0]


def f16bits(x):
    return struct.unpack("<H", struct.pack("<e", x))[0]


LOG2E = 1.4426950408889634
MAGIC_A = f16bits(192.0) | (f16bits(220.0) << 16)
MAGIC_B = f16bits(192.0) | (f16bits(131.0) << 16)
T_MAX_BITS = 0x402F0000


def drow(d):
    if d < 10:
        r, h = d, 0
    else:
        r, h = d - 10, 1
    return 8 * (r // 4) + 4 * h + (r % 4)


USED_MASK32 = sum(1 << drow(d) for d in range(18))

S_Q, S_K, S_V, S_O = 16, 20, 24, 28
S_HEAD, S_QB, S_WAVE, S_T, S_KOFF, S_QOFF = 32, 33, 34, 35, 36, 37
S_TMP, S_TMP2 = 38, 39
S_BADM = 40
S_BAD = 42
S_QH = 43
S_HIMASK, S_EPS, S_CLS, S_THR, S_SOFF, S_CNT = 44, 45, 46, 47, 48, 49
S_WB, S_PB = 50, 51
S_W4 = 52
S_USED = 54
S_M1, S_M2 = 56, 58

V_TID, V_LANE = 0, 1
V_GK, V_GV, V_GQ, V_L16 = 2, 3, 4, 5
V_CUR, V_NXT = 6, 7
V_WP0, V_WP1 = 8, 9
V_W0, V_W1, V_W2 = 10, 11, 12
V_C, V_FLAGV = 13, 14
V_EA0, V_EA1 = 15, 28
V_T0 = 16
GM = [29, 30]
V_PF = 31
PF_LAST = 0x2180
QE = [32, 34]
QM0 = [36, 44]
QM1 = [40, 48]
KE = [52, 56]
KM = [60, 64]
VA = [68, 72]
VB = [76, 80]
P = 84
SB = [100, 132]
OA = [164, 180, 196, 212]
BE = 228
BI = 232
NV = 240
NACC = 0
RQ = [100, 112]
RAWK = 164
RAWV = 176
TD = 188
Y = 100
RAWK1, RAWV1 = 112, 124
GO = [132, 148]
UREG = 136
GREG = 156
PK = 32
I4 = 160

p = Prog()
t0, t1, t2, t3 = V_T0, V_T0 + 1, V_T0 + 2, V_T0 + 3
NSTAMP = [0]


def stamp():
    if STAMP:
        k = NSTAMP[0]
        NSTAMP[0] += 1
        p.salu(f"s_memtime s[{64 + 2 * k}:{65 + 2 * k}]")
        p.raw("s_waitcnt lgkmcnt(0)", "wait")
        p.lds_pend = []


def soft_label(name):
    p.ins.append(Inst(f"{name}:", "label2", ws=0))


def zero_ws(idx):
    for i in p.ins[idx:]:
        i.ws = 0


def load_rows(dst, voff, srd, soff, off=0):
    p.bload(4, dst, voff, srd, soff, off)
    p.bload(4, dst + 4, voff, srd, soff, off + 16)
    p.bload(1, dst + 8, voff, srd, soff, off + 32)


def load_v(dst, soff):
    p.bload(4, dst, V_GV, S_V, soff, 0)
    p.bload(4, dst + 4, V_GV, S_V, soff, 32 * ROWB)
    p.bload(1, dst + 8, V_GK, S_V, soff, 32)


def norm_row(x, scale_reg, check, dst, hooks=None):
    ops = []
    a, b = V_T0, V_T0 + 1
    for j in range(9):
        acc = a if j % 2 == 0 else b
        c = "0" if j < 2 else f"v{acc}"
        ops.append(lambda j=j, acc=acc, c=c: p.valu(f"v_dot2_f32_bf16 v{acc}, v{x + j}, v{x + j}, {c}", wr={acc},
                                                    rd={x + j}, flags=("dot", "dotc")))
    R = V_T0 + 2
    T = [V_T0 + 4, V_T0 + 6, V_T0 + 8, V_T0 + 10]

    def unpack(j):
        t = T[j % 4]
        ops.append(lambda: p.valu(f"v_lshlrev_b32 v{t}, 16, v{x + j}", wr={t}, rd={x + j}))
        ops.append(lambda: p.valu(f"v_and_b32 v{t + 1}, s{S_HIMASK}, v{x + j}", wr={t + 1}, rd={x + j},
                                  srd={S_HIMASK}))
    unpack(0)
    unpack(1)
    ops.append(lambda: p.valu(f"v_add_f32 v{a}, v{a}, v{b}", wr={a}, rd={a, b}))
    ops.append(lambda: p.trans(f"v_sqrt_f32 v{R}, v{a}", wr={R}, rd={a}))
    if check:
        ops.append(lambda: p.valu(f"v_cmp_class_f32 vcc, v{a}, s{S_CLS}", rd={a}, swr={"vcc"}, srd={S_CLS}))
    else:
        unpack(2)
    ops.append(lambda: p.valu(f"v_add_f32 v{R}, s{S_EPS}, v{R}", wr={R}, rd={R}, srd={S_EPS}))
    ops.append(lambda: p.trans(f"v_rcp_f32 v{R}, v{R}", wr={R}, rd={R}))
    if check:
        unpack(2)
        ops.append(lambda: p.salu(f"s_or_b64 s[{S_BADM}:{S_BADM + 1}], s[{S_BADM}:{S_BADM + 1}], vcc", srd={"vcc"}))
    if scale_reg is not None:
        ops.append(lambda: p.valu(f"v_mul_f32 v{R}, v{R}, v{scale_reg}", wr={R}, rd={R, scale_reg}))
    for j in range(9):
        t = T[j % 4]
        ops.append(lambda t=t: p.valu(f"v_pk_mul_f32 v[{t}:{t + 1}], v[{t}:{t + 1}], v[{R}:{R + 1}] op_sel_hi:[1,0]",
                                      wr={t, t + 1}, rd={t, t + 1, R}))
        if j + 3 < 9:
            unpack(j + 3)
        ops.append(lambda t=t, j=j: p.valu(f"v_cvt_pk_f16_f32 v{dst[j]}, v{t}, v{t + 1}", wr={dst[j]},
                                           rd={t, t + 1}))
    for n, f in enumerate(ops):
        if hooks and n in hooks:
            hooks[n]()
        f()


def norm_row_plain(x, dst, U, hooks=None):
    ops = []
    a, b = V_T0, V_T0 + 1
    R = V_T0 + 2
    for j in range(9):
        lo, hi = U + 2 * j, U + 2 * j + 1
        ops.append(lambda j=j, lo=lo: p.valu(f"v_lshlrev_b32 v{lo}, 16, v{x + j}", wr={lo}, rd={x + j}))
        ops.append(lambda j=j, hi=hi: p.valu(f"v_and_b32 v{hi}, s{S_HIMASK}, v{x + j}", wr={hi}, rd={x + j},
                                             srd={S_HIMASK}))
        for acc, u in ((a, lo), (b, hi)):
            if j == 0:
                ops.append(lambda acc=acc, u=u: p.valu(f"v_mul_f32 v{acc}, v{u}, v{u}", wr={acc}, rd={u}))
            else:
                ops.append(lambda acc=acc, u=u: p.valu(f"v_fmac_f32 v{acc}, v{u}, v{u}", wr={acc}, rd={u, acc}))
    ops.append(lambda: p.valu(f"v_add_f32 v{a}, v{a}, v{b}", wr={a}, rd={a, b}))
    ops.append(lambda: p.trans(f"v_sqrt_f32 v{R}, v{a}", wr={R}, rd={a}))
    ops.append(lambda: p.valu(f"v_cmp_class_f32 vcc, v{a}, s{S_CLS}", rd={a}, swr={"vcc"}, srd={S_CLS}))
    ops.append(lambda: p.valu(f"v_add_f32 v{R}, s{S_EPS}, v{R}", wr={R}, rd={R}, srd={S_EPS}))
    ops.append(lambda: p.trans(f"v_rcp_f32 v{R}, v{R}", wr={R}, rd={R}))
    ops.append(lambda: p.salu(f"s_or_b64 s[{S_BADM}:{S_BADM + 1}], s[{S_BADM}:{S_BADM + 1}], vcc", srd={"vcc"}))
    for j in range(9):
        lo, hi = U + 2 * j, U + 2 * j + 1
        ops.append(lambda lo=lo: p.valu(f"v_mul_f32 v{lo}, v{lo}, v{R}", wr={lo}, rd={lo, R}))
        ops.append(lambda hi=hi: p.valu(f"v_mul_f32 v{hi}, v{hi}, v{R}", wr={hi}, rd={hi, R}))
        ops.append(lambda j=j, lo=lo, hi=hi: p.valu(f"v_cvt_pk_f16_f32 v{dst[j]}, v{lo}, v{hi}", wr={dst[j]},
                                                    rd={lo, hi}))
    for n, f in enumerate(ops):
        if hooks and n in hooks:
            hooks[n]()
        f()


def norm_row_mfma(x, dst, U, GR, hooks=None, nops=True):
    ops = []
    a = V_T0
    R = V_T0 + 2
    OP = "v_mfma_f32_4x4x4_16b_bf16"
    for g in range(5):
        ops.append(lambda g=g: p.mfma(OP, GR, 4, x + 2 * g, 2, x + 2 * g, 2, None if g == 0 else GR, 2))
        ops.append(lambda g=g: p.mfma(OP, U + 4 * g, 4, I4, 2, x + 2 * g, 2, None, 2))
        ops.append(lambda: p.nop(1) if nops else None)
    ops.append(lambda: p.valu(f"v_cndmask_b32 v{a}, v{GR}, v{GR + 1}, s[{S_M1}:{S_M1 + 1}]", wr={a}, rd={GR, GR + 1}))
    ops.append(lambda: p.valu(f"v_cndmask_b32 v{a + 1}, v{GR + 2}, v{GR + 3}, s[{S_M1}:{S_M1 + 1}]", wr={a + 1},
                              rd={GR + 2, GR + 3}))
    ops.append(lambda: p.valu(f"v_cndmask_b32 v{a}, v{a}, v{a + 1}, s[{S_M2}:{S_M2 + 1}]", wr={a}, rd={a, a + 1}))
    ops.append(lambda: p.trans(f"v_sqrt_f32 v{R}, v{a}", wr={R}, rd={a}))
    ops.append(lambda: p.valu(f"v_cmp_class_f32 vcc, v{a}, s{S_CLS}", rd={a}, swr={"vcc"}, srd={S_CLS}))
    ops.append(lambda: p.valu(f"v_add_f32 v{R}, s{S_EPS}, v{R}", wr={R}, rd={R}, srd={S_EPS}))
    ops.append(lambda: p.trans(f"v_rcp_f32 v{R}, v{R}", wr={R}, rd={R}))
    ops.append(lambda: p.salu(f"s_or_b64 s[{S_BADM}:{S_BADM + 1}], s[{S_BADM}:{S_BADM + 1}], vcc", srd={"vcc"}))
    for j in range(9):
        lo, hi = U + 2 * j, U + 2 * j + 1
        ops.append(lambda lo=lo: p.valu(f"v_mul_f32 v{lo}, v{lo}, v{R}", wr={lo}, rd={lo, R}))
        ops.append(lambda hi=hi: p.valu(f"v_mul_f32 v{hi}, v{hi}, v{R}", wr={hi}, rd={hi, R}))
        ops.append(lambda j=j, lo=lo, hi=hi: p.valu(f"v_cvt_pk_f16_f32 v{dst[j]}, v{lo}, v{hi}", wr={dst[j]},
                                                    rd={lo, hi}))
    for n, f in enumerate(ops):
        if hooks and n in hooks:
            hooks[n]()
        f()


def T1(raw):
    p.mfma("v_mfma_f32_32x32x16_bf16", TD, 16, raw, 4, BI, 4, None, 8)


def T2(raw):
    p.mfma("v_mfma_f32_32x32x16_bf16", TD + 16, 16, raw + 4, 4, BI, 4, None, 8)


def T12(raw):
    T1(raw)
    T2(raw)


def T3(raw):
    p.mfma("v_mfma_f32_32x32x4_2b_bf16", TD, 32, raw + 8, 2, BE, 2, TD, 16)


def kv_compute(rawk, rawv, first, lead=0, fast=False):
    if fast:
        hooks = {21: lambda: T1(rawv), 22: lambda: T2(rawv), 34: lambda: T3(rawv)}
        T1(rawv)
        T2(rawv)
        norm_row(rawk, None, True, [Y + j for j in range(9)], hooks={10: lambda: T3(rawv)})
    else:
        if "--plain" in FLAGS:
            hooks = {lead: lambda: T1(rawv), lead + 8: lambda: T2(rawv), lead + 18: lambda: T3(rawv)}
            norm_row_plain(rawk, [Y + j for j in range(9)], UREG, hooks=hooks)
        else:
            hooks = {0: lambda: T12(rawv), 15: lambda: T3(rawv)}
            norm_row_mfma(rawk, [Y + j for j in range(9)], UREG, GREG, hooks=hooks)
    if first:
        p.salu(f"s_cmp_lg_u32 s{S_CNT}, 1")
        p.salu("s_cbranch_scc1 L_nosample")
        idx = len(p.ins)
        m = V_T0
        p.valu(f"v_max_f32 v{m}, |v{TD}|, |v{TD + 1}|", wr={m}, rd={TD, TD + 1})
        for r in range(2, 32, 2):
            p.valu(f"v_max3_f32 v{m}, |v{TD + r}|, |v{TD + r + 1}|, v{m}", wr={m}, rd={TD + r, TD + r + 1, m})
        p.valu(f"v_cmp_gt_f32 vcc, s{S_THR}, v{m}", rd={m}, swr={"vcc"}, srd={S_THR})
        p.salu(f"s_and_b64 vcc, vcc, s[{S_USED}:{S_USED + 1}]", srd={"vcc"})
        p.salu(f"s_or_b64 s[{S_BADM}:{S_BADM + 1}], s[{S_BADM}:{S_BADM + 1}], vcc")
        soft_label("L_nosample")
        zero_ws(idx)
    for f in range(4):
        for j in range(4):
            r = TD + 8 * f + 2 * j
            d = TD + 8 * f + j
            p.valu(f"v_cvt_pk_f16_f32 v{d}, v{r}, v{r + 1}", wr={d}, rd={r, r + 1})


def kv_writes():
    w = [lambda: p.ds_write("ds_write_b128", V_W0, Y, 4, 0),
         lambda: p.ds_write("ds_write_b128", V_W0, Y + 4, 4, 512),
         lambda: p.ds_write("ds_write_b64", V_W1, Y + 8, 2, 2048),
         lambda: p.ds_write("ds_write_b64", V_W1, Y + 8, 2, 2048 + 512)]
    for f in range(4):
        w.append(lambda f=f: p.ds_write("ds_write_b128", V_W2, TD + 8 * f, 4, 3072 + 1024 * f))
    return w


def kv_loads(soff):
    return [lambda: p.bload(4, RAWV, V_GV, S_V, soff, 0),
            lambda: p.bload(4, RAWV + 4, V_GV, S_V, soff, 32 * ROWB),
            lambda: p.bload(1, RAWV + 8, V_GK, S_V, soff, 32),
            lambda: p.bload(4, RAWK, V_GK, S_K, soff, 0),
            lambda: p.bload(4, RAWK + 4, V_GK, S_K, soff, 16),
            lambda: p.bload(1, RAWK + 8, V_GK, S_K, soff, 32)]


def set_waddr(sbase):
    p.valu(f"v_add_u32 v{V_W0}, {sbase}, v{V_WP0}", wr={V_W0}, rd={V_WP0})
    p.valu(f"v_add_u32 v{V_W1}, {sbase}, v{V_WP1}", wr={V_W1}, rd={V_WP1})
    p.valu(f"v_add_u32 v{V_W2}, {sbase}, v{V_L16}", wr={V_W2}, rd={V_L16})


def q_prep(raw, hq, scale_reg, magic, check, hooks=None):
    dst = [QM0[hq] + j for j in range(4)] + [QM1[hq] + j for j in range(4)] + [QE[hq]]
    norm_row(raw, scale_reg, check, dst, hooks)
    p.valu(f"v_mov_b32 v{QE[hq] + 1}, 0x{magic:08x}", wr={QE[hq] + 1})
    for j in range(4):
        a, b = QM0[hq] + j, QM1[hq] + j
        p.valu(f"v_permlane32_swap_b32 v{a}, v{b}", wr={a, b}, rd={a, b}, flags=("permlane",))


if STAMP:
    p.salu("s_memrealtime s[60:61]")
stamp()
p.salu("s_cmp_ge_u32 s2, 256")
p.salu("s_cbranch_scc1 L_end")
p.salu("s_load_dwordx8 s[4:11], s[0:1], 0")
p.salu("s_load_dwordx2 s[12:13], s[0:1], 32")
if "--pf" in FLAGS:
    p.salu("s_getpc_b64 s[14:15]")
    p.valu(f"v_lshlrev_b32 v{t3}, 7, v{V_TID}", wr={t3}, rd={V_TID})
    p.valu(f"v_min_u32 v{t3}, 0x{PF_LAST:x}, v{t3}", wr={t3}, rd={t3})
    p.add(Inst(f"global_load_dword v{V_PF}, v{t3}, s[14:15]", "vmem", wr={V_PF}, rd={t3}))
    p.vm_pend.append({V_PF})
p.valu(f"v_lshrrev_b32 v{t0}, 6, v{V_TID}", wr={t0}, rd={V_TID})
p.salu(f"s_and_b32 s{S_TMP}, s2, 7")
p.salu(f"s_lshr_b32 s{S_TMP2}, s2, 3")
p.valu(f"v_readfirstlane_b32 s{S_WAVE}, v{t0}", rd={t0}, swr={S_WAVE}, flags=("readlane",))
p.salu(f"s_and_b32 s{S_QB}, s{S_TMP2}, 3")
p.salu(f"s_lshr_b32 s{S_TMP2}, s{S_TMP2}, 2")
p.salu(f"s_lshl_b32 s{S_HEAD}, s{S_TMP}, 3")
p.salu(f"s_add_u32 s{S_HEAD}, s{S_HEAD}, s{S_TMP2}")
p.salu(f"s_mul_i32 s{S_KOFF}, s{S_HEAD}, {2048 * ROWB}")
p.salu(f"s_mul_i32 s{S_TMP}, s{S_QB}, {512 * ROWB}")
p.salu(f"s_add_u32 s{S_QOFF}, s{S_KOFF}, s{S_TMP}")
p.salu(f"s_and_b32 s{S_W4}, s{S_WAVE}, 3", srd={S_WAVE})
p.salu(f"s_mul_i32 s{S_TMP}, s{S_W4}, {128 * ROWB}")
p.salu(f"s_add_u32 s{S_QOFF}, s{S_QOFF}, s{S_TMP}")
p.valu(f"v_and_b32 v{V_LANE}, 63, v{V_TID}", wr={V_LANE}, rd={V_TID})
p.valu(f"v_and_b32 v{t0}, 0xff, v{V_TID}", wr={t0}, rd={V_TID})
p.valu(f"v_mul_u32_u24 v{V_GK}, {ROWB}, v{t0}", wr={V_GK}, rd={t0})
p.valu(f"v_mul_u32_u24 v{V_GQ}, {ROWB}, v{V_LANE}", wr={V_GQ}, rd={V_LANE})
p.valu(f"v_and_b32 v{t0}, 0xdf, v{V_TID}", wr={t0}, rd={V_TID})
p.valu(f"v_mul_u32_u24 v{V_GV}, {ROWB}, v{t0}", wr={V_GV}, rd={t0})
p.valu(f"v_lshrrev_b32 v{t1}, 5, v{V_LANE}", wr={t1}, rd={V_LANE})
p.valu(f"v_lshl_add_u32 v{V_GV}, v{t1}, 4, v{V_GV}", wr={V_GV}, rd={t1, V_GV})
p.salu(f"s_and_b32 s{S_TMP}, s{S_HEAD}, 30")
p.salu(f"s_lshl_b32 s{S_TMP}, s{S_TMP}, 1")
p.salu(f"s_add_u32 s{S_SOFF}, s{S_KOFF}, {CHUNKB}")
p.raw("s_waitcnt lgkmcnt(0)", "wait")
p.salu(f"s_load_dword s{S_T}, s[10:11], s{S_TMP}")
for srd, ptr in ((S_K, 6), (S_V, 8), (S_Q, 4), (S_O, 12)):
    p.salu(f"s_mov_b32 s{srd}, s{ptr}")
    p.salu(f"s_mov_b32 s{srd + 1}, s{ptr + 1}")
    p.salu(f"s_mov_b32 s{srd + 2}, {TENSOR_BYTES}")
    p.salu(f"s_mov_b32 s{srd + 3}, 0x00020000")


def consts():
    p.salu(f"s_mov_b32 s{S_HIMASK}, 0xffff0000")
    p.salu(f"s_mov_b32 s{S_EPS}, 0x{f32bits(1e-6):08x}")
    p.salu(f"s_mov_b32 s{S_CLS}, 0x207")
    p.salu(f"s_mov_b64 s[{S_BADM}:{S_BADM + 1}], 0")
    p.valu(f"v_mov_b32 v{V_FLAGV}, 0x{FLAG:x}", wr={V_FLAGV})


def ident():
    for i in range(4):
        p.valu(f"v_mov_b32 v{BI + i}, 0", wr={BI + i})
    p.valu(f"v_mov_b32 v{BE}, 0", wr={BE})
    p.valu(f"v_mov_b32 v{BE + 1}, 0", wr={BE + 1})
    p.salu(f"s_mov_b32 s{S_TMP}, 0x3f80")
    p.salu(f"s_mov_b32 s{S_TMP2}, 0x3f800000")
    for k in range(16):
        lane = (k // 8) * 32 + drow(k)
        i = (k % 8) // 2
        p.valu(f"v_writelane_b32 v{BI + i}, s{S_TMP if k % 2 == 0 else S_TMP2}, {lane}", wr={BI + i}, rd={BI + i})
    for col, reg, val in ((drow(16), BE, S_TMP), (drow(17), BE, S_TMP2), (18, BE + 1, S_TMP), (22, BE + 1, S_TMP)):
        for h in range(2):
            p.valu(f"v_writelane_b32 v{reg}, s{val}, {col + 32 * h}", wr={reg}, rd={reg})


def t_check(target):
    p.raw("s_waitcnt lgkmcnt(0)", "wait")
    p.salu(f"s_lshl_b32 s{S_TMP}, s{S_T}, 16")
    p.salu(f"s_and_b32 s{S_TMP2}, s{S_T}, 0xffff0000")
    p.salu(f"s_bitcmp1_b32 s{S_HEAD}, 0")
    p.salu(f"s_cselect_b32 s{S_T}, s{S_TMP2}, s{S_TMP}")
    p.valu(f"v_mov_b32 v{V_C}, 0x{f32bits(LOG2E):08x}", wr={V_C})
    p.valu(f"v_mul_f32 v{V_C}, s{S_T}, v{V_C}", wr={V_C}, rd={V_C})
    p.salu(f"s_and_b32 s{S_TMP}, s{S_T}, 0x7fffffff")
    if FORCE_GENERIC:
        p.salu(f"s_branch {target}")
    else:
        p.salu(f"s_cmp_gt_u32 s{S_TMP}, 0x{T_MAX_BITS:x}")
        p.salu(f"s_cbranch_scc1 {target}")


p.salu(f"s_cmp_ge_u32 s{S_WAVE}, 4")
p.salu("s_cbranch_scc0 L_compute" if "--prodlast" in FLAGS else "s_cbranch_scc1 L_compute")
idx = len(p.ins)
vm_save = list(p.vm_pend)
load_v(RAWV1, f"s{S_KOFF}")
load_rows(RAWK1, V_GK, S_K, f"s{S_KOFF}")
vm_prod = list(p.vm_pend)
p.salu("s_branch L_producer")
soft_label("L_compute")
zero_ws(idx)
p.vm_pend = vm_save

load_rows(RQ[0], V_GQ, S_Q, f"s{S_QOFF}")
if "--qtogether" in FLAGS:
    load_rows(RQ[1], V_GQ, S_Q, f"s{S_QOFF}", 64 * ROWB)
consts()
p.valu(f"v_lshlrev_b32 v{V_CUR}, 4, v{V_LANE}", wr={V_CUR}, rd={V_LANE})
p.valu(f"v_add_u32 v{V_NXT}, 0x{BUF:x}, v{V_CUR}", wr={V_NXT}, rd={V_CUR})
p.valu(f"v_and_b32 v{t0}, 31, v{V_LANE}", wr={t0}, rd={V_LANE})
p.valu(f"v_mul_u32_u24 v{t2}, {ROWB}, v{t0}", wr={t2}, rd={t0})
p.valu(f"v_mul_u32_u24 v{V_EA0}, 20, v{t1}", wr={V_EA0}, rd={t1})
p.valu(f"v_add_u32 v{V_EA0}, v{V_EA0}, v{t2}", wr={V_EA0}, rd={V_EA0, t2})
p.valu(f"v_lshl_add_u32 v{V_EA1}, v{t1}, 30, v{t2}", wr={V_EA1}, rd={t1, t2})
for r in list(range(OA[0], OA[0] + 64)) + list(range(P + 8, P + 16)) + list(range(VB[1], VB[1] + 4)) + list(range(VA[1], VA[1] + 4)):
    p.valu(f"v_mov_b32 v{r}, 0", wr={r})
if "--qtogether" not in FLAGS:
    load_rows(RQ[1], V_GQ, S_Q, f"s{S_QOFF}", 64 * ROWB)
t_check("L_generic")
stamp()
q_prep(RQ[0], 0, V_C, MAGIC_B, True)
q_prep(RQ[1], 1, V_C, MAGIC_B, True)
stamp()
p.raw("s_barrier", "salu")
stamp()

F16 = "v_mfma_f32_32x32x16_f16"


def taddr(j):
    return (V_CUR if j < 8 else V_NXT), ((j % 8) // 2) * PAIR, j % 2


def rd_km(j):
    a, o, tp = taddr(j)
    p.ds_read("ds_read_b128", KM[j % 2], 4, a, o + 1024 * tp)


def rd_ke(j):
    a, o, tp = taddr(j)
    assert tp == 0
    p.ds_read("ds_read_b128", KE[(j // 2) % 2], 4, a, o + 2048)


def rd_va(j):
    a, o, tp = taddr(j)
    p.ds_read("ds_read_b128", VA[j % 2], 4, a, o + 3072 + 2048 * tp)


def rd_vb(j):
    a, o, tp = taddr(j)
    p.ds_read("ds_read_b128", VB[j % 2], 4, a, o + 4096 + 2048 * tp)


XP = [True]
M3F = ["--m3first" in FLAGS]
SCHED2 = "--sched1" not in FLAGS and not M3F[0]


def M1(m):
    p.mfma(F16, SB[m % 2], 16, KM[(m // 2) % 2], 4, QM0[m % 2], 4, SB[m % 2] if M3F[0] else None, 8)


def M2(m):
    p.mfma(F16, SB[m % 2] + 16, 16, KM[(m // 2) % 2], 4, QM1[m % 2], 4, SB[m % 2] + 16 if M3F[0] else None, 8)


def M3(m):
    j = m // 2
    if "--m3x8" in FLAGS and XP[0]:
        for h in range(2):
            p.mfma("v_mfma_f32_32x32x8_f16", SB[m % 2] + 16 * h, 16, KE[(j // 2) % 2] + 2 * (j % 2), 2, QE[m % 2], 2,
                   SB[m % 2] + 16 * h, 8)
        return
    if "--nom3" in FLAGS and XP[0]:
        return
    p.mfma("v_mfma_f32_32x32x4_2b_f16", SB[m % 2], 32, KE[(j // 2) % 2] + 2 * (j % 2), 2, QE[m % 2], 2,
           None if M3F[0] else SB[m % 2], 16)


def PV(which, m):
    if "--nopv" in FLAGS:
        return
    j = m // 2
    o = OA[2 * (m % 2) + (0 if which <= 2 else 1)]
    v = VA[j % 2] if which % 2 == 1 else VB[j % 2]
    if "--pvswap" in FLAGS:
        p.mfma(F16, o, 16, P + 4 * (which - 1), 4, v, 4, o, 8)
        return
    p.mfma(F16, o, 16, v, 4, P + 4 * (which - 1), 4, o, 8)


def G(g, m, mid=None):
    s = SB[m % 2] + 4 * g
    d = P + 2 * g
    p.trans(f"v_exp_f16 v{d}, v{s}", wr={d}, rd={s})
    p.trans(f"v_exp_f16 v{d + 1}, v{s + 2}", wr={d + 1}, rd={s + 2})
    p.trans(f"v_exp_f16_sdwa v{d}, v{s + 1} dst_sel:WORD_1 dst_unused:UNUSED_PRESERVE src0_sel:WORD_0",
            wr={d}, rd={s + 1, d}, flags=("sdwa",))
    if mid:
        mid()
    p.trans(f"v_exp_f16_sdwa v{d + 1}, v{s + 3} dst_sel:WORD_1 dst_unused:UNUSED_PRESERVE src0_sel:WORD_0",
            wr={d + 1}, rd={s + 3, d + 1}, flags=("sdwa",))


PREP_AT = opt("prepat", 5)


def chunk_body(tag):
    for m in range(16):
        j = m // 2
        sq = []
        if m == BAR_AT and "--nobar" not in FLAGS:
            assert m % 2 == 1
            sq = [None, None, None, None, None, lambda: p.raw("s_barrier", "salu")]
        if m == 15:
            sq = [lambda: p.salu(f"s_add_u32 s{S_WB}, s{S_WB}, {BUF}"),
                  lambda: p.salu(f"s_cmp_ge_u32 s{S_WB}, {NBUF * BUF}"),
                  lambda: p.salu(f"s_cselect_b32 s{S_WB}, 0, s{S_WB}"),
                  lambda: p.salu(f"s_add_u32 s{S_CNT}, s{S_CNT}, 1"),
                  lambda: p.salu(f"s_cmp_lt_u32 s{S_CNT}, 8")]

        def X():
            if sq:
                f = sq.pop(0)
                if f:
                    f()

        if SCHED2:
            G(0, m)
            PV(3, m - 1)
            if m % 2 == 0:
                p.wait_lds(0)
                rd_km(j + 2)
                if j % 2 == 0:
                    rd_ke(j + 2)
            X()
            G(1, m)
            PV(4, m - 1)
            if m % 2 == 0:
                rd_vb(j + 1)
                rd_va(j + 1)
            X()
            G(2, m)
            M3(m + 1)
            G(3, m)
            if opt("idle", 0):
                p.nop(opt("idle", 0))
            G(4, m)
            PV(1, m)
            X()
            if m == 15:
                p.valu(f"v_mov_b32 v{V_CUR}, v{V_NXT}", wr={V_CUR}, rd={V_NXT})
                p.valu(f"v_lshl_add_u32 v{V_NXT}, v{V_LANE}, 4, s{S_WB}", wr={V_NXT}, rd={V_LANE})
            G(5, m)
            PV(2, m)
            X()
            G(6, m)
            M1(m + 2)
            X()
            G(7, m)
            M2(m + 2)
            X()
            assert not sq
            continue
        if M3F[0]:
            G(0, m)
            G(1, m)
            PV(4, m - 1)
            if m % 2 == 0:
                p.wait_lds(0)
                rd_vb(j + 1)
                rd_va(j + 1)
            X()
            G(2, m)
            PV(1, m)
            X()
            G(3, m)
            M1(m + 1)
            X()
            if m == 15:
                p.valu(f"v_mov_b32 v{V_CUR}, v{V_NXT}", wr={V_CUR}, rd={V_NXT})
                p.valu(f"v_lshl_add_u32 v{V_NXT}, v{V_LANE}, 4, s{S_WB}", wr={V_NXT}, rd={V_LANE})
            G(4, m)
            PV(2, m)
            X()
            G(5, m)
            M2(m + 1)
            if m % 2 == 0:
                rd_km(j + 2)
                if j % 2 == 0:
                    rd_ke(j + 2)
            X()
            G(6, m)
            PV(3, m)
            X()
            G(7, m)
            M3(m + 2)
            assert not sq
            continue
        G(0, m)
        M2(m + 1)
        if m % 2 == 0:
            p.wait_lds(0)
            rd_km(j + 2)
            if j % 2 == 0:
                rd_ke(j + 2)
        X()
        G(1, m)
        PV(4, m - 1)
        if m % 2 == 0:
            rd_vb(j + 1)
            rd_va(j + 1)
        X()
        G(2, m)
        PV(1, m)
        X()
        G(3, m, mid=lambda: M3(m + 1))
        if m == 15:
            p.valu(f"v_mov_b32 v{V_CUR}, v{V_NXT}", wr={V_CUR}, rd={V_NXT})
            p.valu(f"v_lshl_add_u32 v{V_NXT}, v{V_LANE}, 4, s{S_WB}", wr={V_NXT}, rd={V_LANE})
        G(4, m)
        G(5, m)
        PV(2, m)
        X()
        G(6, m)
        M1(m + 2)
        X()
        G(7, m)
        PV(3, m)
        X()
        assert not sq


assert BAR_AT <= 11
p.salu(f"s_mov_b32 s{S_CNT}, 0")
p.salu(f"s_mov_b32 s{S_WB}, {BUF}")
rd_km(0)
rd_ke(0)
rd_km(1)
rd_vb(0)
rd_va(0)
if M3F[0]:
    M3(0)
    M1(0)
    M2(0)
    M3(1)
elif SCHED2:
    M1(0)
    M2(0)
    M1(1)
    M2(1)
    M3(0)
else:
    M1(0)
    M2(0)
    M1(1)
    M3(0)
p.wait_lds(0)
p.nop(20)

saved = (p.ins, p.nops_inserted)
p.ins = []
p.lds_pend = []
p.vm_pend = []
chunk_body("d")
tail = p.ins[-60:]
steady = list(p.lds_pend)
p.ins, p.nops_inserted = saved
p.ins.append(Inst(".p2align 6", "other", ws=0))
p.label("L_loop")
for i in tail:
    g = copy.copy(i)
    g.flags = set(g.flags) | {"ghost"}
    p.ins.append(g)
p.lds_pend = list(steady)
p.vm_pend = []
chunk_body("A")
assert [sorted(x) for x in p.lds_pend] == [sorted(x) for x in steady], (p.lds_pend, steady)
p.salu("s_cbranch_scc1 L_loop")
if SCHED2:
    PV(3, 15)
PV(4, 15)
stamp()
p.ds_read("ds_read_b32", V_FLAGV, 1, V_FLAGV, 0)


def epilogue(o_regs, soff, off0, ybase):
    for ti, o in enumerate(o_regs):
        R = V_T0 + 4 + 2 * ti
        y = ybase + 8 * ti
        p.trans(f"v_rcp_f32 v{R}, v{o + 10}", wr={R}, rd={o + 10})
        for j in range(5):
            p.valu(f"v_pk_mul_f32 v[{o + 2 * j}:{o + 2 * j + 1}], v[{o + 2 * j}:{o + 2 * j + 1}], v[{R}:{R + 1}] op_sel_hi:[1,0]",
                   wr={o + 2 * j, o + 2 * j + 1}, rd={o + 2 * j, o + 2 * j + 1, R})
        for j in range(5):
            p.valu(f"v_cvt_pk_bf16_f32 v{y + j}, v{o + 2 * j}, v{o + 2 * j + 1}", wr={y + j},
                   rd={o + 2 * j, o + 2 * j + 1})
        p.bstore(4, y, V_EA0, S_O, soff, off0 + ti * 32 * ROWB)
        p.bstore(1, y + 4, V_EA1, S_O, soff, off0 + ti * 32 * ROWB + 16)


o = OA[0]
p.valu(f"v_add_f32 v{t0}, |v{o}|, |v{o + 1}|", wr={t0}, rd={o, o + 1})
for r in range(2, 10):
    p.valu(f"v_add_f32 v{t0}, |v{o + r}|, v{t0}", wr={t0}, rd={o + r, t0})
p.valu(f"v_cmp_class_f32 vcc, v{t0}, s{S_CLS}", rd={t0}, swr={"vcc"}, srd={S_CLS})
p.valu(f"v_readfirstlane_b32 s{S_BAD}, v{V_FLAGV}", rd={V_FLAGV}, swr={S_BAD}, flags=("readlane",))
p.salu(f"s_or_b64 s[{S_BADM}:{S_BADM + 1}], s[{S_BADM}:{S_BADM + 1}], vcc", srd={"vcc"})
p.salu(f"s_or_b32 s{S_BAD}, s{S_BAD}, s{S_BADM}", srd={S_BAD})
p.salu(f"s_or_b32 s{S_BAD}, s{S_BAD}, s{S_BADM + 1}")
if not ({"--m3x8", "--nom3", "--nopv", "--pvswap"} & FLAGS):
    p.salu("s_cbranch_scc1 L_generic")
epilogue(OA[0:2], f"s{S_QOFF}", 0, P)
epilogue(OA[2:4], f"s{S_QOFF}", 64 * ROWB, KE[0])
if STAMP:
    stamp()
    p.salu("s_memrealtime s[62:63]")
    p.salu(f"s_load_dwordx2 s[56:57], s[0:1], {40 if '--dbgstamp' in FLAGS else 48}")
    p.raw("s_waitcnt lgkmcnt(0)", "wait")
    k = NSTAMP[0]
    NSTAMP[0] += 2
    p.salu(f"s_sub_u32 s{64 + 2 * k}, s62, s60")
    p.salu(f"s_add_u32 s{64 + 2 * k}, s{64 + 2 * k}, s64")
    p.salu(f"s_add_u32 s{66 + 2 * k}, s60, s64")
    p.salu("s_mov_b32 s58, 0x1000000")
    p.salu("s_mov_b32 s59, 0x00020000")
    p.valu(f"v_mov_b32 v{t2}, 0", wr={t2})
    for k in range(NSTAMP[0]):
        p.salu(f"s_sub_u32 s{S_TMP}, s{64 + 2 * k}, s64")
        p.valu(f"v_mov_b32 v{t1}, s{S_TMP}", wr={t1})
        p.valu(f"v_cmp_eq_u32 vcc, {k}, v{V_LANE}", rd={V_LANE}, swr={"vcc"})
        p.valu(f"v_cndmask_b32 v{t2}, v{t2}, v{t1}, vcc", wr={t2}, rd={t2, t1}, srd={"vcc"})
    if "--dbgstamp" in FLAGS:
        p.salu("s_mov_b32 s58, 64")
        p.salu(f"s_lshl_b32 s{S_TMP}, s2, 3")
        p.salu(f"s_add_u32 s{S_TMP}, s{S_TMP}, s{S_WAVE}")
        p.salu(f"s_mov_b32 s{S_TMP2}, 0x1000")
        p.salu(f"s_cmp_eq_u32 s{S_TMP}, {5 * 8}")
        p.salu(f"s_cselect_b32 s{S_TMP2}, 0, s{S_TMP2}")
        p.salu(f"s_cmp_eq_u32 s{S_TMP}, {200 * 8 + 3}")
        p.salu(f"s_cselect_b32 s{S_TMP2}, 32, s{S_TMP2}")
        p.valu(f"v_lshlrev_b32 v{t1}, 2, v{V_LANE}", wr={t1}, rd={V_LANE})
        p.valu(f"v_cmp_lt_u32 vcc, 7, v{V_LANE}", rd={V_LANE}, swr={"vcc"})
        p.valu(f"v_mov_b32 v{t3}, 0x1000", wr={t3})
        p.valu(f"v_cndmask_b32 v{t1}, v{t1}, v{t3}, vcc", wr={t1}, rd={t1, t3}, srd={"vcc"})
        p.valu(f"v_add_u32 v{t1}, s{S_TMP2}, v{t1}", wr={t1}, rd={t1})
        p.bstore(1, t2, t1, 56, "0", 0)
    else:
        p.valu(f"v_mov_b32 v{t1}, s2", wr={t1})
        p.valu(f"v_lshlrev_b32 v{t1}, 9, v{t1}", wr={t1}, rd={t1})
        p.valu(f"v_and_b32 v{t3}, 0xff, v{V_TID}", wr={t3}, rd={V_TID})
        p.valu(f"v_add_u32 v{t1}, v{t1}, v{t3}", wr={t1}, rd={t1, t3})
        p.valu(f"v_lshlrev_b32 v{t1}, 2, v{t1}", wr={t1}, rd={t1})
        p.bstore(1, t2, t1, 56, "0", 0)
p.label("L_end")
p.salu("s_endpgm")

p.label("L_producer")
p.lds_pend = []
p.vm_pend = vm_prod
p.salu(f"s_setprio {opt('pprio', 3)}")
consts()
p.salu(f"s_mov_b32 s{S_THR}, 0x{f32bits(2.0 ** -9):08x}")
p.salu(f"s_mov_b32 s{S_USED}, 0x{USED_MASK32:08x}")
p.salu(f"s_mov_b32 s{S_USED + 1}, 0x{USED_MASK32:08x}")
p.salu(f"s_mul_i32 s{S_PB}, s{S_W4}, {PAIR}")
p.valu(f"v_lshrrev_b32 v{t1}, 5, v{V_LANE}", wr={t1}, rd={V_LANE})
p.valu(f"v_lshl_add_u32 v{V_L16}, v{V_LANE}, 4, s{S_PB}", wr={V_L16}, rd={V_LANE})
p.valu(f"v_and_b32 v{t0}, 31, v{V_LANE}", wr={t0}, rd={V_LANE})
p.valu(f"v_lshl_add_u32 v{t2}, v{t0}, 4, s{S_PB}", wr={t2}, rd={t0})
p.valu(f"v_lshl_add_u32 v{V_WP0}, v{t1}, 10, v{t2}", wr={V_WP0}, rd={t1, t2})
p.valu(f"v_lshl_add_u32 v{V_WP1}, v{t1}, 3, v{t2}", wr={V_WP1}, rd={t1, t2})
ident()
p.valu(f"v_mov_b32 v{RAWV + 9}, 0x3f80", wr={RAWV + 9})
p.valu(f"v_mov_b32 v{RAWV1 + 9}, 0x3f80", wr={RAWV1 + 9})
p.valu(f"v_mov_b32 v{Y + 9}, 0x{MAGIC_A:08x}", wr={Y + 9})
p.valu(f"v_mov_b32 v{RAWK + 9}, 0", wr={RAWK + 9})
p.salu(f"s_mov_b32 s{S_M1}, 0xaaaaaaaa")
p.salu(f"s_mov_b32 s{S_M1 + 1}, 0xaaaaaaaa")
p.salu(f"s_mov_b32 s{S_M2}, 0xcccccccc")
p.salu(f"s_mov_b32 s{S_M2 + 1}, 0xcccccccc")
p.valu(f"v_mov_b32 v{t2}, 0x3f80", wr={t2})
p.valu(f"v_mov_b32 v{t3}, 0x3f800000", wr={t3})
p.valu(f"v_cndmask_b32 v{t2}, v{t2}, v{t3}, s[{S_M1}:{S_M1 + 1}]", wr={t2}, rd={t2, t3})
p.valu(f"v_mov_b32 v{t1}, 0", wr={t1})
p.valu(f"v_cndmask_b32 v{I4}, v{t2}, v{t1}, s[{S_M2}:{S_M2 + 1}]", wr={I4}, rd={t2, t1})
p.valu(f"v_cndmask_b32 v{I4 + 1}, v{t1}, v{t2}, s[{S_M2}:{S_M2 + 1}]", wr={I4 + 1}, rd={t2, t1})
p.ds_write("ds_write_b32", V_FLAGV, t1, 1, 0)
set_waddr("0")
PST = "--pstamp" in FLAGS


def pstamp(k):
    if PST:
        p.salu(f"s_memtime s[{64 + 2 * k}:{65 + 2 * k}]")
        p.raw("s_waitcnt lgkmcnt(0)", "wait")
        p.lds_pend = []


pstamp(1)
if PST:
    p.wait_vm(0)
pstamp(2)
kv_compute(RAWK1, RAWV1, False, fast=("--slowfirst" not in FLAGS))
pstamp(3)
for f in kv_writes():
    f()
t_check("L_end2")
p.lds_pend = []
pstamp(4)
p.raw("s_barrier", "salu")
pstamp(5)
if PST:
    p.salu("s_load_dwordx2 s[80:81], s[0:1], 48")
    p.raw("s_waitcnt lgkmcnt(0)", "wait")
    p.salu("s_mov_b32 s82, 0x1000000")
    p.salu("s_mov_b32 s83, 0x00020000")
    p.valu(f"v_mov_b32 v{t2}, 0", wr={t2})
    for k in range(6):
        p.salu(f"s_sub_u32 s{S_TMP}, s{64 + 2 * k}, s64")
        p.valu(f"v_mov_b32 v{t1}, s{S_TMP}", wr={t1})
        p.valu(f"v_cmp_eq_u32 vcc, {k}, v{V_LANE}", rd={V_LANE}, swr={"vcc"})
        p.valu(f"v_cndmask_b32 v{t2}, v{t2}, v{t1}, vcc", wr={t2}, rd={t2, t1}, srd={"vcc"})
    p.valu(f"v_mov_b32 v{t1}, s2", wr={t1})
    p.valu(f"v_lshlrev_b32 v{t1}, 9, v{t1}", wr={t1}, rd={t1})
    p.valu(f"v_add_u32 v{t1}, v{t1}, v{V_TID}", wr={t1}, rd={t1, V_TID})
    p.valu(f"v_add_u32 v{t1}, 0x100, v{t1}", wr={t1}, rd={t1})
    p.valu(f"v_lshlrev_b32 v{t1}, 2, v{t1}", wr={t1}, rd={t1})
    p.bstore(1, t2, t1, 80, "0", 0)
    p.wait_vm(0)
S_VOFF = S_QH
ld = kv_loads(f"s{S_SOFF}")
for f in ld:
    f()
p.salu(f"s_mov_b32 s{S_CNT}, 1")
p.salu(f"s_mov_b32 s{S_WB}, {BUF}")
p.salu(f"s_add_u32 s{S_VOFF}, s{S_SOFF}, {CHUNKB}")
T12(RAWV)
T3(RAWV)
for f in kv_loads(f"s{S_VOFF}")[:3]:
    f()
m = V_T0
p.valu(f"v_max_f32 v{m}, |v{TD}|, |v{TD + 1}|", wr={m}, rd={TD, TD + 1})
for r in range(2, 32, 2):
    p.valu(f"v_max3_f32 v{m}, |v{TD + r}|, |v{TD + r + 1}|, v{m}", wr={m}, rd={TD + r, TD + r + 1, m})
p.valu(f"v_cmp_gt_f32 vcc, s{S_THR}, v{m}", rd={m}, swr={"vcc"}, srd={S_THR})
p.salu(f"s_and_b64 vcc, vcc, s[{S_USED}:{S_USED + 1}]", srd={"vcc"})
p.salu(f"s_or_b64 s[{S_BADM}:{S_BADM + 1}], s[{S_BADM}:{S_BADM + 1}], vcc")
p.nop(4)
p.label("L_ploop")
p.vm_pend = [rng(RAWK, 4), rng(RAWK + 4, 4), rng(RAWK + 8, 1), rng(RAWV, 4), rng(RAWV + 4, 4), rng(RAWV + 8, 1)]
if "--pidle" in FLAGS:
    p.salu("s_branch L_pnoflag")
set_waddr(f"s{S_WB}")
W = kv_writes()
cv = []
for f in range(4):
    for j in range(4):
        r = TD + 8 * f + 2 * j
        d = PK + 4 * f + j
        cv.append(lambda r=r, d=d: p.valu(f"v_cvt_pk_f16_f32 v{d}, v{r}, v{r + 1}", wr={d}, rd={r, r + 1}))


def cvn(n):
    def f():
        for _ in range(n):
            if cv:
                cv.pop(0)()
    return f


def wv(f):
    return lambda: p.ds_write("ds_write_b128", V_W2, PK + 4 * f, 4, 3072 + 1024 * f)


def seq(*fs):
    def g():
        for f in fs:
            f()
    return g


def next_k():
    p.salu(f"s_add_u32 s{S_SOFF}, s{S_SOFF}, {CHUNKB}")
    p.salu(f"s_cmp_ge_u32 s{S_CNT}, 7")
    p.salu(f"s_cselect_b32 s{S_SOFF}, 0x40000000, s{S_SOFF}")
    for f in kv_loads(f"s{S_SOFF}")[3:]:
        f()


def next_v():
    p.salu(f"s_add_u32 s{S_VOFF}, s{S_VOFF}, {CHUNKB}")
    p.salu(f"s_cmp_ge_u32 s{S_CNT}, 6")
    p.salu(f"s_cselect_b32 s{S_VOFF}, 0x40000000, s{S_VOFF}")
    for f in kv_loads(f"s{S_VOFF}")[:3]:
        f()


hooks = {}
for g in range(5):
    hooks[3 * g + 1] = cvn(1)
    hooks[3 * g + 2] = cvn(2)
hooks[5] = seq(cvn(2), wv(0))
hooks[8] = seq(cvn(2), wv(1))
hooks[14] = seq(cvn(2), wv(2))
hooks[15] = seq(cvn(4), wv(3), next_k)
hooks[16] = lambda: T1(RAWV)
hooks[23] = lambda: T2(RAWV)
hooks[33] = lambda: T3(RAWV)
hooks[36] = W[0]
norm_row_mfma(RAWK, [Y + j for j in range(9)], UREG, GREG, hooks=hooks, nops=False)
assert not cv
for f in W[1:4]:
    f()
next_v()
p.salu(f"s_cmp_lg_u32 s{S_CNT}, 7")
p.salu("s_cbranch_scc1 L_pnoflag")
idx = len(p.ins)
p.salu(f"s_or_b32 s{S_BAD}, s{S_BADM}, s{S_BADM + 1}")
p.valu(f"v_mov_b32 v{t1}, s{S_BAD}", wr={t1})
p.ds_write("ds_or_b32", V_FLAGV, t1, 1, 0)
if "--warmout" in FLAGS:
    p.valu(f"v_min_u32 v{t2}, 4, v{V_LANE}", wr={t2}, rd={V_LANE})
    p.valu(f"v_lshlrev_b32 v{t2}, 10, v{t2}", wr={t2}, rd={t2})
    p.bload(1, t3, t2, S_O, f"s{S_QOFF}", 0)
soft_label("L_pnoflag")
zero_ws(idx)
p.wait_lds(0)
p.raw("s_barrier", "salu")
p.salu(f"s_add_u32 s{S_WB}, s{S_WB}, {BUF}")
p.salu(f"s_cmp_ge_u32 s{S_WB}, {NBUF * BUF}")
p.salu(f"s_cselect_b32 s{S_WB}, 0, s{S_WB}")
p.salu(f"s_add_u32 s{S_CNT}, s{S_CNT}, 1")
p.salu(f"s_cmp_lt_u32 s{S_CNT}, 8")
p.nop(8)
p.salu("s_cbranch_scc1 L_ploop")
p.label("L_end2")
p.salu("s_endpgm")

M3F[0] = False
XP[0] = False
p.label("L_generic")
p.flush()
p.valu(f"v_mul_u32_u24 v{V_GK}, {ROWB}, v{V_LANE}", wr={V_GK}, rd={V_LANE})
p.valu(f"v_and_b32 v{t0}, 31, v{V_LANE}", wr={t0}, rd={V_LANE})
p.valu(f"v_mul_u32_u24 v{V_GV}, {ROWB}, v{t0}", wr={V_GV}, rd={t0})
p.valu(f"v_lshrrev_b32 v{t1}, 5, v{V_LANE}", wr={t1}, rd={V_LANE})
p.valu(f"v_lshl_add_u32 v{V_GV}, v{t1}, 4, v{V_GV}", wr={V_GV}, rd={t1, V_GV})
p.valu(f"v_mov_b32 v{RAWV + 9}, 0x3f80", wr={RAWV + 9})
ident()
p.salu(f"s_mov_b32 s{S_QH}, 0")
p.flush()
p.label("L_g_half")
load_rows(RAWK, V_GQ, S_Q, f"s{S_QOFF}")
q_prep(RAWK, 0, None, 0, False)
for o in GO:
    for r in range(16):
        p.valu(f"v_mov_b32 v{o + r}, 0", wr={o + r})
for g in GM:
    p.valu(f"v_mov_b32 v{g}, 0xff7fffff", wr={g})
p.salu(f"s_mov_b32 s{S_SOFF}, s{S_KOFF}")
p.salu(f"s_mov_b32 s{S_CNT}, 0")
p.flush()
p.label("L_g_pair")
load_rows(RAWK, V_GK, S_K, f"s{S_SOFF}")
load_v(RAWV, f"s{S_SOFF}")
norm_row(RAWK, None, False, [KM[0] + j for j in range(4)] + [KM[1] + j for j in range(4)] + [KE[0]])
p.valu(f"v_mov_b32 v{KE[0] + 2}, v{KE[0]}", wr={KE[0] + 2}, rd={KE[0]})
p.valu(f"v_mov_b32 v{KE[0] + 1}, 0", wr={KE[0] + 1})
p.valu(f"v_mov_b32 v{KE[0] + 3}, 0", wr={KE[0] + 3})
for j in range(4):
    a, b = KM[0] + j, KM[1] + j
    p.valu(f"v_permlane32_swap_b32 v{a}, v{b}", wr={a, b}, rd={a, b}, flags=("permlane",))
p.valu(f"v_permlane32_swap_b32 v{KE[0]}, v{KE[0] + 2}", wr={KE[0], KE[0] + 2}, rd={KE[0], KE[0] + 2},
       flags=("permlane",))
T12(RAWV)
T3(RAWV)
FR = [VA[0], VB[0], VA[1], VB[1]]
for f in range(4):
    for j in range(4):
        r = TD + 8 * f + 2 * j
        p.valu(f"v_cvt_pk_bf16_f32 v{FR[f] + j}, v{r}, v{r + 1}", wr={FR[f] + j}, rd={r, r + 1})
BF = "v_mfma_f32_32x32x16_bf16"
for tau in range(2):
    M1(2 * tau)
    M2(2 * tau)
    M3(2 * tau)
    S = SB[0]
    for ti, o in enumerate(GO):
        s = S + 16 * ti
        m = GM[ti]
        for r in range(16):
            p.valu(f"v_mul_f32 v{s + r}, v{s + r}, v{V_C}", wr={s + r}, rd={s + r, V_C})
        p.valu(f"v_max_f32 v{t0}, v{s}, v{s + 1}", wr={t0}, rd={s, s + 1})
        for r in range(2, 16, 2):
            p.valu(f"v_max3_f32 v{t0}, v{s + r}, v{s + r + 1}, v{t0}", wr={t0}, rd={s + r, s + r + 1, t0})
        p.valu(f"v_mov_b32 v{t1}, v{t0}", wr={t1}, rd={t0})
        p.valu(f"v_permlane32_swap_b32 v{t0}, v{t1}", wr={t0, t1}, rd={t0, t1}, flags=("permlane",))
        p.nop(2)
        p.valu(f"v_max3_f32 v{t0}, v{t0}, v{t1}, v{m}", wr={t0}, rd={t0, t1, m})
        p.valu(f"v_sub_f32 v{t1}, v{m}, v{t0}", wr={t1}, rd={m, t0})
        p.trans(f"v_exp_f32 v{t1}, v{t1}", wr={t1}, rd={t1})
        p.valu(f"v_mov_b32 v{m}, v{t0}", wr={m}, rd={t0})
        for r in range(16):
            p.valu(f"v_mul_f32 v{o + r}, v{o + r}, v{t1}", wr={o + r}, rd={o + r, t1})
        for r in range(16):
            p.valu(f"v_sub_f32 v{s + r}, v{s + r}, v{t0}", wr={s + r}, rd={s + r, t0})
        for r in range(16):
            p.trans(f"v_exp_f32 v{s + r}, v{s + r}", wr={s + r}, rd={s + r})
        for r in range(8):
            p.valu(f"v_cvt_pk_bf16_f32 v{P + 8 * ti + r}, v{s + 2 * r}, v{s + 2 * r + 1}", wr={P + 8 * ti + r},
                   rd={s + 2 * r, s + 2 * r + 1})
        p.mfma(BF, o, 16, VA[tau], 4, P + 8 * ti, 4, o, 8)
        p.mfma(BF, o, 16, VB[tau], 4, P + 8 * ti + 4, 4, o, 8)
p.flush()
p.salu(f"s_add_u32 s{S_SOFF}, s{S_SOFF}, {64 * ROWB}")
p.salu(f"s_add_u32 s{S_CNT}, s{S_CNT}, 1")
p.salu(f"s_cmp_lt_u32 s{S_CNT}, 32")
p.salu("s_cbranch_scc1 L_g_pair")
epilogue(GO, f"s{S_QOFF}", 0, P)
p.flush()
p.salu(f"s_add_u32 s{S_QOFF}, s{S_QOFF}, {64 * ROWB}")
p.salu(f"s_add_u32 s{S_QH}, s{S_QH}, 1")
p.salu(f"s_cmp_lt_u32 s{S_QH}, 2")
p.salu("s_cbranch_scc1 L_g_half")
p.salu("s_endpgm")

hdr = open(f"cdna_kernels/{NAME}.s.ref").read().split("\n")
top = []
for line in hdr:
    if line.startswith("; @launch"):
        top.append(f"; @launch grid=(256,1,1) block=(512,1,1) lds={LDS_BYTES}")
        break
    top.append(line)
body = []
for i in p.ins:
    if "ghost" in i.flags:
        continue
    if i.cls in ("label", "label2"):
        body.append(i.text)
    else:
        body.append("    " + i.text)
DOC = """
;
;   sampled magnitude is too small for f16."""
src = "\n".join(top) + DOC + f"""
.amdgcn_target "amdgcn-amd-amdhsa--gfx950"
.text
.globl {NAME}_kernel
.p2align 12
.p2align 8
.type {NAME}_kernel,@function
{NAME}_kernel:
""" + "\n".join(body) + f"""
.section .rodata,"a"
.p2align 6
.amdhsa_kernel {NAME}_kernel
  .amdhsa_next_free_vgpr {NV + NACC}
  .amdhsa_next_free_sgpr {100 if STAMP else 64}
  .amdhsa_accum_offset {NV}
  .amdhsa_group_segment_fixed_size 0
  .amdhsa_kernarg_size 56
  .amdhsa_user_sgpr_count 2
  .amdhsa_user_sgpr_kernarg_segment_ptr 1
  .amdhsa_system_sgpr_workgroup_id_x 1
.end_amdhsa_kernel
"""
open(OUT, "w").write(src)
print("wrote", OUT, "instructions:", len(body), "auto nops:", p.nops_inserted, "lds", LDS_BYTES)
```

```python
import copy
import struct
import sys
from emit import Prog, Inst, vr, rng

NAME = "standalone__qk_norm__prompt"
OUT = sys.argv[1] if len(sys.argv) > 1 and not sys.argv[1].startswith("--") else f"cdna_kernels/{NAME}.s"
FLAGS = set(a for a in sys.argv[1:] if a.startswith("--"))
FORCE_GENERIC = "--generic" in FLAGS
STAMP = "--stamp" in FLAGS


def opt(name, default):
    for a in FLAGS:
        if a.startswith(f"--{name}="):
            return int(a.split("=")[1])
    return default


BAR_AT = opt("barat", 9)

TENSOR_BYTES = 2 * 32 * 2048 * 18 * 2
ROWB = 36
PAIR = 7168
BUF = 4 * PAIR
NBUF = 3
FLAG = NBUF * BUF
LDS_BYTES = FLAG + 64
CHUNKB = 256 * ROWB


def f32bits(x):
    return struct.unpack("<I", struct.pack("<f", x))[0]


def f16bits(x):
    return struct.unpack("<H", struct.pack("<e", x))[0]


LOG2E = 1.4426950408889634
MAGIC_A = f16bits(192.0) | (f16bits(220.0) << 16)
MAGIC_B = f16bits(192.0) | (f16bits(131.0) << 16)
T_MAX_BITS = 0x402F0000


def drow(d):
    if d < 10:
        r, h = d, 0
    else:
        r, h = d - 10, 1
    return 8 * (r // 4) + 4 * h + (r % 4)


USED_MASK32 = sum(1 << drow(d) for d in range(18))

S_Q, S_K, S_V, S_O = 16, 20, 24, 28
S_HEAD, S_QB, S_WAVE, S_T, S_KOFF, S_QOFF = 32, 33, 34, 35, 36, 37
S_TMP, S_TMP2 = 38, 39
S_BADM = 40
S_BAD = 42
S_QH = 43
S_HIMASK, S_EPS, S_CLS, S_THR, S_SOFF, S_CNT = 44, 45, 46, 47, 48, 49
S_WB, S_PB = 50, 51
S_W4 = 52
S_USED = 54
S_M1, S_M2 = 56, 58

V_TID, V_LANE = 0, 1
V_GK, V_GV, V_GQ, V_L16 = 2, 3, 4, 5
V_CUR, V_NXT = 6, 7
V_WP0, V_WP1 = 8, 9
V_W0, V_W1, V_W2 = 10, 11, 12
V_C, V_FLAGV = 13, 14
V_EA0, V_EA1 = 15, 28
V_T0 = 16
GM = [29, 30]
V_PF = 31
PF_LAST = 0x2180
QE = [32, 34]
QM0 = [36, 44]
QM1 = [40, 48]
KE = [52, 56]
KM = [60, 64]
VA = [68, 72]
VB = [76, 80]
P = 84
SB = [100, 132]
OA = [164, 180, 196, 212]
BE = 228
BI = 232
NV = 240
NACC = 0
RQ = [100, 148]
RAWK = 164
RAWV = 176
TD = 188
Y = 100
RAWK1, RAWV1 = 112, 124
GO = [132, 148]
UREG = 136
GREG = 156
PK = 32
I4 = 160

p = Prog()
t0, t1, t2, t3 = V_T0, V_T0 + 1, V_T0 + 2, V_T0 + 3
NSTAMP = [0]


def stamp():
    if STAMP:
        k = NSTAMP[0]
        NSTAMP[0] += 1
        p.salu(f"s_memtime s[{64 + 2 * k}:{65 + 2 * k}]")
        p.raw("s_waitcnt lgkmcnt(0)", "wait")
        p.lds_pend = []


def soft_label(name):
    p.ins.append(Inst(f"{name}:", "label2", ws=0))


def zero_ws(idx):
    for i in p.ins[idx:]:
        i.ws = 0


def load_rows(dst, voff, srd, soff, off=0):
    p.bload(4, dst, voff, srd, soff, off)
    p.bload(4, dst + 4, voff, srd, soff, off + 16)
    p.bload(1, dst + 8, voff, srd, soff, off + 32)


def load_v(dst, soff):
    p.bload(4, dst, V_GV, S_V, soff, 0)
    p.bload(4, dst + 4, V_GV, S_V, soff, 32 * ROWB)
    p.bload(1, dst + 8, V_GK, S_V, soff, 32)


def norm_row(x, scale_reg, check, dst, hooks=None):
    ops = []
    a, b = V_T0, V_T0 + 1
    for j in range(9):
        acc = a if j % 2 == 0 else b
        c = "0" if j < 2 else f"v{acc}"
        ops.append(lambda j=j, acc=acc, c=c: p.valu(f"v_dot2_f32_bf16 v{acc}, v{x + j}, v{x + j}, {c}", wr={acc},
                                                    rd={x + j}, flags=("dot", "dotc")))
    R = V_T0 + 2
    T = [V_T0 + 4, V_T0 + 6, V_T0 + 8, V_T0 + 10]

    def unpack(j):
        t = T[j % 4]
        ops.append(lambda: p.valu(f"v_lshlrev_b32 v{t}, 16, v{x + j}", wr={t}, rd={x + j}))
        ops.append(lambda: p.valu(f"v_and_b32 v{t + 1}, s{S_HIMASK}, v{x + j}", wr={t + 1}, rd={x + j},
                                  srd={S_HIMASK}))
    unpack(0)
    unpack(1)
    ops.append(lambda: p.valu(f"v_add_f32 v{a}, v{a}, v{b}", wr={a}, rd={a, b}))
    ops.append(lambda: p.trans(f"v_sqrt_f32 v{R}, v{a}", wr={R}, rd={a}))
    if check:
        ops.append(lambda: p.valu(f"v_cmp_class_f32 vcc, v{a}, s{S_CLS}", rd={a}, swr={"vcc"}, srd={S_CLS}))
    else:
        unpack(2)
    ops.append(lambda: p.valu(f"v_add_f32 v{R}, s{S_EPS}, v{R}", wr={R}, rd={R}, srd={S_EPS}))
    ops.append(lambda: p.trans(f"v_rcp_f32 v{R}, v{R}", wr={R}, rd={R}))
    if check:
        unpack(2)
        ops.append(lambda: p.salu(f"s_or_b64 s[{S_BADM}:{S_BADM + 1}], s[{S_BADM}:{S_BADM + 1}], vcc", srd={"vcc"}))
    if scale_reg is not None:
        ops.append(lambda: p.valu(f"v_mul_f32 v{R}, v{R}, v{scale_reg}", wr={R}, rd={R, scale_reg}))
    for j in range(9):
        t = T[j % 4]
        ops.append(lambda t=t: p.valu(f"v_pk_mul_f32 v[{t}:{t + 1}], v[{t}:{t + 1}], v[{R}:{R + 1}] op_sel_hi:[1,0]",
                                      wr={t, t + 1}, rd={t, t + 1, R}))
        if j + 3 < 9:
            unpack(j + 3)
        ops.append(lambda t=t, j=j: p.valu(f"v_cvt_pk_f16_f32 v{dst[j]}, v{t}, v{t + 1}", wr={dst[j]},
                                           rd={t, t + 1}))
    for n, f in enumerate(ops):
        if hooks and n in hooks:
            hooks[n]()
        f()


def norm_row_plain(x, dst, U, hooks=None):
    ops = []
    a, b = V_T0, V_T0 + 1
    R = V_T0 + 2
    for j in range(9):
        lo, hi = U + 2 * j, U + 2 * j + 1
        ops.append(lambda j=j, lo=lo: p.valu(f"v_lshlrev_b32 v{lo}, 16, v{x + j}", wr={lo}, rd={x + j}))
        ops.append(lambda j=j, hi=hi: p.valu(f"v_and_b32 v{hi}, s{S_HIMASK}, v{x + j}", wr={hi}, rd={x + j},
                                             srd={S_HIMASK}))
        for acc, u in ((a, lo), (b, hi)):
            if j == 0:
                ops.append(lambda acc=acc, u=u: p.valu(f"v_mul_f32 v{acc}, v{u}, v{u}", wr={acc}, rd={u}))
            else:
                ops.append(lambda acc=acc, u=u: p.valu(f"v_fmac_f32 v{acc}, v{u}, v{u}", wr={acc}, rd={u, acc}))
    ops.append(lambda: p.valu(f"v_add_f32 v{a}, v{a}, v{b}", wr={a}, rd={a, b}))
    ops.append(lambda: p.trans(f"v_sqrt_f32 v{R}, v{a}", wr={R}, rd={a}))
    ops.append(lambda: p.valu(f"v_cmp_class_f32 vcc, v{a}, s{S_CLS}", rd={a}, swr={"vcc"}, srd={S_CLS}))
    ops.append(lambda: p.valu(f"v_add_f32 v{R}, s{S_EPS}, v{R}", wr={R}, rd={R}, srd={S_EPS}))
    ops.append(lambda: p.trans(f"v_rcp_f32 v{R}, v{R}", wr={R}, rd={R}))
    ops.append(lambda: p.salu(f"s_or_b64 s[{S_BADM}:{S_BADM + 1}], s[{S_BADM}:{S_BADM + 1}], vcc", srd={"vcc"}))
    for j in range(9):
        lo, hi = U + 2 * j, U + 2 * j + 1
        ops.append(lambda lo=lo: p.valu(f"v_mul_f32 v{lo}, v{lo}, v{R}", wr={lo}, rd={lo, R}))
        ops.append(lambda hi=hi: p.valu(f"v_mul_f32 v{hi}, v{hi}, v{R}", wr={hi}, rd={hi, R}))
        ops.append(lambda j=j, lo=lo, hi=hi: p.valu(f"v_cvt_pk_f16_f32 v{dst[j]}, v{lo}, v{hi}", wr={dst[j]},
                                                    rd={lo, hi}))
    for n, f in enumerate(ops):
        if hooks and n in hooks:
            hooks[n]()
        f()


def norm_row_mfma(x, dst, U, GR, hooks=None, nops=True):
    ops = []
    a = V_T0
    R = V_T0 + 2
    OP = "v_mfma_f32_4x4x4_16b_bf16"
    for g in range(5):
        ops.append(lambda g=g: p.mfma(OP, GR, 4, x + 2 * g, 2, x + 2 * g, 2, None if g == 0 else GR, 2))
        ops.append(lambda g=g: p.mfma(OP, U + 4 * g, 4, I4, 2, x + 2 * g, 2, None, 2))
        ops.append(lambda: p.nop(1) if nops else None)
    ops.append(lambda: p.valu(f"v_cndmask_b32 v{a}, v{GR}, v{GR + 1}, s[{S_M1}:{S_M1 + 1}]", wr={a}, rd={GR, GR + 1}))
    ops.append(lambda: p.valu(f"v_cndmask_b32 v{a + 1}, v{GR + 2}, v{GR + 3}, s[{S_M1}:{S_M1 + 1}]", wr={a + 1},
                              rd={GR + 2, GR + 3}))
    ops.append(lambda: p.valu(f"v_cndmask_b32 v{a}, v{a}, v{a + 1}, s[{S_M2}:{S_M2 + 1}]", wr={a}, rd={a, a + 1}))
    ops.append(lambda: p.trans(f"v_sqrt_f32 v{R}, v{a}", wr={R}, rd={a}))
    ops.append(lambda: p.valu(f"v_cmp_class_f32 vcc, v{a}, s{S_CLS}", rd={a}, swr={"vcc"}, srd={S_CLS}))
    ops.append(lambda: p.valu(f"v_add_f32 v{R}, s{S_EPS}, v{R}", wr={R}, rd={R}, srd={S_EPS}))
    ops.append(lambda: p.trans(f"v_rcp_f32 v{R}, v{R}", wr={R}, rd={R}))
    ops.append(lambda: p.salu(f"s_or_b64 s[{S_BADM}:{S_BADM + 1}], s[{S_BADM}:{S_BADM + 1}], vcc", srd={"vcc"}))
    for j in range(9):
        lo, hi = U + 2 * j, U + 2 * j + 1
        ops.append(lambda lo=lo: p.valu(f"v_mul_f32 v{lo}, v{lo}, v{R}", wr={lo}, rd={lo, R}))
        ops.append(lambda hi=hi: p.valu(f"v_mul_f32 v{hi}, v{hi}, v{R}", wr={hi}, rd={hi, R}))
        ops.append(lambda j=j, lo=lo, hi=hi: p.valu(f"v_cvt_pk_f16_f32 v{dst[j]}, v{lo}, v{hi}", wr={dst[j]},
                                                    rd={lo, hi}))
    for n, f in enumerate(ops):
        if hooks and n in hooks:
            hooks[n]()
        f()


def T1(raw):
    p.mfma("v_mfma_f32_32x32x16_bf16", TD, 16, raw, 4, BI, 4, None, 8)


def T2(raw):
    p.mfma("v_mfma_f32_32x32x16_bf16", TD + 16, 16, raw + 4, 4, BI, 4, None, 8)


def T12(raw):
    T1(raw)
    T2(raw)


def T3(raw):
    p.mfma("v_mfma_f32_32x32x4_2b_bf16", TD, 32, raw + 8, 2, BE, 2, TD, 16)


def kv_compute(rawk, rawv, first, lead=0, fast=False):
    if fast:
        hooks = {21: lambda: T1(rawv), 22: lambda: T2(rawv), 34: lambda: T3(rawv)}
        T1(rawv)
        T2(rawv)
        norm_row(rawk, None, True, [Y + j for j in range(9)], hooks={10: lambda: T3(rawv)})
    else:
        if "--plain" in FLAGS:
            hooks = {lead: lambda: T1(rawv), lead + 8: lambda: T2(rawv), lead + 18: lambda: T3(rawv)}
            norm_row_plain(rawk, [Y + j for j in range(9)], UREG, hooks=hooks)
        else:
            hooks = {0: lambda: T12(rawv), 15: lambda: T3(rawv)}
            norm_row_mfma(rawk, [Y + j for j in range(9)], UREG, GREG, hooks=hooks)
    if first:
        p.salu(f"s_cmp_lg_u32 s{S_CNT}, 1")
        p.salu("s_cbranch_scc1 L_nosample")
        idx = len(p.ins)
        m = V_T0
        p.valu(f"v_max_f32 v{m}, |v{TD}|, |v{TD + 1}|", wr={m}, rd={TD, TD + 1})
        for r in range(2, 32, 2):
            p.valu(f"v_max3_f32 v{m}, |v{TD + r}|, |v{TD + r + 1}|, v{m}", wr={m}, rd={TD + r, TD + r + 1, m})
        p.valu(f"v_cmp_gt_f32 vcc, s{S_THR}, v{m}", rd={m}, swr={"vcc"}, srd={S_THR})
        p.salu(f"s_and_b64 vcc, vcc, s[{S_USED}:{S_USED + 1}]", srd={"vcc"})
        p.salu(f"s_or_b64 s[{S_BADM}:{S_BADM + 1}], s[{S_BADM}:{S_BADM + 1}], vcc")
        soft_label("L_nosample")
        zero_ws(idx)
    for f in range(4):
        for j in range(4):
            r = TD + 8 * f + 2 * j
            d = TD + 8 * f + j
            p.valu(f"v_cvt_pk_f16_f32 v{d}, v{r}, v{r + 1}", wr={d}, rd={r, r + 1})


def kv_writes():
    w = [lambda: p.ds_write("ds_write_b128", V_W0, Y, 4, 0),
         lambda: p.ds_write("ds_write_b128", V_W0, Y + 4, 4, 512),
         lambda: p.ds_write("ds_write_b64", V_W1, Y + 8, 2, 2048),
         lambda: p.ds_write("ds_write_b64", V_W1, Y + 8, 2, 2048 + 512)]
    for f in range(4):
        w.append(lambda f=f: p.ds_write("ds_write_b128", V_W2, TD + 8 * f, 4, 3072 + 1024 * f))
    return w


def kv_loads(soff):
    return [lambda: p.bload(4, RAWV, V_GV, S_V, soff, 0),
            lambda: p.bload(4, RAWV + 4, V_GV, S_V, soff, 32 * ROWB),
            lambda: p.bload(1, RAWV + 8, V_GK, S_V, soff, 32),
            lambda: p.bload(4, RAWK, V_GK, S_K, soff, 0),
            lambda: p.bload(4, RAWK + 4, V_GK, S_K, soff, 16),
            lambda: p.bload(1, RAWK + 8, V_GK, S_K, soff, 32)]


def set_waddr(sbase):
    p.valu(f"v_add_u32 v{V_W0}, {sbase}, v{V_WP0}", wr={V_W0}, rd={V_WP0})
    p.valu(f"v_add_u32 v{V_W1}, {sbase}, v{V_WP1}", wr={V_W1}, rd={V_WP1})
    p.valu(f"v_add_u32 v{V_W2}, {sbase}, v{V_L16}", wr={V_W2}, rd={V_L16})


def q_prep(raw, hq, scale_reg, magic, check, hooks=None):
    dst = [QM0[hq] + j for j in range(4)] + [QM1[hq] + j for j in range(4)] + [QE[hq]]
    norm_row(raw, scale_reg, check, dst, hooks)
    p.valu(f"v_mov_b32 v{QE[hq] + 1}, 0x{magic:08x}", wr={QE[hq] + 1})
    for j in range(4):
        a, b = QM0[hq] + j, QM1[hq] + j
        p.valu(f"v_permlane32_swap_b32 v{a}, v{b}", wr={a, b}, rd={a, b}, flags=("permlane",))


if STAMP:
    p.salu("s_memrealtime s[60:61]")
stamp()
p.salu("s_cmp_ge_u32 s2, 256")
p.salu("s_cbranch_scc1 L_end")
p.salu("s_load_dwordx8 s[4:11], s[0:1], 0")
p.salu("s_load_dwordx2 s[12:13], s[0:1], 32")
if "--pf" in FLAGS:
    p.salu("s_getpc_b64 s[14:15]")
    p.valu(f"v_lshlrev_b32 v{t3}, 7, v{V_TID}", wr={t3}, rd={V_TID})
    p.valu(f"v_min_u32 v{t3}, 0x{PF_LAST:x}, v{t3}", wr={t3}, rd={t3})
    p.add(Inst(f"global_load_dword v{V_PF}, v{t3}, s[14:15]", "vmem", wr={V_PF}, rd={t3}))
    p.vm_pend.append({V_PF})
p.valu(f"v_lshrrev_b32 v{t0}, 6, v{V_TID}", wr={t0}, rd={V_TID})
p.salu(f"s_and_b32 s{S_TMP}, s2, 7")
p.salu(f"s_lshr_b32 s{S_TMP2}, s2, 3")
p.valu(f"v_readfirstlane_b32 s{S_WAVE}, v{t0}", rd={t0}, swr={S_WAVE}, flags=("readlane",))
p.salu(f"s_and_b32 s{S_QB}, s{S_TMP2}, 3")
p.salu(f"s_lshr_b32 s{S_TMP2}, s{S_TMP2}, 2")
p.salu(f"s_lshl_b32 s{S_HEAD}, s{S_TMP}, 3")
p.salu(f"s_add_u32 s{S_HEAD}, s{S_HEAD}, s{S_TMP2}")
p.salu(f"s_mul_i32 s{S_KOFF}, s{S_HEAD}, {2048 * ROWB}")
p.salu(f"s_mul_i32 s{S_TMP}, s{S_QB}, {512 * ROWB}")
p.salu(f"s_add_u32 s{S_QOFF}, s{S_KOFF}, s{S_TMP}")
p.salu(f"s_and_b32 s{S_W4}, s{S_WAVE}, 3", srd={S_WAVE})
p.salu(f"s_mul_i32 s{S_TMP}, s{S_W4}, {128 * ROWB}")
p.salu(f"s_add_u32 s{S_QOFF}, s{S_QOFF}, s{S_TMP}")
p.valu(f"v_and_b32 v{V_LANE}, 63, v{V_TID}", wr={V_LANE}, rd={V_TID})
p.valu(f"v_and_b32 v{t0}, 0xff, v{V_TID}", wr={t0}, rd={V_TID})
p.valu(f"v_mul_u32_u24 v{V_GK}, {ROWB}, v{t0}", wr={V_GK}, rd={t0})
p.valu(f"v_mul_u32_u24 v{V_GQ}, {ROWB}, v{V_LANE}", wr={V_GQ}, rd={V_LANE})
p.valu(f"v_and_b32 v{t0}, 0xdf, v{V_TID}", wr={t0}, rd={V_TID})
p.valu(f"v_mul_u32_u24 v{V_GV}, {ROWB}, v{t0}", wr={V_GV}, rd={t0})
p.valu(f"v_lshrrev_b32 v{t1}, 5, v{V_LANE}", wr={t1}, rd={V_LANE})
p.valu(f"v_lshl_add_u32 v{V_GV}, v{t1}, 4, v{V_GV}", wr={V_GV}, rd={t1, V_GV})
p.salu(f"s_and_b32 s{S_TMP}, s{S_HEAD}, 30")
p.salu(f"s_lshl_b32 s{S_TMP}, s{S_TMP}, 1")
p.salu(f"s_add_u32 s{S_SOFF}, s{S_KOFF}, {CHUNKB}")
p.raw("s_waitcnt lgkmcnt(0)", "wait")
p.salu(f"s_load_dword s{S_T}, s[10:11], s{S_TMP}")
for srd, ptr in ((S_K, 6), (S_V, 8), (S_Q, 4), (S_O, 12)):
    p.salu(f"s_mov_b32 s{srd}, s{ptr}")
    p.salu(f"s_mov_b32 s{srd + 1}, s{ptr + 1}")
    p.salu(f"s_mov_b32 s{srd + 2}, {TENSOR_BYTES}")
    p.salu(f"s_mov_b32 s{srd + 3}, 0x00020000")


def consts():
    p.salu(f"s_mov_b32 s{S_HIMASK}, 0xffff0000")
    p.salu(f"s_mov_b32 s{S_EPS}, 0x{f32bits(1e-6):08x}")
    p.salu(f"s_mov_b32 s{S_CLS}, 0x207")
    p.salu(f"s_mov_b64 s[{S_BADM}:{S_BADM + 1}], 0")
    p.valu(f"v_mov_b32 v{V_FLAGV}, 0x{FLAG:x}", wr={V_FLAGV})


def ident():
    for i in range(4):
        p.valu(f"v_mov_b32 v{BI + i}, 0", wr={BI + i})
    p.valu(f"v_mov_b32 v{BE}, 0", wr={BE})
    p.valu(f"v_mov_b32 v{BE + 1}, 0", wr={BE + 1})
    p.salu(f"s_mov_b32 s{S_TMP}, 0x3f80")
    p.salu(f"s_mov_b32 s{S_TMP2}, 0x3f800000")
    for k in range(16):
        lane = (k // 8) * 32 + drow(k)
        i = (k % 8) // 2
        p.valu(f"v_writelane_b32 v{BI + i}, s{S_TMP if k % 2 == 0 else S_TMP2}, {lane}", wr={BI + i}, rd={BI + i})
    for col, reg, val in ((drow(16), BE, S_TMP), (drow(17), BE, S_TMP2), (18, BE + 1, S_TMP), (22, BE + 1, S_TMP)):
        for h in range(2):
            p.valu(f"v_writelane_b32 v{reg}, s{val}, {col + 32 * h}", wr={reg}, rd={reg})


def t_check(target):
    p.raw("s_waitcnt lgkmcnt(0)", "wait")
    p.salu(f"s_lshl_b32 s{S_TMP}, s{S_T}, 16")
    p.salu(f"s_and_b32 s{S_TMP2}, s{S_T}, 0xffff0000")
    p.salu(f"s_bitcmp1_b32 s{S_HEAD}, 0")
    p.salu(f"s_cselect_b32 s{S_T}, s{S_TMP2}, s{S_TMP}")
    p.valu(f"v_mov_b32 v{V_C}, 0x{f32bits(LOG2E):08x}", wr={V_C})
    p.valu(f"v_mul_f32 v{V_C}, s{S_T}, v{V_C}", wr={V_C}, rd={V_C})
    p.salu(f"s_and_b32 s{S_TMP}, s{S_T}, 0x7fffffff")
    if FORCE_GENERIC:
        p.salu(f"s_branch {target}")
    else:
        p.salu(f"s_cmp_gt_u32 s{S_TMP}, 0x{T_MAX_BITS:x}")
        p.salu(f"s_cbranch_scc1 {target}")


p.salu(f"s_cmp_ge_u32 s{S_WAVE}, 4")
p.salu("s_cbranch_scc0 L_compute" if "--prodlast" in FLAGS else "s_cbranch_scc1 L_compute")
idx = len(p.ins)
vm_save = list(p.vm_pend)
load_v(RAWV1, f"s{S_KOFF}")
load_rows(RAWK1, V_GK, S_K, f"s{S_KOFF}")
vm_prod = list(p.vm_pend)
p.salu("s_branch L_producer")
soft_label("L_compute")
zero_ws(idx)
p.vm_pend = vm_save

load_rows(RQ[0], V_GQ, S_Q, f"s{S_QOFF}")
if "--qtogether" in FLAGS:
    load_rows(RQ[1], V_GQ, S_Q, f"s{S_QOFF}", 64 * ROWB)
consts()
p.valu(f"v_lshlrev_b32 v{V_CUR}, 4, v{V_LANE}", wr={V_CUR}, rd={V_LANE})
p.valu(f"v_add_u32 v{V_NXT}, 0x{BUF:x}, v{V_CUR}", wr={V_NXT}, rd={V_CUR})
p.valu(f"v_and_b32 v{t0}, 31, v{V_LANE}", wr={t0}, rd={V_LANE})
p.valu(f"v_mul_u32_u24 v{t2}, {ROWB}, v{t0}", wr={t2}, rd={t0})
p.valu(f"v_mul_u32_u24 v{V_EA0}, 20, v{t1}", wr={V_EA0}, rd={t1})
p.valu(f"v_add_u32 v{V_EA0}, v{V_EA0}, v{t2}", wr={V_EA0}, rd={V_EA0, t2})
p.valu(f"v_lshl_add_u32 v{V_EA1}, v{t1}, 30, v{t2}", wr={V_EA1}, rd={t1, t2})
for r in list(range(OA[0], OA[0] + 64)) + list(range(P + 8, P + 16)) + list(range(VB[1], VB[1] + 4)) + list(range(VA[1], VA[1] + 4)):
    p.valu(f"v_mov_b32 v{r}, 0", wr={r})
if "--qtogether" not in FLAGS:
    load_rows(RQ[1], V_GQ, S_Q, f"s{S_QOFF}", 64 * ROWB)
t_check("L_generic")
stamp()
EARLY = "--lateq" not in FLAGS
q_prep(RQ[0], 0, V_C, MAGIC_B, True)
if not EARLY:
    q_prep(RQ[1], 1, V_C, MAGIC_B, True)
stamp()
p.raw("s_barrier", "salu")
stamp()

F16 = "v_mfma_f32_32x32x16_f16"


def taddr(j):
    return (V_CUR if j < 8 else V_NXT), ((j % 8) // 2) * PAIR, j % 2


def rd_km(j):
    a, o, tp = taddr(j)
    p.ds_read("ds_read_b128", KM[j % 2], 4, a, o + 1024 * tp)


def rd_ke(j):
    a, o, tp = taddr(j)
    assert tp == 0
    p.ds_read("ds_read_b128", KE[(j // 2) % 2], 4, a, o + 2048)


def rd_va(j):
    a, o, tp = taddr(j)
    p.ds_read("ds_read_b128", VA[j % 2], 4, a, o + 3072 + 2048 * tp)


def rd_vb(j):
    a, o, tp = taddr(j)
    p.ds_read("ds_read_b128", VB[j % 2], 4, a, o + 4096 + 2048 * tp)


XP = [True]
M3F = ["--m3first" in FLAGS]
SCHED2 = "--sched1" not in FLAGS and not M3F[0]


def M1(m):
    p.mfma(F16, SB[m % 2], 16, KM[(m // 2) % 2], 4, QM0[m % 2], 4, SB[m % 2] if M3F[0] else None, 8)


def M2(m):
    p.mfma(F16, SB[m % 2] + 16, 16, KM[(m // 2) % 2], 4, QM1[m % 2], 4, SB[m % 2] + 16 if M3F[0] else None, 8)


def M3(m):
    j = m // 2
    if "--m3x8" in FLAGS and XP[0]:
        for h in range(2):
            p.mfma("v_mfma_f32_32x32x8_f16", SB[m % 2] + 16 * h, 16, KE[(j // 2) % 2] + 2 * (j % 2), 2, QE[m % 2], 2,
                   SB[m % 2] + 16 * h, 8)
        return
    if "--nom3" in FLAGS and XP[0]:
        return
    p.mfma("v_mfma_f32_32x32x4_2b_f16", SB[m % 2], 32, KE[(j // 2) % 2] + 2 * (j % 2), 2, QE[m % 2], 2,
           None if M3F[0] else SB[m % 2], 16)


def PV(which, m):
    if "--nopv" in FLAGS:
        return
    j = m // 2
    o = OA[2 * (m % 2) + (0 if which <= 2 else 1)]
    v = VA[j % 2] if which % 2 == 1 else VB[j % 2]
    if "--pvswap" in FLAGS:
        p.mfma(F16, o, 16, P + 4 * (which - 1), 4, v, 4, o, 8)
        return
    p.mfma(F16, o, 16, v, 4, P + 4 * (which - 1), 4, o, 8)


def G(g, m, mid=None):
    s = SB[m % 2] + 4 * g
    d = P + 2 * g
    p.trans(f"v_exp_f16 v{d}, v{s}", wr={d}, rd={s})
    p.trans(f"v_exp_f16 v{d + 1}, v{s + 2}", wr={d + 1}, rd={s + 2})
    p.trans(f"v_exp_f16_sdwa v{d}, v{s + 1} dst_sel:WORD_1 dst_unused:UNUSED_PRESERVE src0_sel:WORD_0",
            wr={d}, rd={s + 1, d}, flags=("sdwa",))
    if mid:
        mid()
    p.trans(f"v_exp_f16_sdwa v{d + 1}, v{s + 3} dst_sel:WORD_1 dst_unused:UNUSED_PRESERVE src0_sel:WORD_0",
            wr={d + 1}, rd={s + 3, d + 1}, flags=("sdwa",))


PREP_AT = opt("prepat", 5)


def chunk_body(tag):
    for m in range(16):
        j = m // 2
        sq = []
        if m == BAR_AT and "--nobar" not in FLAGS:
            assert m % 2 == 1
            sq = [None, None, None, None, None, lambda: p.raw("s_barrier", "salu")]
        if m == 15:
            sq = [lambda: p.salu(f"s_add_u32 s{S_WB}, s{S_WB}, {BUF}"),
                  lambda: p.salu(f"s_cmp_ge_u32 s{S_WB}, {NBUF * BUF}"),
                  lambda: p.salu(f"s_cselect_b32 s{S_WB}, 0, s{S_WB}"),
                  lambda: p.salu(f"s_add_u32 s{S_CNT}, s{S_CNT}, 1"),
                  lambda: p.salu(f"s_cmp_lt_u32 s{S_CNT}, 8")]

        def X():
            if sq:
                f = sq.pop(0)
                if f:
                    f()

        if SCHED2:
            G(0, m)
            PV(3, m - 1)
            if m % 2 == 0:
                p.wait_lds(0)
                rd_km(j + 2)
                if j % 2 == 0:
                    rd_ke(j + 2)
            X()
            G(1, m)
            PV(4, m - 1)
            if m % 2 == 0:
                rd_vb(j + 1)
                rd_va(j + 1)
            X()
            G(2, m)
            M3(m + 1)
            G(3, m)
            if opt("idle", 0):
                p.nop(opt("idle", 0))
            G(4, m)
            PV(1, m)
            X()
            if m == 15:
                p.valu(f"v_mov_b32 v{V_CUR}, v{V_NXT}", wr={V_CUR}, rd={V_NXT})
                p.valu(f"v_lshl_add_u32 v{V_NXT}, v{V_LANE}, 4, s{S_WB}", wr={V_NXT}, rd={V_LANE})
            G(5, m)
            PV(2, m)
            X()
            G(6, m)
            M1(m + 2)
            X()
            G(7, m)
            M2(m + 2)
            X()
            assert not sq
            continue
        if M3F[0]:
            G(0, m)
            G(1, m)
            PV(4, m - 1)
            if m % 2 == 0:
                p.wait_lds(0)
                rd_vb(j + 1)
                rd_va(j + 1)
            X()
            G(2, m)
            PV(1, m)
            X()
            G(3, m)
            M1(m + 1)
            X()
            if m == 15:
                p.valu(f"v_mov_b32 v{V_CUR}, v{V_NXT}", wr={V_CUR}, rd={V_NXT})
                p.valu(f"v_lshl_add_u32 v{V_NXT}, v{V_LANE}, 4, s{S_WB}", wr={V_NXT}, rd={V_LANE})
            G(4, m)
            PV(2, m)
            X()
            G(5, m)
            M2(m + 1)
            if m % 2 == 0:
                rd_km(j + 2)
                if j % 2 == 0:
                    rd_ke(j + 2)
            X()
            G(6, m)
            PV(3, m)
            X()
            G(7, m)
            M3(m + 2)
            assert not sq
            continue
        G(0, m)
        M2(m + 1)
        if m % 2 == 0:
            p.wait_lds(0)
            rd_km(j + 2)
            if j % 2 == 0:
                rd_ke(j + 2)
        X()
        G(1, m)
        PV(4, m - 1)
        if m % 2 == 0:
            rd_vb(j + 1)
            rd_va(j + 1)
        X()
        G(2, m)
        PV(1, m)
        X()
        G(3, m, mid=lambda: M3(m + 1))
        if m == 15:
            p.valu(f"v_mov_b32 v{V_CUR}, v{V_NXT}", wr={V_CUR}, rd={V_NXT})
            p.valu(f"v_lshl_add_u32 v{V_NXT}, v{V_LANE}, 4, s{S_WB}", wr={V_NXT}, rd={V_LANE})
        G(4, m)
        G(5, m)
        PV(2, m)
        X()
        G(6, m)
        M1(m + 2)
        X()
        G(7, m)
        PV(3, m)
        X()
        assert not sq


assert BAR_AT <= 11
p.salu(f"s_mov_b32 s{S_CNT}, 0")
p.salu(f"s_mov_b32 s{S_WB}, {BUF}")
rd_km(0)
rd_ke(0)
rd_km(1)
rd_vb(0)
rd_va(0)
if M3F[0]:
    M3(0)
    M1(0)
    M2(0)
    M3(1)
elif SCHED2 and EARLY:
    M1(0)
    M2(0)
    M3(0)
    q_prep(RQ[1], 1, V_C, MAGIC_B, True)
    M1(1)
    M2(1)
elif SCHED2:
    M1(0)
    M2(0)
    M1(1)
    M2(1)
    M3(0)
else:
    M1(0)
    M2(0)
    M1(1)
    M3(0)
p.wait_lds(0)
if not (SCHED2 and EARLY):
    p.nop(20)

saved = (p.ins, p.nops_inserted)
p.ins = []
p.lds_pend = []
p.vm_pend = []
chunk_body("d")
tail = p.ins[-60:]
steady = list(p.lds_pend)
p.ins, p.nops_inserted = saved
p.ins.append(Inst(".p2align 6", "other", ws=0))
p.label("L_loop")
for i in tail:
    g = copy.copy(i)
    g.flags = set(g.flags) | {"ghost"}
    p.ins.append(g)
p.lds_pend = list(steady)
p.vm_pend = []
chunk_body("A")
assert [sorted(x) for x in p.lds_pend] == [sorted(x) for x in steady], (p.lds_pend, steady)
p.salu("s_cbranch_scc1 L_loop")
if SCHED2:
    PV(3, 15)
PV(4, 15)
stamp()
p.ds_read("ds_read_b32", V_FLAGV, 1, V_FLAGV, 0)


def epilogue(o_regs, soff, off0, ybase):
    for ti, o in enumerate(o_regs):
        R = V_T0 + 4 + 2 * ti
        y = ybase + 8 * ti
        p.trans(f"v_rcp_f32 v{R}, v{o + 10}", wr={R}, rd={o + 10})
        for j in range(5):
            p.valu(f"v_pk_mul_f32 v[{o + 2 * j}:{o + 2 * j + 1}], v[{o + 2 * j}:{o + 2 * j + 1}], v[{R}:{R + 1}] op_sel_hi:[1,0]",
                   wr={o + 2 * j, o + 2 * j + 1}, rd={o + 2 * j, o + 2 * j + 1, R})
        for j in range(5):
            p.valu(f"v_cvt_pk_bf16_f32 v{y + j}, v{o + 2 * j}, v{o + 2 * j + 1}", wr={y + j},
                   rd={o + 2 * j, o + 2 * j + 1})
        p.bstore(4, y, V_EA0, S_O, soff, off0 + ti * 32 * ROWB)
        p.bstore(1, y + 4, V_EA1, S_O, soff, off0 + ti * 32 * ROWB + 16)


o = OA[0]
p.valu(f"v_add_f32 v{t0}, |v{o}|, |v{o + 1}|", wr={t0}, rd={o, o + 1})
for r in range(2, 10):
    p.valu(f"v_add_f32 v{t0}, |v{o + r}|, v{t0}", wr={t0}, rd={o + r, t0})
p.valu(f"v_cmp_class_f32 vcc, v{t0}, s{S_CLS}", rd={t0}, swr={"vcc"}, srd={S_CLS})
p.valu(f"v_readfirstlane_b32 s{S_BAD}, v{V_FLAGV}", rd={V_FLAGV}, swr={S_BAD}, flags=("readlane",))
p.salu(f"s_or_b64 s[{S_BADM}:{S_BADM + 1}], s[{S_BADM}:{S_BADM + 1}], vcc", srd={"vcc"})
p.salu(f"s_or_b32 s{S_BAD}, s{S_BAD}, s{S_BADM}", srd={S_BAD})
p.salu(f"s_or_b32 s{S_BAD}, s{S_BAD}, s{S_BADM + 1}")
if not ({"--m3x8", "--nom3", "--nopv", "--pvswap"} & FLAGS):
    p.salu("s_cbranch_scc1 L_generic")
epilogue(OA[0:2], f"s{S_QOFF}", 0, P)
epilogue(OA[2:4], f"s{S_QOFF}", 64 * ROWB, KE[0])
if STAMP:
    stamp()
    p.salu("s_memrealtime s[62:63]")
    p.salu(f"s_load_dwordx2 s[56:57], s[0:1], {40 if '--dbgstamp' in FLAGS else 48}")
    p.raw("s_waitcnt lgkmcnt(0)", "wait")
    k = NSTAMP[0]
    NSTAMP[0] += 2
    p.salu(f"s_sub_u32 s{64 + 2 * k}, s62, s60")
    p.salu(f"s_add_u32 s{64 + 2 * k}, s{64 + 2 * k}, s64")
    p.salu(f"s_add_u32 s{66 + 2 * k}, s60, s64")
    p.salu("s_mov_b32 s58, 0x1000000")
    p.salu("s_mov_b32 s59, 0x00020000")
    p.valu(f"v_mov_b32 v{t2}, 0", wr={t2})
    for k in range(NSTAMP[0]):
        p.salu(f"s_sub_u32 s{S_TMP}, s{64 + 2 * k}, s64")
        p.valu(f"v_mov_b32 v{t1}, s{S_TMP}", wr={t1})
        p.valu(f"v_cmp_eq_u32 vcc, {k}, v{V_LANE}", rd={V_LANE}, swr={"vcc"})
        p.valu(f"v_cndmask_b32 v{t2}, v{t2}, v{t1}, vcc", wr={t2}, rd={t2, t1}, srd={"vcc"})
    if "--dbgstamp" in FLAGS:
        p.salu("s_mov_b32 s58, 64")
        p.salu(f"s_lshl_b32 s{S_TMP}, s2, 3")
        p.salu(f"s_add_u32 s{S_TMP}, s{S_TMP}, s{S_WAVE}")
        p.salu(f"s_mov_b32 s{S_TMP2}, 0x1000")
        p.salu(f"s_cmp_eq_u32 s{S_TMP}, {5 * 8}")
        p.salu(f"s_cselect_b32 s{S_TMP2}, 0, s{S_TMP2}")
        p.salu(f"s_cmp_eq_u32 s{S_TMP}, {200 * 8 + 3}")
        p.salu(f"s_cselect_b32 s{S_TMP2}, 32, s{S_TMP2}")
        p.valu(f"v_lshlrev_b32 v{t1}, 2, v{V_LANE}", wr={t1}, rd={V_LANE})
        p.valu(f"v_cmp_lt_u32 vcc, 7, v{V_LANE}", rd={V_LANE}, swr={"vcc"})
        p.valu(f"v_mov_b32 v{t3}, 0x1000", wr={t3})
        p.valu(f"v_cndmask_b32 v{t1}, v{t1}, v{t3}, vcc", wr={t1}, rd={t1, t3}, srd={"vcc"})
        p.valu(f"v_add_u32 v{t1}, s{S_TMP2}, v{t1}", wr={t1}, rd={t1})
        p.bstore(1, t2, t1, 56, "0", 0)
    else:
        p.valu(f"v_mov_b32 v{t1}, s2", wr={t1})
        p.valu(f"v_lshlrev_b32 v{t1}, 9, v{t1}", wr={t1}, rd={t1})
        p.valu(f"v_and_b32 v{t3}, 0xff, v{V_TID}", wr={t3}, rd={V_TID})
        p.valu(f"v_add_u32 v{t1}, v{t1}, v{t3}", wr={t1}, rd={t1, t3})
        p.valu(f"v_lshlrev_b32 v{t1}, 2, v{t1}", wr={t1}, rd={t1})
        p.bstore(1, t2, t1, 56, "0", 0)
p.label("L_end")
p.salu("s_endpgm")

p.label("L_producer")
p.lds_pend = []
p.vm_pend = vm_prod
p.salu(f"s_setprio {opt('pprio', 3)}")
consts()
p.salu(f"s_mov_b32 s{S_THR}, 0x{f32bits(2.0 ** -9):08x}")
p.salu(f"s_mov_b32 s{S_USED}, 0x{USED_MASK32:08x}")
p.salu(f"s_mov_b32 s{S_USED + 1}, 0x{USED_MASK32:08x}")
p.salu(f"s_mul_i32 s{S_PB}, s{S_W4}, {PAIR}")
p.valu(f"v_lshrrev_b32 v{t1}, 5, v{V_LANE}", wr={t1}, rd={V_LANE})
p.valu(f"v_lshl_add_u32 v{V_L16}, v{V_LANE}, 4, s{S_PB}", wr={V_L16}, rd={V_LANE})
p.valu(f"v_and_b32 v{t0}, 31, v{V_LANE}", wr={t0}, rd={V_LANE})
p.valu(f"v_lshl_add_u32 v{t2}, v{t0}, 4, s{S_PB}", wr={t2}, rd={t0})
p.valu(f"v_lshl_add_u32 v{V_WP0}, v{t1}, 10, v{t2}", wr={V_WP0}, rd={t1, t2})
p.valu(f"v_lshl_add_u32 v{V_WP1}, v{t1}, 3, v{t2}", wr={V_WP1}, rd={t1, t2})
ident()
p.valu(f"v_mov_b32 v{RAWV + 9}, 0x3f80", wr={RAWV + 9})
p.valu(f"v_mov_b32 v{RAWV1 + 9}, 0x3f80", wr={RAWV1 + 9})
p.valu(f"v_mov_b32 v{Y + 9}, 0x{MAGIC_A:08x}", wr={Y + 9})
p.valu(f"v_mov_b32 v{RAWK + 9}, 0", wr={RAWK + 9})
p.salu(f"s_mov_b32 s{S_M1}, 0xaaaaaaaa")
p.salu(f"s_mov_b32 s{S_M1 + 1}, 0xaaaaaaaa")
p.salu(f"s_mov_b32 s{S_M2}, 0xcccccccc")
p.salu(f"s_mov_b32 s{S_M2 + 1}, 0xcccccccc")
p.valu(f"v_mov_b32 v{t2}, 0x3f80", wr={t2})
p.valu(f"v_mov_b32 v{t3}, 0x3f800000", wr={t3})
p.valu(f"v_cndmask_b32 v{t2}, v{t2}, v{t3}, s[{S_M1}:{S_M1 + 1}]", wr={t2}, rd={t2, t3})
p.valu(f"v_mov_b32 v{t1}, 0", wr={t1})
p.valu(f"v_cndmask_b32 v{I4}, v{t2}, v{t1}, s[{S_M2}:{S_M2 + 1}]", wr={I4}, rd={t2, t1})
p.valu(f"v_cndmask_b32 v{I4 + 1}, v{t1}, v{t2}, s[{S_M2}:{S_M2 + 1}]", wr={I4 + 1}, rd={t2, t1})
p.ds_write("ds_write_b32", V_FLAGV, t1, 1, 0)
set_waddr("0")
PST = "--pstamp" in FLAGS


def pstamp(k):
    if PST:
        p.salu(f"s_memtime s[{64 + 2 * k}:{65 + 2 * k}]")
        p.raw("s_waitcnt lgkmcnt(0)", "wait")
        p.lds_pend = []


pstamp(1)
if PST:
    p.wait_vm(0)
pstamp(2)
kv_compute(RAWK1, RAWV1, False, fast=("--slowfirst" not in FLAGS))
pstamp(3)
for f in kv_writes():
    f()
t_check("L_end2")
p.lds_pend = []
pstamp(4)
p.raw("s_barrier", "salu")
pstamp(5)
if PST:
    p.salu("s_load_dwordx2 s[80:81], s[0:1], 48")
    p.raw("s_waitcnt lgkmcnt(0)", "wait")
    p.salu("s_mov_b32 s82, 0x1000000")
    p.salu("s_mov_b32 s83, 0x00020000")
    p.valu(f"v_mov_b32 v{t2}, 0", wr={t2})
    for k in range(6):
        p.salu(f"s_sub_u32 s{S_TMP}, s{64 + 2 * k}, s64")
        p.valu(f"v_mov_b32 v{t1}, s{S_TMP}", wr={t1})
        p.valu(f"v_cmp_eq_u32 vcc, {k}, v{V_LANE}", rd={V_LANE}, swr={"vcc"})
        p.valu(f"v_cndmask_b32 v{t2}, v{t2}, v{t1}, vcc", wr={t2}, rd={t2, t1}, srd={"vcc"})
    p.valu(f"v_mov_b32 v{t1}, s2", wr={t1})
    p.valu(f"v_lshlrev_b32 v{t1}, 9, v{t1}", wr={t1}, rd={t1})
    p.valu(f"v_add_u32 v{t1}, v{t1}, v{V_TID}", wr={t1}, rd={t1, V_TID})
    p.valu(f"v_add_u32 v{t1}, 0x100, v{t1}", wr={t1}, rd={t1})
    p.valu(f"v_lshlrev_b32 v{t1}, 2, v{t1}", wr={t1}, rd={t1})
    p.bstore(1, t2, t1, 80, "0", 0)
    p.wait_vm(0)
S_VOFF = S_QH
ld = kv_loads(f"s{S_SOFF}")
for f in ld:
    f()
p.salu(f"s_mov_b32 s{S_CNT}, 1")
p.salu(f"s_mov_b32 s{S_WB}, {BUF}")
p.salu(f"s_add_u32 s{S_VOFF}, s{S_SOFF}, {CHUNKB}")
T12(RAWV)
T3(RAWV)
for f in kv_loads(f"s{S_VOFF}")[:3]:
    f()
m = V_T0
p.valu(f"v_max_f32 v{m}, |v{TD}|, |v{TD + 1}|", wr={m}, rd={TD, TD + 1})
for r in range(2, 32, 2):
    p.valu(f"v_max3_f32 v{m}, |v{TD + r}|, |v{TD + r + 1}|, v{m}", wr={m}, rd={TD + r, TD + r + 1, m})
p.valu(f"v_cmp_gt_f32 vcc, s{S_THR}, v{m}", rd={m}, swr={"vcc"}, srd={S_THR})
p.salu(f"s_and_b64 vcc, vcc, s[{S_USED}:{S_USED + 1}]", srd={"vcc"})
p.salu(f"s_or_b64 s[{S_BADM}:{S_BADM + 1}], s[{S_BADM}:{S_BADM + 1}], vcc")
p.nop(4)
p.label("L_ploop")
p.vm_pend = [rng(RAWK, 4), rng(RAWK + 4, 4), rng(RAWK + 8, 1), rng(RAWV, 4), rng(RAWV + 4, 4), rng(RAWV + 8, 1)]
if "--pidle" in FLAGS:
    p.salu("s_branch L_pnoflag")
set_waddr(f"s{S_WB}")
W = kv_writes()
cv = []
for f in range(4):
    for j in range(4):
        r = TD + 8 * f + 2 * j
        d = PK + 4 * f + j
        cv.append(lambda r=r, d=d: p.valu(f"v_cvt_pk_f16_f32 v{d}, v{r}, v{r + 1}", wr={d}, rd={r, r + 1}))


def cvn(n):
    def f():
        for _ in range(n):
            if cv:
                cv.pop(0)()
    return f


def wv(f):
    return lambda: p.ds_write("ds_write_b128", V_W2, PK + 4 * f, 4, 3072 + 1024 * f)


def seq(*fs):
    def g():
        for f in fs:
            f()
    return g


def next_k():
    p.salu(f"s_add_u32 s{S_SOFF}, s{S_SOFF}, {CHUNKB}")
    p.salu(f"s_cmp_ge_u32 s{S_CNT}, 7")
    p.salu(f"s_cselect_b32 s{S_SOFF}, 0x40000000, s{S_SOFF}")
    for f in kv_loads(f"s{S_SOFF}")[3:]:
        f()


def next_v():
    p.salu(f"s_add_u32 s{S_VOFF}, s{S_VOFF}, {CHUNKB}")
    p.salu(f"s_cmp_ge_u32 s{S_CNT}, 6")
    p.salu(f"s_cselect_b32 s{S_VOFF}, 0x40000000, s{S_VOFF}")
    for f in kv_loads(f"s{S_VOFF}")[:3]:
        f()


hooks = {}
for g in range(5):
    hooks[3 * g + 1] = cvn(1)
    hooks[3 * g + 2] = cvn(2)
hooks[5] = seq(cvn(2), wv(0))
hooks[8] = seq(cvn(2), wv(1))
hooks[14] = seq(cvn(2), wv(2))
hooks[15] = seq(cvn(4), wv(3), next_k)
hooks[16] = lambda: T1(RAWV)
hooks[23] = lambda: T2(RAWV)
hooks[33] = lambda: T3(RAWV)
hooks[36] = W[0]
norm_row_mfma(RAWK, [Y + j for j in range(9)], UREG, GREG, hooks=hooks, nops=False)
assert not cv
for f in W[1:4]:
    f()
next_v()
p.salu(f"s_cmp_lg_u32 s{S_CNT}, 7")
p.salu("s_cbranch_scc1 L_pnoflag")
idx = len(p.ins)
p.salu(f"s_or_b32 s{S_BAD}, s{S_BADM}, s{S_BADM + 1}")
p.valu(f"v_mov_b32 v{t1}, s{S_BAD}", wr={t1})
p.ds_write("ds_or_b32", V_FLAGV, t1, 1, 0)
if "--warmout" in FLAGS:
    p.valu(f"v_min_u32 v{t2}, 4, v{V_LANE}", wr={t2}, rd={V_LANE})
    p.valu(f"v_lshlrev_b32 v{t2}, 10, v{t2}", wr={t2}, rd={t2})
    p.bload(1, t3, t2, S_O, f"s{S_QOFF}", 0)
soft_label("L_pnoflag")
zero_ws(idx)
p.wait_lds(0)
p.raw("s_barrier", "salu")
p.salu(f"s_add_u32 s{S_WB}, s{S_WB}, {BUF}")
p.salu(f"s_cmp_ge_u32 s{S_WB}, {NBUF * BUF}")
p.salu(f"s_cselect_b32 s{S_WB}, 0, s{S_WB}")
p.salu(f"s_add_u32 s{S_CNT}, s{S_CNT}, 1")
p.salu(f"s_cmp_lt_u32 s{S_CNT}, 8")
p.nop(8)
p.salu("s_cbranch_scc1 L_ploop")
p.label("L_end2")
p.salu("s_endpgm")

M3F[0] = False
XP[0] = False
p.label("L_generic")
p.flush()
p.valu(f"v_mul_u32_u24 v{V_GK}, {ROWB}, v{V_LANE}", wr={V_GK}, rd={V_LANE})
p.valu(f"v_and_b32 v{t0}, 31, v{V_LANE}", wr={t0}, rd={V_LANE})
p.valu(f"v_mul_u32_u24 v{V_GV}, {ROWB}, v{t0}", wr={V_GV}, rd={t0})
p.valu(f"v_lshrrev_b32 v{t1}, 5, v{V_LANE}", wr={t1}, rd={V_LANE})
p.valu(f"v_lshl_add_u32 v{V_GV}, v{t1}, 4, v{V_GV}", wr={V_GV}, rd={t1, V_GV})
p.valu(f"v_mov_b32 v{RAWV + 9}, 0x3f80", wr={RAWV + 9})
ident()
p.salu(f"s_mov_b32 s{S_QH}, 0")
p.flush()
p.label("L_g_half")
load_rows(RAWK, V_GQ, S_Q, f"s{S_QOFF}")
q_prep(RAWK, 0, None, 0, False)
for o in GO:
    for r in range(16):
        p.valu(f"v_mov_b32 v{o + r}, 0", wr={o + r})
for g in GM:
    p.valu(f"v_mov_b32 v{g}, 0xff7fffff", wr={g})
p.salu(f"s_mov_b32 s{S_SOFF}, s{S_KOFF}")
p.salu(f"s_mov_b32 s{S_CNT}, 0")
p.flush()
p.label("L_g_pair")
load_rows(RAWK, V_GK, S_K, f"s{S_SOFF}")
load_v(RAWV, f"s{S_SOFF}")
norm_row(RAWK, None, False, [KM[0] + j for j in range(4)] + [KM[1] + j for j in range(4)] + [KE[0]])
p.valu(f"v_mov_b32 v{KE[0] + 2}, v{KE[0]}", wr={KE[0] + 2}, rd={KE[0]})
p.valu(f"v_mov_b32 v{KE[0] + 1}, 0", wr={KE[0] + 1})
p.valu(f"v_mov_b32 v{KE[0] + 3}, 0", wr={KE[0] + 3})
for j in range(4):
    a, b = KM[0] + j, KM[1] + j
    p.valu(f"v_permlane32_swap_b32 v{a}, v{b}", wr={a, b}, rd={a, b}, flags=("permlane",))
p.valu(f"v_permlane32_swap_b32 v{KE[0]}, v{KE[0] + 2}", wr={KE[0], KE[0] + 2}, rd={KE[0], KE[0] + 2},
       flags=("permlane",))
T12(RAWV)
T3(RAWV)
FR = [VA[0], VB[0], VA[1], VB[1]]
for f in range(4):
    for j in range(4):
        r = TD + 8 * f + 2 * j
        p.valu(f"v_cvt_pk_bf16_f32 v{FR[f] + j}, v{r}, v{r + 1}", wr={FR[f] + j}, rd={r, r + 1})
BF = "v_mfma_f32_32x32x16_bf16"
for tau in range(2):
    M1(2 * tau)
    M2(2 * tau)
    M3(2 * tau)
    S = SB[0]
    for ti, o in enumerate(GO):
        s = S + 16 * ti
        m = GM[ti]
        for r in range(16):
            p.valu(f"v_mul_f32 v{s + r}, v{s + r}, v{V_C}", wr={s + r}, rd={s + r, V_C})
        p.valu(f"v_max_f32 v{t0}, v{s}, v{s + 1}", wr={t0}, rd={s, s + 1})
        for r in range(2, 16, 2):
            p.valu(f"v_max3_f32 v{t0}, v{s + r}, v{s + r + 1}, v{t0}", wr={t0}, rd={s + r, s + r + 1, t0})
        p.valu(f"v_mov_b32 v{t1}, v{t0}", wr={t1}, rd={t0})
        p.valu(f"v_permlane32_swap_b32 v{t0}, v{t1}", wr={t0, t1}, rd={t0, t1}, flags=("permlane",))
        p.nop(2)
        p.valu(f"v_max3_f32 v{t0}, v{t0}, v{t1}, v{m}", wr={t0}, rd={t0, t1, m})
        p.valu(f"v_sub_f32 v{t1}, v{m}, v{t0}", wr={t1}, rd={m, t0})
        p.trans(f"v_exp_f32 v{t1}, v{t1}", wr={t1}, rd={t1})
        p.valu(f"v_mov_b32 v{m}, v{t0}", wr={m}, rd={t0})
        for r in range(16):
            p.valu(f"v_mul_f32 v{o + r}, v{o + r}, v{t1}", wr={o + r}, rd={o + r, t1})
        for r in range(16):
            p.valu(f"v_sub_f32 v{s + r}, v{s + r}, v{t0}", wr={s + r}, rd={s + r, t0})
        for r in range(16):
            p.trans(f"v_exp_f32 v{s + r}, v{s + r}", wr={s + r}, rd={s + r})
        for r in range(8):
            p.valu(f"v_cvt_pk_bf16_f32 v{P + 8 * ti + r}, v{s + 2 * r}, v{s + 2 * r + 1}", wr={P + 8 * ti + r},
                   rd={s + 2 * r, s + 2 * r + 1})
        p.mfma(BF, o, 16, VA[tau], 4, P + 8 * ti, 4, o, 8)
        p.mfma(BF, o, 16, VB[tau], 4, P + 8 * ti + 4, 4, o, 8)
p.flush()
p.salu(f"s_add_u32 s{S_SOFF}, s{S_SOFF}, {64 * ROWB}")
p.salu(f"s_add_u32 s{S_CNT}, s{S_CNT}, 1")
p.salu(f"s_cmp_lt_u32 s{S_CNT}, 32")
p.salu("s_cbranch_scc1 L_g_pair")
epilogue(GO, f"s{S_QOFF}", 0, P)
p.flush()
p.salu(f"s_add_u32 s{S_QOFF}, s{S_QOFF}, {64 * ROWB}")
p.salu(f"s_add_u32 s{S_QH}, s{S_QH}, 1")
p.salu(f"s_cmp_lt_u32 s{S_QH}, 2")
p.salu("s_cbranch_scc1 L_g_half")
p.salu("s_endpgm")

hdr = open(f"cdna_kernels/{NAME}.s.ref").read().split("\n")
top = []
for line in hdr:
    if line.startswith("; @launch"):
        top.append(f"; @launch grid=(256,1,1) block=(512,1,1) lds={LDS_BYTES}")
        break
    top.append(line)
body = []
for i in p.ins:
    if "ghost" in i.flags:
        continue
    if i.cls in ("label", "label2"):
        body.append(i.text)
    else:
        body.append("    " + i.text)
DOC = """
;
;   sampled magnitude is too small for f16."""
src = "\n".join(top) + DOC + f"""
.amdgcn_target "amdgcn-amd-amdhsa--gfx950"
.text
.globl {NAME}_kernel
.p2align 12
.p2align 8
.type {NAME}_kernel,@function
{NAME}_kernel:
""" + "\n".join(body) + f"""
.section .rodata,"a"
.p2align 6
.amdhsa_kernel {NAME}_kernel
  .amdhsa_next_free_vgpr {NV + NACC}
  .amdhsa_next_free_sgpr {100 if STAMP else 64}
  .amdhsa_accum_offset {NV}
  .amdhsa_group_segment_fixed_size 0
  .amdhsa_kernarg_size 56
  .amdhsa_user_sgpr_count 2
  .amdhsa_user_sgpr_kernarg_segment_ptr 1
  .amdhsa_system_sgpr_workgroup_id_x 1
.end_amdhsa_kernel
"""
open(OUT, "w").write(src)
print("wrote", OUT, "instructions:", len(body), "auto nops:", p.nops_inserted, "lds", LDS_BYTES)
```

```python
import copy
import struct
import sys
from emit import Prog, Inst, vr, rng

NAME = "standalone__qk_norm__prompt"
OUT = sys.argv[1] if len(sys.argv) > 1 and not sys.argv[1].startswith("--") else f"cdna_kernels/{NAME}.s"
FLAGS = set(a for a in sys.argv[1:] if a.startswith("--"))
FORCE_GENERIC = "--generic" in FLAGS
STAMP = "--stamp" in FLAGS


def opt(name, default):
    for a in FLAGS:
        if a.startswith(f"--{name}="):
            return int(a.split("=")[1])
    return default


BAR_AT = opt("barat", 9)

TENSOR_BYTES = 2 * 32 * 2048 * 18 * 2
ROWB = 36
PAIR = 7168
BUF = 4 * PAIR
NBUF = 3
FLAG = NBUF * BUF
LDS_BYTES = FLAG + 64
CHUNKB = 256 * ROWB


def f32bits(x):
    return struct.unpack("<I", struct.pack("<f", x))[0]


def f16bits(x):
    return struct.unpack("<H", struct.pack("<e", x))[0]


LOG2E = 1.4426950408889634
MAGIC_A = f16bits(192.0) | (f16bits(220.0) << 16)
MAGIC_B = f16bits(192.0) | (f16bits(131.0) << 16)
T_MAX_BITS = 0x402F0000


def drow(d):
    if d < 10:
        r, h = d, 0
    else:
        r, h = d - 10, 1
    return 8 * (r // 4) + 4 * h + (r % 4)


USED_MASK32 = sum(1 << drow(d) for d in range(18))

S_Q, S_K, S_V, S_O = 16, 20, 24, 28
S_HEAD, S_QB, S_WAVE, S_T, S_KOFF, S_QOFF = 32, 33, 34, 35, 36, 37
S_TMP, S_TMP2 = 38, 39
S_BADM = 40
S_BAD = 42
S_QH = 43
S_HIMASK, S_EPS, S_CLS, S_THR, S_SOFF, S_CNT = 44, 45, 46, 47, 48, 49
S_WB, S_PB = 50, 51
S_W4 = 52
S_USED = 54
S_M1, S_M2 = 56, 58

V_TID, V_LANE = 0, 1
V_GK, V_GV, V_GQ, V_L16 = 2, 3, 4, 5
V_CUR, V_NXT = 6, 7
V_WP0, V_WP1 = 8, 9
V_W0, V_W1, V_W2 = 10, 11, 12
V_C, V_FLAGV = 13, 14
V_EA0, V_EA1 = 15, 28
V_T0 = 16
GM = [29, 30]
V_PF = 31
PF_LAST = 0x2180
QE = [32, 34]
QM0 = [36, 44]
QM1 = [40, 48]
KE = [52, 56]
KM = [60, 64]
VA = [68, 72]
VB = [76, 80]
P = 84
SB = [100, 132]
OA = [164, 180, 196, 212]
BE = 228
BI = 232
NV = 240
NACC = 0
RQ = [100, 148]
RAWK = 164
RAWV = 176
TD = 188
Y = 100
RAWK1, RAWV1 = 112, 124
GO = [132, 148]
UREG = 136
GREG = 156
PK = 32
I4 = 160

p = Prog()
t0, t1, t2, t3 = V_T0, V_T0 + 1, V_T0 + 2, V_T0 + 3
NSTAMP = [0]


def stamp():
    if STAMP:
        k = NSTAMP[0]
        NSTAMP[0] += 1
        p.salu(f"s_memtime s[{64 + 2 * k}:{65 + 2 * k}]")
        p.raw("s_waitcnt lgkmcnt(0)", "wait")
        p.lds_pend = []


def soft_label(name):
    p.ins.append(Inst(f"{name}:", "label2", ws=0))


def zero_ws(idx):
    for i in p.ins[idx:]:
        i.ws = 0


def load_rows(dst, voff, srd, soff, off=0):
    p.bload(4, dst, voff, srd, soff, off)
    p.bload(4, dst + 4, voff, srd, soff, off + 16)
    p.bload(1, dst + 8, voff, srd, soff, off + 32)


def load_v(dst, soff):
    p.bload(4, dst, V_GV, S_V, soff, 0)
    p.bload(4, dst + 4, V_GV, S_V, soff, 32 * ROWB)
    p.bload(1, dst + 8, V_GK, S_V, soff, 32)


def norm_row(x, scale_reg, check, dst, hooks=None):
    ops = []
    a, b = V_T0, V_T0 + 1
    for j in range(9):
        acc = a if j % 2 == 0 else b
        c = "0" if j < 2 else f"v{acc}"
        ops.append(lambda j=j, acc=acc, c=c: p.valu(f"v_dot2_f32_bf16 v{acc}, v{x + j}, v{x + j}, {c}", wr={acc},
                                                    rd={x + j}, flags=("dot", "dotc")))
    R = V_T0 + 2
    T = [V_T0 + 4, V_T0 + 6, V_T0 + 8, V_T0 + 10]

    def unpack(j):
        t = T[j % 4]
        ops.append(lambda: p.valu(f"v_lshlrev_b32 v{t}, 16, v{x + j}", wr={t}, rd={x + j}))
        ops.append(lambda: p.valu(f"v_and_b32 v{t + 1}, s{S_HIMASK}, v{x + j}", wr={t + 1}, rd={x + j},
                                  srd={S_HIMASK}))
    unpack(0)
    unpack(1)
    ops.append(lambda: p.valu(f"v_add_f32 v{a}, v{a}, v{b}", wr={a}, rd={a, b}))
    ops.append(lambda: p.trans(f"v_sqrt_f32 v{R}, v{a}", wr={R}, rd={a}))
    if check:
        ops.append(lambda: p.valu(f"v_cmp_class_f32 vcc, v{a}, s{S_CLS}", rd={a}, swr={"vcc"}, srd={S_CLS}))
    else:
        unpack(2)
    ops.append(lambda: p.valu(f"v_add_f32 v{R}, s{S_EPS}, v{R}", wr={R}, rd={R}, srd={S_EPS}))
    ops.append(lambda: p.trans(f"v_rcp_f32 v{R}, v{R}", wr={R}, rd={R}))
    if check:
        unpack(2)
        ops.append(lambda: p.salu(f"s_or_b64 s[{S_BADM}:{S_BADM + 1}], s[{S_BADM}:{S_BADM + 1}], vcc", srd={"vcc"}))
    if scale_reg is not None:
        ops.append(lambda: p.valu(f"v_mul_f32 v{R}, v{R}, v{scale_reg}", wr={R}, rd={R, scale_reg}))
    for j in range(9):
        t = T[j % 4]
        ops.append(lambda t=t: p.valu(f"v_pk_mul_f32 v[{t}:{t + 1}], v[{t}:{t + 1}], v[{R}:{R + 1}] op_sel_hi:[1,0]",
                                      wr={t, t + 1}, rd={t, t + 1, R}))
        if j + 3 < 9:
            unpack(j + 3)
        ops.append(lambda t=t, j=j: p.valu(f"v_cvt_pk_f16_f32 v{dst[j]}, v{t}, v{t + 1}", wr={dst[j]},
                                           rd={t, t + 1}))
    for n, f in enumerate(ops):
        if hooks and n in hooks:
            hooks[n]()
        f()


def norm_row_plain(x, dst, U, hooks=None):
    ops = []
    a, b = V_T0, V_T0 + 1
    R = V_T0 + 2
    for j in range(9):
        lo, hi = U + 2 * j, U + 2 * j + 1
        ops.append(lambda j=j, lo=lo: p.valu(f"v_lshlrev_b32 v{lo}, 16, v{x + j}", wr={lo}, rd={x + j}))
        ops.append(lambda j=j, hi=hi: p.valu(f"v_and_b32 v{hi}, s{S_HIMASK}, v{x + j}", wr={hi}, rd={x + j},
                                             srd={S_HIMASK}))
        for acc, u in ((a, lo), (b, hi)):
            if j == 0:
                ops.append(lambda acc=acc, u=u: p.valu(f"v_mul_f32 v{acc}, v{u}, v{u}", wr={acc}, rd={u}))
            else:
                ops.append(lambda acc=acc, u=u: p.valu(f"v_fmac_f32 v{acc}, v{u}, v{u}", wr={acc}, rd={u, acc}))
    ops.append(lambda: p.valu(f"v_add_f32 v{a}, v{a}, v{b}", wr={a}, rd={a, b}))
    ops.append(lambda: p.trans(f"v_sqrt_f32 v{R}, v{a}", wr={R}, rd={a}))
    ops.append(lambda: p.valu(f"v_cmp_class_f32 vcc, v{a}, s{S_CLS}", rd={a}, swr={"vcc"}, srd={S_CLS}))
    ops.append(lambda: p.valu(f"v_add_f32 v{R}, s{S_EPS}, v{R}", wr={R}, rd={R}, srd={S_EPS}))
    ops.append(lambda: p.trans(f"v_rcp_f32 v{R}, v{R}", wr={R}, rd={R}))
    ops.append(lambda: p.salu(f"s_or_b64 s[{S_BADM}:{S_BADM + 1}], s[{S_BADM}:{S_BADM + 1}], vcc", srd={"vcc"}))
    for j in range(9):
        lo, hi = U + 2 * j, U + 2 * j + 1
        ops.append(lambda lo=lo: p.valu(f"v_mul_f32 v{lo}, v{lo}, v{R}", wr={lo}, rd={lo, R}))
        ops.append(lambda hi=hi: p.valu(f"v_mul_f32 v{hi}, v{hi}, v{R}", wr={hi}, rd={hi, R}))
        ops.append(lambda j=j, lo=lo, hi=hi: p.valu(f"v_cvt_pk_f16_f32 v{dst[j]}, v{lo}, v{hi}", wr={dst[j]},
                                                    rd={lo, hi}))
    for n, f in enumerate(ops):
        if hooks and n in hooks:
            hooks[n]()
        f()


def norm_row_mfma(x, dst, U, GR, hooks=None, nops=True):
    ops = []
    a = V_T0
    R = V_T0 + 2
    OP = "v_mfma_f32_4x4x4_16b_bf16"
    for g in range(5):
        ops.append(lambda g=g: p.mfma(OP, GR, 4, x + 2 * g, 2, x + 2 * g, 2, None if g == 0 else GR, 2))
        ops.append(lambda g=g: p.mfma(OP, U + 4 * g, 4, I4, 2, x + 2 * g, 2, None, 2))
        ops.append(lambda: p.nop(1) if nops else None)
    ops.append(lambda: p.valu(f"v_cndmask_b32 v{a}, v{GR}, v{GR + 1}, s[{S_M1}:{S_M1 + 1}]", wr={a}, rd={GR, GR + 1}))
    ops.append(lambda: p.valu(f"v_cndmask_b32 v{a + 1}, v{GR + 2}, v{GR + 3}, s[{S_M1}:{S_M1 + 1}]", wr={a + 1},
                              rd={GR + 2, GR + 3}))
    ops.append(lambda: p.valu(f"v_cndmask_b32 v{a}, v{a}, v{a + 1}, s[{S_M2}:{S_M2 + 1}]", wr={a}, rd={a, a + 1}))
    ops.append(lambda: p.trans(f"v_sqrt_f32 v{R}, v{a}", wr={R}, rd={a}))
    ops.append(lambda: p.valu(f"v_cmp_class_f32 vcc, v{a}, s{S_CLS}", rd={a}, swr={"vcc"}, srd={S_CLS}))
    ops.append(lambda: p.valu(f"v_add_f32 v{R}, s{S_EPS}, v{R}", wr={R}, rd={R}, srd={S_EPS}))
    ops.append(lambda: p.trans(f"v_rcp_f32 v{R}, v{R}", wr={R}, rd={R}))
    ops.append(lambda: p.salu(f"s_or_b64 s[{S_BADM}:{S_BADM + 1}], s[{S_BADM}:{S_BADM + 1}], vcc", srd={"vcc"}))
    for j in range(9):
        lo, hi = U + 2 * j, U + 2 * j + 1
        ops.append(lambda lo=lo: p.valu(f"v_mul_f32 v{lo}, v{lo}, v{R}", wr={lo}, rd={lo, R}))
        ops.append(lambda hi=hi: p.valu(f"v_mul_f32 v{hi}, v{hi}, v{R}", wr={hi}, rd={hi, R}))
        ops.append(lambda j=j, lo=lo, hi=hi: p.valu(f"v_cvt_pk_f16_f32 v{dst[j]}, v{lo}, v{hi}", wr={dst[j]},
                                                    rd={lo, hi}))
    for n, f in enumerate(ops):
        if hooks and n in hooks:
            hooks[n]()
        f()


def T1(raw):
    p.mfma("v_mfma_f32_32x32x16_bf16", TD, 16, raw, 4, BI, 4, None, 8)


def T2(raw):
    p.mfma("v_mfma_f32_32x32x16_bf16", TD + 16, 16, raw + 4, 4, BI, 4, None, 8)


def T12(raw):
    T1(raw)
    T2(raw)


def T3(raw):
    p.mfma("v_mfma_f32_32x32x4_2b_bf16", TD, 32, raw + 8, 2, BE, 2, TD, 16)


def kv_compute(rawk, rawv, first, lead=0, fast=False):
    if fast:
        hooks = {21: lambda: T1(rawv), 22: lambda: T2(rawv), 34: lambda: T3(rawv)}
        T1(rawv)
        T2(rawv)
        norm_row(rawk, None, True, [Y + j for j in range(9)], hooks={10: lambda: T3(rawv)})
    else:
        if "--plain" in FLAGS:
            hooks = {lead: lambda: T1(rawv), lead + 8: lambda: T2(rawv), lead + 18: lambda: T3(rawv)}
            norm_row_plain(rawk, [Y + j for j in range(9)], UREG, hooks=hooks)
        else:
            hooks = {0: lambda: T12(rawv), 15: lambda: T3(rawv)}
            norm_row_mfma(rawk, [Y + j for j in range(9)], UREG, GREG, hooks=hooks)
    if first:
        p.salu(f"s_cmp_lg_u32 s{S_CNT}, 1")
        p.salu("s_cbranch_scc1 L_nosample")
        idx = len(p.ins)
        m = V_T0
        p.valu(f"v_max_f32 v{m}, |v{TD}|, |v{TD + 1}|", wr={m}, rd={TD, TD + 1})
        for r in range(2, 32, 2):
            p.valu(f"v_max3_f32 v{m}, |v{TD + r}|, |v{TD + r + 1}|, v{m}", wr={m}, rd={TD + r, TD + r + 1, m})
        p.valu(f"v_cmp_gt_f32 vcc, s{S_THR}, v{m}", rd={m}, swr={"vcc"}, srd={S_THR})
        p.salu(f"s_and_b64 vcc, vcc, s[{S_USED}:{S_USED + 1}]", srd={"vcc"})
        p.salu(f"s_or_b64 s[{S_BADM}:{S_BADM + 1}], s[{S_BADM}:{S_BADM + 1}], vcc")
        soft_label("L_nosample")
        zero_ws(idx)
    for f in range(4):
        for j in range(4):
            r = TD + 8 * f + 2 * j
            d = TD + 8 * f + j
            p.valu(f"v_cvt_pk_f16_f32 v{d}, v{r}, v{r + 1}", wr={d}, rd={r, r + 1})


def kv_writes():
    w = [lambda: p.ds_write("ds_write_b128", V_W0, Y, 4, 0),
         lambda: p.ds_write("ds_write_b128", V_W0, Y + 4, 4, 512),
         lambda: p.ds_write("ds_write_b64", V_W1, Y + 8, 2, 2048),
         lambda: p.ds_write("ds_write_b64", V_W1, Y + 8, 2, 2048 + 512)]
    for f in range(4):
        w.append(lambda f=f: p.ds_write("ds_write_b128", V_W2, TD + 8 * f, 4, 3072 + 1024 * f))
    return w


def kv_loads(soff):
    return [lambda: p.bload(4, RAWV, V_GV, S_V, soff, 0),
            lambda: p.bload(4, RAWV + 4, V_GV, S_V, soff, 32 * ROWB),
            lambda: p.bload(1, RAWV + 8, V_GK, S_V, soff, 32),
            lambda: p.bload(4, RAWK, V_GK, S_K, soff, 0),
            lambda: p.bload(4, RAWK + 4, V_GK, S_K, soff, 16),
            lambda: p.bload(1, RAWK + 8, V_GK, S_K, soff, 32)]


def set_waddr(sbase):
    p.valu(f"v_add_u32 v{V_W0}, {sbase}, v{V_WP0}", wr={V_W0}, rd={V_WP0})
    p.valu(f"v_add_u32 v{V_W1}, {sbase}, v{V_WP1}", wr={V_W1}, rd={V_WP1})
    p.valu(f"v_add_u32 v{V_W2}, {sbase}, v{V_L16}", wr={V_W2}, rd={V_L16})


def q_prep(raw, hq, scale_reg, magic, check, hooks=None):
    dst = [QM0[hq] + j for j in range(4)] + [QM1[hq] + j for j in range(4)] + [QE[hq]]
    norm_row(raw, scale_reg, check, dst, hooks)
    p.valu(f"v_mov_b32 v{QE[hq] + 1}, 0x{magic:08x}", wr={QE[hq] + 1})
    for j in range(4):
        a, b = QM0[hq] + j, QM1[hq] + j
        p.valu(f"v_permlane32_swap_b32 v{a}, v{b}", wr={a, b}, rd={a, b}, flags=("permlane",))


if STAMP:
    p.salu("s_memrealtime s[60:61]")
stamp()
p.salu("s_cmp_ge_u32 s2, 256")
p.salu("s_cbranch_scc1 L_end")
p.salu("s_load_dwordx8 s[4:11], s[0:1], 0")
p.salu("s_load_dwordx2 s[12:13], s[0:1], 32")
if "--pf" in FLAGS:
    p.salu("s_getpc_b64 s[14:15]")
    p.valu(f"v_lshlrev_b32 v{t3}, 7, v{V_TID}", wr={t3}, rd={V_TID})
    p.valu(f"v_min_u32 v{t3}, 0x{PF_LAST:x}, v{t3}", wr={t3}, rd={t3})
    p.add(Inst(f"global_load_dword v{V_PF}, v{t3}, s[14:15]", "vmem", wr={V_PF}, rd={t3}))
    p.vm_pend.append({V_PF})
p.valu(f"v_lshrrev_b32 v{t0}, 6, v{V_TID}", wr={t0}, rd={V_TID})
p.salu(f"s_and_b32 s{S_TMP}, s2, 7")
p.salu(f"s_lshr_b32 s{S_TMP2}, s2, 3")
p.valu(f"v_readfirstlane_b32 s{S_WAVE}, v{t0}", rd={t0}, swr={S_WAVE}, flags=("readlane",))
p.salu(f"s_and_b32 s{S_QB}, s{S_TMP2}, 3")
p.salu(f"s_lshr_b32 s{S_TMP2}, s{S_TMP2}, 2")
p.salu(f"s_lshl_b32 s{S_HEAD}, s{S_TMP}, 3")
p.salu(f"s_add_u32 s{S_HEAD}, s{S_HEAD}, s{S_TMP2}")
p.salu(f"s_mul_i32 s{S_KOFF}, s{S_HEAD}, {2048 * ROWB}")
p.salu(f"s_mul_i32 s{S_TMP}, s{S_QB}, {512 * ROWB}")
p.salu(f"s_add_u32 s{S_QOFF}, s{S_KOFF}, s{S_TMP}")
p.salu(f"s_and_b32 s{S_W4}, s{S_WAVE}, 3", srd={S_WAVE})
p.salu(f"s_mul_i32 s{S_TMP}, s{S_W4}, {128 * ROWB}")
p.salu(f"s_add_u32 s{S_QOFF}, s{S_QOFF}, s{S_TMP}")
p.valu(f"v_and_b32 v{V_LANE}, 63, v{V_TID}", wr={V_LANE}, rd={V_TID})
p.valu(f"v_and_b32 v{t0}, 0xff, v{V_TID}", wr={t0}, rd={V_TID})
p.valu(f"v_mul_u32_u24 v{V_GK}, {ROWB}, v{t0}", wr={V_GK}, rd={t0})
p.valu(f"v_mul_u32_u24 v{V_GQ}, {ROWB}, v{V_LANE}", wr={V_GQ}, rd={V_LANE})
p.valu(f"v_and_b32 v{t0}, 0xdf, v{V_TID}", wr={t0}, rd={V_TID})
p.valu(f"v_mul_u32_u24 v{V_GV}, {ROWB}, v{t0}", wr={V_GV}, rd={t0})
p.valu(f"v_lshrrev_b32 v{t1}, 5, v{V_LANE}", wr={t1}, rd={V_LANE})
p.valu(f"v_lshl_add_u32 v{V_GV}, v{t1}, 4, v{V_GV}", wr={V_GV}, rd={t1, V_GV})
p.salu(f"s_and_b32 s{S_TMP}, s{S_HEAD}, 30")
p.salu(f"s_lshl_b32 s{S_TMP}, s{S_TMP}, 1")
p.salu(f"s_add_u32 s{S_SOFF}, s{S_KOFF}, {CHUNKB}")
p.raw("s_waitcnt lgkmcnt(0)", "wait")
p.salu(f"s_load_dword s{S_T}, s[10:11], s{S_TMP}")
for srd, ptr in ((S_K, 6), (S_V, 8), (S_Q, 4), (S_O, 12)):
    p.salu(f"s_mov_b32 s{srd}, s{ptr}")
    p.salu(f"s_mov_b32 s{srd + 1}, s{ptr + 1}")
    p.salu(f"s_mov_b32 s{srd + 2}, {TENSOR_BYTES}")
    p.salu(f"s_mov_b32 s{srd + 3}, 0x00020000")


def consts():
    p.salu(f"s_mov_b32 s{S_HIMASK}, 0xffff0000")
    p.salu(f"s_mov_b32 s{S_EPS}, 0x{f32bits(1e-6):08x}")
    p.salu(f"s_mov_b32 s{S_CLS}, 0x207")
    p.salu(f"s_mov_b64 s[{S_BADM}:{S_BADM + 1}], 0")
    p.valu(f"v_mov_b32 v{V_FLAGV}, 0x{FLAG:x}", wr={V_FLAGV})


def ident():
    for i in range(4):
        p.valu(f"v_mov_b32 v{BI + i}, 0", wr={BI + i})
    p.valu(f"v_mov_b32 v{BE}, 0", wr={BE})
    p.valu(f"v_mov_b32 v{BE + 1}, 0", wr={BE + 1})
    p.salu(f"s_mov_b32 s{S_TMP}, 0x3f80")
    p.salu(f"s_mov_b32 s{S_TMP2}, 0x3f800000")
    for k in range(16):
        lane = (k // 8) * 32 + drow(k)
        i = (k % 8) // 2
        p.valu(f"v_writelane_b32 v{BI + i}, s{S_TMP if k % 2 == 0 else S_TMP2}, {lane}", wr={BI + i}, rd={BI + i})
    for col, reg, val in ((drow(16), BE, S_TMP), (drow(17), BE, S_TMP2), (18, BE + 1, S_TMP), (22, BE + 1, S_TMP)):
        for h in range(2):
            p.valu(f"v_writelane_b32 v{reg}, s{val}, {col + 32 * h}", wr={reg}, rd={reg})


def t_check(target):
    p.raw("s_waitcnt lgkmcnt(0)", "wait")
    p.salu(f"s_lshl_b32 s{S_TMP}, s{S_T}, 16")
    p.salu(f"s_and_b32 s{S_TMP2}, s{S_T}, 0xffff0000")
    p.salu(f"s_bitcmp1_b32 s{S_HEAD}, 0")
    p.salu(f"s_cselect_b32 s{S_T}, s{S_TMP2}, s{S_TMP}")
    p.valu(f"v_mov_b32 v{V_C}, 0x{f32bits(LOG2E):08x}", wr={V_C})
    p.valu(f"v_mul_f32 v{V_C}, s{S_T}, v{V_C}", wr={V_C}, rd={V_C})
    p.salu(f"s_and_b32 s{S_TMP}, s{S_T}, 0x7fffffff")
    if FORCE_GENERIC:
        p.salu(f"s_branch {target}")
    else:
        p.salu(f"s_cmp_gt_u32 s{S_TMP}, 0x{T_MAX_BITS:x}")
        p.salu(f"s_cbranch_scc1 {target}")


p.salu(f"s_cmp_ge_u32 s{S_WAVE}, 4")
p.salu("s_cbranch_scc0 L_compute" if "--prodlast" in FLAGS else "s_cbranch_scc1 L_compute")
idx = len(p.ins)
vm_save = list(p.vm_pend)
load_v(RAWV1, f"s{S_KOFF}")
load_rows(RAWK1, V_GK, S_K, f"s{S_KOFF}")
vm_prod = list(p.vm_pend)
p.salu("s_branch L_producer")
soft_label("L_compute")
zero_ws(idx)
p.vm_pend = vm_save

load_rows(RQ[0], V_GQ, S_Q, f"s{S_QOFF}")
if "--qtogether" in FLAGS:
    load_rows(RQ[1], V_GQ, S_Q, f"s{S_QOFF}", 64 * ROWB)
consts()
p.valu(f"v_lshlrev_b32 v{V_CUR}, 4, v{V_LANE}", wr={V_CUR}, rd={V_LANE})
p.valu(f"v_add_u32 v{V_NXT}, 0x{BUF:x}, v{V_CUR}", wr={V_NXT}, rd={V_CUR})
p.valu(f"v_and_b32 v{t0}, 31, v{V_LANE}", wr={t0}, rd={V_LANE})
p.valu(f"v_mul_u32_u24 v{t2}, {ROWB}, v{t0}", wr={t2}, rd={t0})
p.valu(f"v_mul_u32_u24 v{V_EA0}, 20, v{t1}", wr={V_EA0}, rd={t1})
p.valu(f"v_add_u32 v{V_EA0}, v{V_EA0}, v{t2}", wr={V_EA0}, rd={V_EA0, t2})
p.valu(f"v_lshl_add_u32 v{V_EA1}, v{t1}, 30, v{t2}", wr={V_EA1}, rd={t1, t2})
for r in list(range(OA[0], OA[0] + 64)) + list(range(P + 8, P + 16)) + list(range(VB[1], VB[1] + 4)) + list(range(VA[1], VA[1] + 4)):
    p.valu(f"v_mov_b32 v{r}, 0", wr={r})
if "--qtogether" not in FLAGS:
    load_rows(RQ[1], V_GQ, S_Q, f"s{S_QOFF}", 64 * ROWB)
t_check("L_generic")
stamp()
EARLY = "--lateq" not in FLAGS
q_prep(RQ[0], 0, V_C, MAGIC_B, True)
if not EARLY:
    q_prep(RQ[1], 1, V_C, MAGIC_B, True)
stamp()
p.raw("s_barrier", "salu")
stamp()

F16 = "v_mfma_f32_32x32x16_f16"


def taddr(j):
    return (V_CUR if j < 8 else V_NXT), ((j % 8) // 2) * PAIR, j % 2


def rd_km(j):
    a, o, tp = taddr(j)
    p.ds_read("ds_read_b128", KM[j % 2], 4, a, o + 1024 * tp)


def rd_ke(j):
    a, o, tp = taddr(j)
    assert tp == 0
    p.ds_read("ds_read_b128", KE[(j // 2) % 2], 4, a, o + 2048)


def rd_va(j):
    a, o, tp = taddr(j)
    p.ds_read("ds_read_b128", VA[j % 2], 4, a, o + 3072 + 2048 * tp)


def rd_vb(j):
    a, o, tp = taddr(j)
    p.ds_read("ds_read_b128", VB[j % 2], 4, a, o + 4096 + 2048 * tp)


XP = [True]
M3F = ["--m3first" in FLAGS]
SCHED2 = "--sched1" not in FLAGS and not M3F[0]


def M1(m):
    p.mfma(F16, SB[m % 2], 16, KM[(m // 2) % 2], 4, QM0[m % 2], 4, SB[m % 2] if M3F[0] else None, 8)


def M2(m):
    p.mfma(F16, SB[m % 2] + 16, 16, KM[(m // 2) % 2], 4, QM1[m % 2], 4, SB[m % 2] + 16 if M3F[0] else None, 8)


def M3(m):
    j = m // 2
    if "--m3x8" in FLAGS and XP[0]:
        for h in range(2):
            p.mfma("v_mfma_f32_32x32x8_f16", SB[m % 2] + 16 * h, 16, KE[(j // 2) % 2] + 2 * (j % 2), 2, QE[m % 2], 2,
                   SB[m % 2] + 16 * h, 8)
        return
    if "--nom3" in FLAGS and XP[0]:
        return
    p.mfma("v_mfma_f32_32x32x4_2b_f16", SB[m % 2], 32, KE[(j // 2) % 2] + 2 * (j % 2), 2, QE[m % 2], 2,
           None if M3F[0] else SB[m % 2], 16)


def PV(which, m):
    if "--nopv" in FLAGS:
        return
    j = m // 2
    o = OA[2 * (m % 2) + (0 if which <= 2 else 1)]
    v = VA[j % 2] if which % 2 == 1 else VB[j % 2]
    if "--pvswap" in FLAGS:
        p.mfma(F16, o, 16, P + 4 * (which - 1), 4, v, 4, o, 8)
        return
    p.mfma(F16, o, 16, v, 4, P + 4 * (which - 1), 4, o, 8)


def G(g, m, mid=None):
    s = SB[m % 2] + 4 * g
    d = P + 2 * g
    p.trans(f"v_exp_f16 v{d}, v{s}", wr={d}, rd={s})
    p.trans(f"v_exp_f16 v{d + 1}, v{s + 2}", wr={d + 1}, rd={s + 2})
    p.trans(f"v_exp_f16_sdwa v{d}, v{s + 1} dst_sel:WORD_1 dst_unused:UNUSED_PRESERVE src0_sel:WORD_0",
            wr={d}, rd={s + 1, d}, flags=("sdwa",))
    if mid:
        mid()
    p.trans(f"v_exp_f16_sdwa v{d + 1}, v{s + 3} dst_sel:WORD_1 dst_unused:UNUSED_PRESERVE src0_sel:WORD_0",
            wr={d + 1}, rd={s + 3, d + 1}, flags=("sdwa",))


PREP_AT = opt("prepat", 5)


def chunk_body(tag):
    for m in range(16):
        j = m // 2
        sq = []
        if m == BAR_AT and "--nobar" not in FLAGS:
            assert m % 2 == 1
            sq = [None, None, None, None, None, lambda: p.raw("s_barrier", "salu")]
        if m == 15:
            sq = [lambda: p.salu(f"s_add_u32 s{S_WB}, s{S_WB}, {BUF}"),
                  lambda: p.salu(f"s_cmp_ge_u32 s{S_WB}, {NBUF * BUF}"),
                  lambda: p.salu(f"s_cselect_b32 s{S_WB}, 0, s{S_WB}"),
                  lambda: p.salu(f"s_add_u32 s{S_CNT}, s{S_CNT}, 1"),
                  lambda: p.salu(f"s_cmp_lt_u32 s{S_CNT}, 8")]

        def X():
            if sq:
                f = sq.pop(0)
                if f:
                    f()

        if SCHED2:
            G(0, m)
            PV(3, m - 1)
            if m % 2 == 0:
                p.wait_lds(0)
                rd_km(j + 2)
                if j % 2 == 0:
                    rd_ke(j + 2)
            X()
            G(1, m)
            PV(4, m - 1)
            if m % 2 == 0:
                rd_vb(j + 1)
                rd_va(j + 1)
            X()
            G(2, m)
            M3(m + 1)
            G(3, m)
            if opt("idle", 0):
                p.nop(opt("idle", 0))
            G(4, m)
            PV(1, m)
            X()
            if m == 15:
                p.valu(f"v_mov_b32 v{V_CUR}, v{V_NXT}", wr={V_CUR}, rd={V_NXT})
                p.valu(f"v_lshl_add_u32 v{V_NXT}, v{V_LANE}, 4, s{S_WB}", wr={V_NXT}, rd={V_LANE})
            G(5, m)
            PV(2, m)
            X()
            G(6, m)
            M1(m + 2)
            X()
            G(7, m)
            M2(m + 2)
            X()
            assert not sq
            continue
        if M3F[0]:
            G(0, m)
            G(1, m)
            PV(4, m - 1)
            if m % 2 == 0:
                p.wait_lds(0)
                rd_vb(j + 1)
                rd_va(j + 1)
            X()
            G(2, m)
            PV(1, m)
            X()
            G(3, m)
            M1(m + 1)
            X()
            if m == 15:
                p.valu(f"v_mov_b32 v{V_CUR}, v{V_NXT}", wr={V_CUR}, rd={V_NXT})
                p.valu(f"v_lshl_add_u32 v{V_NXT}, v{V_LANE}, 4, s{S_WB}", wr={V_NXT}, rd={V_LANE})
            G(4, m)
            PV(2, m)
            X()
            G(5, m)
            M2(m + 1)
            if m % 2 == 0:
                rd_km(j + 2)
                if j % 2 == 0:
                    rd_ke(j + 2)
            X()
            G(6, m)
            PV(3, m)
            X()
            G(7, m)
            M3(m + 2)
            assert not sq
            continue
        G(0, m)
        M2(m + 1)
        if m % 2 == 0:
            p.wait_lds(0)
            rd_km(j + 2)
            if j % 2 == 0:
                rd_ke(j + 2)
        X()
        G(1, m)
        PV(4, m - 1)
        if m % 2 == 0:
            rd_vb(j + 1)
            rd_va(j + 1)
        X()
        G(2, m)
        PV(1, m)
        X()
        G(3, m, mid=lambda: M3(m + 1))
        if m == 15:
            p.valu(f"v_mov_b32 v{V_CUR}, v{V_NXT}", wr={V_CUR}, rd={V_NXT})
            p.valu(f"v_lshl_add_u32 v{V_NXT}, v{V_LANE}, 4, s{S_WB}", wr={V_NXT}, rd={V_LANE})
        G(4, m)
        G(5, m)
        PV(2, m)
        X()
        G(6, m)
        M1(m + 2)
        X()
        G(7, m)
        PV(3, m)
        X()
        assert not sq


assert BAR_AT <= 11
p.salu(f"s_mov_b32 s{S_CNT}, 0")
p.salu(f"s_mov_b32 s{S_WB}, {BUF}")
rd_km(0)
rd_ke(0)
rd_km(1)
rd_vb(0)
rd_va(0)
if M3F[0]:
    M3(0)
    M1(0)
    M2(0)
    M3(1)
elif SCHED2 and EARLY:
    M1(0)
    M2(0)
    M3(0)
    q_prep(RQ[1], 1, V_C, MAGIC_B, True)
    M1(1)
    M2(1)
elif SCHED2:
    M1(0)
    M2(0)
    M1(1)
    M2(1)
    M3(0)
else:
    M1(0)
    M2(0)
    M1(1)
    M3(0)
p.wait_lds(0)
if not (SCHED2 and EARLY):
    p.nop(20)

saved = (p.ins, p.nops_inserted)
p.ins = []
p.lds_pend = []
p.vm_pend = []
chunk_body("d")
tail = p.ins[-60:]
steady = list(p.lds_pend)
p.ins, p.nops_inserted = saved
p.ins.append(Inst(".p2align 6", "other", ws=0))
p.label("L_loop")
for i in tail:
    g = copy.copy(i)
    g.flags = set(g.flags) | {"ghost"}
    p.ins.append(g)
p.lds_pend = list(steady)
p.vm_pend = []
chunk_body("A")
assert [sorted(x) for x in p.lds_pend] == [sorted(x) for x in steady], (p.lds_pend, steady)
p.salu("s_cbranch_scc1 L_loop")
if SCHED2:
    PV(3, 15)
PV(4, 15)
stamp()
p.ds_read("ds_read_b32", V_FLAGV, 1, V_FLAGV, 0)


def epilogue(o_regs, soff, off0, ybase):
    for ti, o in enumerate(o_regs):
        R = V_T0 + 4 + 2 * ti
        y = ybase + 8 * ti
        p.trans(f"v_rcp_f32 v{R}, v{o + 10}", wr={R}, rd={o + 10})
        for j in range(5):
            p.valu(f"v_pk_mul_f32 v[{o + 2 * j}:{o + 2 * j + 1}], v[{o + 2 * j}:{o + 2 * j + 1}], v[{R}:{R + 1}] op_sel_hi:[1,0]",
                   wr={o + 2 * j, o + 2 * j + 1}, rd={o + 2 * j, o + 2 * j + 1, R})
        for j in range(5):
            p.valu(f"v_cvt_pk_bf16_f32 v{y + j}, v{o + 2 * j}, v{o + 2 * j + 1}", wr={y + j},
                   rd={o + 2 * j, o + 2 * j + 1})
        p.bstore(4, y, V_EA0, S_O, soff, off0 + ti * 32 * ROWB)
        p.bstore(1, y + 4, V_EA1, S_O, soff, off0 + ti * 32 * ROWB + 16)


o = OA[0]
p.valu(f"v_add_f32 v{t0}, |v{o}|, |v{o + 1}|", wr={t0}, rd={o, o + 1})
for r in range(2, 10):
    p.valu(f"v_add_f32 v{t0}, |v{o + r}|, v{t0}", wr={t0}, rd={o + r, t0})
p.valu(f"v_cmp_class_f32 vcc, v{t0}, s{S_CLS}", rd={t0}, swr={"vcc"}, srd={S_CLS})
p.valu(f"v_readfirstlane_b32 s{S_BAD}, v{V_FLAGV}", rd={V_FLAGV}, swr={S_BAD}, flags=("readlane",))
p.salu(f"s_or_b64 s[{S_BADM}:{S_BADM + 1}], s[{S_BADM}:{S_BADM + 1}], vcc", srd={"vcc"})
p.salu(f"s_or_b32 s{S_BAD}, s{S_BAD}, s{S_BADM}", srd={S_BAD})
p.salu(f"s_or_b32 s{S_BAD}, s{S_BAD}, s{S_BADM + 1}")
if not ({"--m3x8", "--nom3", "--nopv", "--pvswap"} & FLAGS):
    p.salu("s_cbranch_scc1 L_generic")
epilogue(OA[0:2], f"s{S_QOFF}", 0, P)
epilogue(OA[2:4], f"s{S_QOFF}", 64 * ROWB, KE[0])
if STAMP:
    stamp()
    p.salu("s_memrealtime s[62:63]")
    p.salu(f"s_load_dwordx2 s[56:57], s[0:1], {40 if '--dbgstamp' in FLAGS else 48}")
    p.raw("s_waitcnt lgkmcnt(0)", "wait")
    k = NSTAMP[0]
    NSTAMP[0] += 2
    p.salu(f"s_sub_u32 s{64 + 2 * k}, s62, s60")
    p.salu(f"s_add_u32 s{64 + 2 * k}, s{64 + 2 * k}, s64")
    p.salu(f"s_add_u32 s{66 + 2 * k}, s60, s64")
    p.salu("s_mov_b32 s58, 0x1000000")
    p.salu("s_mov_b32 s59, 0x00020000")
    p.valu(f"v_mov_b32 v{t2}, 0", wr={t2})
    for k in range(NSTAMP[0]):
        p.salu(f"s_sub_u32 s{S_TMP}, s{64 + 2 * k}, s64")
        p.valu(f"v_mov_b32 v{t1}, s{S_TMP}", wr={t1})
        p.valu(f"v_cmp_eq_u32 vcc, {k}, v{V_LANE}", rd={V_LANE}, swr={"vcc"})
        p.valu(f"v_cndmask_b32 v{t2}, v{t2}, v{t1}, vcc", wr={t2}, rd={t2, t1}, srd={"vcc"})
    if "--dbgstamp" in FLAGS:
        p.salu("s_mov_b32 s58, 64")
        p.salu(f"s_lshl_b32 s{S_TMP}, s2, 3")
        p.salu(f"s_add_u32 s{S_TMP}, s{S_TMP}, s{S_WAVE}")
        p.salu(f"s_mov_b32 s{S_TMP2}, 0x1000")
        p.salu(f"s_cmp_eq_u32 s{S_TMP}, {5 * 8}")
        p.salu(f"s_cselect_b32 s{S_TMP2}, 0, s{S_TMP2}")
        p.salu(f"s_cmp_eq_u32 s{S_TMP}, {200 * 8 + 3}")
        p.salu(f"s_cselect_b32 s{S_TMP2}, 32, s{S_TMP2}")
        p.valu(f"v_lshlrev_b32 v{t1}, 2, v{V_LANE}", wr={t1}, rd={V_LANE})
        p.valu(f"v_cmp_lt_u32 vcc, 7, v{V_LANE}", rd={V_LANE}, swr={"vcc"})
        p.valu(f"v_mov_b32 v{t3}, 0x1000", wr={t3})
        p.valu(f"v_cndmask_b32 v{t1}, v{t1}, v{t3}, vcc", wr={t1}, rd={t1, t3}, srd={"vcc"})
        p.valu(f"v_add_u32 v{t1}, s{S_TMP2}, v{t1}", wr={t1}, rd={t1})
        p.bstore(1, t2, t1, 56, "0", 0)
    else:
        p.valu(f"v_mov_b32 v{t1}, s2", wr={t1})
        p.valu(f"v_lshlrev_b32 v{t1}, 9, v{t1}", wr={t1}, rd={t1})
        p.valu(f"v_and_b32 v{t3}, 0xff, v{V_TID}", wr={t3}, rd={V_TID})
        p.valu(f"v_add_u32 v{t1}, v{t1}, v{t3}", wr={t1}, rd={t1, t3})
        p.valu(f"v_lshlrev_b32 v{t1}, 2, v{t1}", wr={t1}, rd={t1})
        p.bstore(1, t2, t1, 56, "0", 0)
p.label("L_end")
p.salu("s_endpgm")

p.label("L_producer")
p.lds_pend = []
p.vm_pend = vm_prod
p.salu(f"s_setprio {opt('pprio', 3)}")
consts()
p.salu(f"s_mov_b32 s{S_THR}, 0x{f32bits(2.0 ** -9):08x}")
p.salu(f"s_mov_b32 s{S_USED}, 0x{USED_MASK32:08x}")
p.salu(f"s_mov_b32 s{S_USED + 1}, 0x{USED_MASK32:08x}")
p.salu(f"s_mul_i32 s{S_PB}, s{S_W4}, {PAIR}")
p.valu(f"v_lshrrev_b32 v{t1}, 5, v{V_LANE}", wr={t1}, rd={V_LANE})
p.valu(f"v_lshl_add_u32 v{V_L16}, v{V_LANE}, 4, s{S_PB}", wr={V_L16}, rd={V_LANE})
p.valu(f"v_and_b32 v{t0}, 31, v{V_LANE}", wr={t0}, rd={V_LANE})
p.valu(f"v_lshl_add_u32 v{t2}, v{t0}, 4, s{S_PB}", wr={t2}, rd={t0})
p.valu(f"v_lshl_add_u32 v{V_WP0}, v{t1}, 10, v{t2}", wr={V_WP0}, rd={t1, t2})
p.valu(f"v_lshl_add_u32 v{V_WP1}, v{t1}, 3, v{t2}", wr={V_WP1}, rd={t1, t2})
ident()
p.valu(f"v_mov_b32 v{RAWV + 9}, 0x3f80", wr={RAWV + 9})
p.valu(f"v_mov_b32 v{RAWV1 + 9}, 0x3f80", wr={RAWV1 + 9})
p.valu(f"v_mov_b32 v{Y + 9}, 0x{MAGIC_A:08x}", wr={Y + 9})
p.valu(f"v_mov_b32 v{RAWK + 9}, 0", wr={RAWK + 9})
p.salu(f"s_mov_b32 s{S_M1}, 0xaaaaaaaa")
p.salu(f"s_mov_b32 s{S_M1 + 1}, 0xaaaaaaaa")
p.salu(f"s_mov_b32 s{S_M2}, 0xcccccccc")
p.salu(f"s_mov_b32 s{S_M2 + 1}, 0xcccccccc")
p.valu(f"v_mov_b32 v{t2}, 0x3f80", wr={t2})
p.valu(f"v_mov_b32 v{t3}, 0x3f800000", wr={t3})
p.valu(f"v_cndmask_b32 v{t2}, v{t2}, v{t3}, s[{S_M1}:{S_M1 + 1}]", wr={t2}, rd={t2, t3})
p.valu(f"v_mov_b32 v{t1}, 0", wr={t1})
p.valu(f"v_cndmask_b32 v{I4}, v{t2}, v{t1}, s[{S_M2}:{S_M2 + 1}]", wr={I4}, rd={t2, t1})
p.valu(f"v_cndmask_b32 v{I4 + 1}, v{t1}, v{t2}, s[{S_M2}:{S_M2 + 1}]", wr={I4 + 1}, rd={t2, t1})
p.ds_write("ds_write_b32", V_FLAGV, t1, 1, 0)
set_waddr("0")
PST = "--pstamp" in FLAGS


def pstamp(k):
    if PST:
        p.salu(f"s_memtime s[{64 + 2 * k}:{65 + 2 * k}]")
        p.raw("s_waitcnt lgkmcnt(0)", "wait")
        p.lds_pend = []


pstamp(1)
if PST:
    p.wait_vm(0)
pstamp(2)
kv_compute(RAWK1, RAWV1, False, fast=("--slowfirst" not in FLAGS))
pstamp(3)
for f in kv_writes():
    f()
t_check("L_end2")
p.lds_pend = []
pstamp(4)
p.raw("s_barrier", "salu")
pstamp(5)
if PST:
    p.salu("s_load_dwordx2 s[80:81], s[0:1], 48")
    p.raw("s_waitcnt lgkmcnt(0)", "wait")
    p.salu("s_mov_b32 s82, 0x1000000")
    p.salu("s_mov_b32 s83, 0x00020000")
    p.valu(f"v_mov_b32 v{t2}, 0", wr={t2})
    for k in range(6):
        p.salu(f"s_sub_u32 s{S_TMP}, s{64 + 2 * k}, s64")
        p.valu(f"v_mov_b32 v{t1}, s{S_TMP}", wr={t1})
        p.valu(f"v_cmp_eq_u32 vcc, {k}, v{V_LANE}", rd={V_LANE}, swr={"vcc"})
        p.valu(f"v_cndmask_b32 v{t2}, v{t2}, v{t1}, vcc", wr={t2}, rd={t2, t1}, srd={"vcc"})
    p.valu(f"v_mov_b32 v{t1}, s2", wr={t1})
    p.valu(f"v_lshlrev_b32 v{t1}, 9, v{t1}", wr={t1}, rd={t1})
    p.valu(f"v_add_u32 v{t1}, v{t1}, v{V_TID}", wr={t1}, rd={t1, V_TID})
    p.valu(f"v_add_u32 v{t1}, 0x100, v{t1}", wr={t1}, rd={t1})
    p.valu(f"v_lshlrev_b32 v{t1}, 2, v{t1}", wr={t1}, rd={t1})
    p.bstore(1, t2, t1, 80, "0", 0)
    p.wait_vm(0)
S_VOFF = S_QH
ld = kv_loads(f"s{S_SOFF}")
for f in ld:
    f()
p.salu(f"s_mov_b32 s{S_CNT}, 1")
p.salu(f"s_mov_b32 s{S_WB}, {BUF}")
p.salu(f"s_add_u32 s{S_VOFF}, s{S_SOFF}, {CHUNKB}")
T12(RAWV)
T3(RAWV)
for f in kv_loads(f"s{S_VOFF}")[:3]:
    f()
m = V_T0
p.valu(f"v_max_f32 v{m}, |v{TD}|, |v{TD + 1}|", wr={m}, rd={TD, TD + 1})
for r in range(2, 32, 2):
    p.valu(f"v_max3_f32 v{m}, |v{TD + r}|, |v{TD + r + 1}|, v{m}", wr={m}, rd={TD + r, TD + r + 1, m})
p.valu(f"v_cmp_gt_f32 vcc, s{S_THR}, v{m}", rd={m}, swr={"vcc"}, srd={S_THR})
p.salu(f"s_and_b64 vcc, vcc, s[{S_USED}:{S_USED + 1}]", srd={"vcc"})
p.salu(f"s_or_b64 s[{S_BADM}:{S_BADM + 1}], s[{S_BADM}:{S_BADM + 1}], vcc")
p.nop(4)
p.label("L_ploop")
p.vm_pend = [rng(RAWK, 4), rng(RAWK + 4, 4), rng(RAWK + 8, 1), rng(RAWV, 4), rng(RAWV + 4, 4), rng(RAWV + 8, 1)]
if "--pidle" in FLAGS:
    p.salu("s_branch L_pnoflag")
if "--ponlyld" in FLAGS:
    p.wait_vm(0)
    p.salu(f"s_add_u32 s{S_SOFF}, s{S_SOFF}, {CHUNKB}")
    p.salu(f"s_cmp_ge_u32 s{S_CNT}, 7")
    p.salu(f"s_cselect_b32 s{S_SOFF}, 0x40000000, s{S_SOFF}")
    for f in kv_loads(f"s{S_SOFF}"):
        f()
    p.salu("s_branch L_pnoflag")
    p.vm_pend = [rng(RAWK, 4), rng(RAWK + 4, 4), rng(RAWK + 8, 1), rng(RAWV, 4), rng(RAWV + 4, 4), rng(RAWV + 8, 1)]
set_waddr(f"s{S_WB}")
W = kv_writes()
cv = []
for f in range(4):
    for j in range(4):
        r = TD + 8 * f + 2 * j
        d = PK + 4 * f + j
        cv.append(lambda r=r, d=d: p.valu(f"v_cvt_pk_f16_f32 v{d}, v{r}, v{r + 1}", wr={d}, rd={r, r + 1}))


def cvn(n):
    def f():
        for _ in range(n):
            if cv:
                cv.pop(0)()
    return f


def wv(f):
    return lambda: p.ds_write("ds_write_b128", V_W2, PK + 4 * f, 4, 3072 + 1024 * f)


def seq(*fs):
    def g():
        for f in fs:
            f()
    return g


def next_k():
    p.salu(f"s_add_u32 s{S_SOFF}, s{S_SOFF}, {CHUNKB}")
    p.salu(f"s_cmp_ge_u32 s{S_CNT}, 7")
    p.salu(f"s_cselect_b32 s{S_SOFF}, 0x40000000, s{S_SOFF}")
    for f in kv_loads(f"s{S_SOFF}")[3:]:
        if "--pnold" not in FLAGS:
            f()


def next_v():
    p.salu(f"s_add_u32 s{S_VOFF}, s{S_VOFF}, {CHUNKB}")
    p.salu(f"s_cmp_ge_u32 s{S_CNT}, 6")
    p.salu(f"s_cselect_b32 s{S_VOFF}, 0x40000000, s{S_VOFF}")
    for f in kv_loads(f"s{S_VOFF}")[:3]:
        if "--pnold" not in FLAGS:
            f()


hooks = {}
for g in range(5):
    hooks[3 * g + 1] = cvn(1)
    hooks[3 * g + 2] = cvn(2)
hooks[5] = seq(cvn(2), wv(0))
hooks[8] = seq(cvn(2), wv(1))
hooks[14] = seq(cvn(2), wv(2))
hooks[15] = seq(cvn(4), wv(3), next_k)
hooks[16] = lambda: T1(RAWV)
hooks[23] = lambda: T2(RAWV)
hooks[33] = lambda: T3(RAWV)
hooks[36] = W[0]
norm_row_mfma(RAWK, [Y + j for j in range(9)], UREG, GREG, hooks=hooks, nops=False)
assert not cv
for f in W[1:4]:
    f()
next_v()
p.salu(f"s_cmp_lg_u32 s{S_CNT}, 7")
p.salu("s_cbranch_scc1 L_pnoflag")
idx = len(p.ins)
p.salu(f"s_or_b32 s{S_BAD}, s{S_BADM}, s{S_BADM + 1}")
p.valu(f"v_mov_b32 v{t1}, s{S_BAD}", wr={t1})
p.ds_write("ds_or_b32", V_FLAGV, t1, 1, 0)
if "--warmout" in FLAGS:
    p.valu(f"v_min_u32 v{t2}, 4, v{V_LANE}", wr={t2}, rd={V_LANE})
    p.valu(f"v_lshlrev_b32 v{t2}, 10, v{t2}", wr={t2}, rd={t2})
    p.bload(1, t3, t2, S_O, f"s{S_QOFF}", 0)
soft_label("L_pnoflag")
zero_ws(idx)
p.wait_lds(0)
p.raw("s_barrier", "salu")
p.salu(f"s_add_u32 s{S_WB}, s{S_WB}, {BUF}")
p.salu(f"s_cmp_ge_u32 s{S_WB}, {NBUF * BUF}")
p.salu(f"s_cselect_b32 s{S_WB}, 0, s{S_WB}")
p.salu(f"s_add_u32 s{S_CNT}, s{S_CNT}, 1")
p.salu(f"s_cmp_lt_u32 s{S_CNT}, 8")
p.nop(8)
p.salu("s_cbranch_scc1 L_ploop")
p.label("L_end2")
p.salu("s_endpgm")

M3F[0] = False
XP[0] = False
p.label("L_generic")
p.flush()
p.valu(f"v_mul_u32_u24 v{V_GK}, {ROWB}, v{V_LANE}", wr={V_GK}, rd={V_LANE})
p.valu(f"v_and_b32 v{t0}, 31, v{V_LANE}", wr={t0}, rd={V_LANE})
p.valu(f"v_mul_u32_u24 v{V_GV}, {ROWB}, v{t0}", wr={V_GV}, rd={t0})
p.valu(f"v_lshrrev_b32 v{t1}, 5, v{V_LANE}", wr={t1}, rd={V_LANE})
p.valu(f"v_lshl_add_u32 v{V_GV}, v{t1}, 4, v{V_GV}", wr={V_GV}, rd={t1, V_GV})
p.valu(f"v_mov_b32 v{RAWV + 9}, 0x3f80", wr={RAWV + 9})
ident()
p.salu(f"s_mov_b32 s{S_QH}, 0")
p.flush()
p.label("L_g_half")
load_rows(RAWK, V_GQ, S_Q, f"s{S_QOFF}")
q_prep(RAWK, 0, None, 0, False)
for o in GO:
    for r in range(16):
        p.valu(f"v_mov_b32 v{o + r}, 0", wr={o + r})
for g in GM:
    p.valu(f"v_mov_b32 v{g}, 0xff7fffff", wr={g})
p.salu(f"s_mov_b32 s{S_SOFF}, s{S_KOFF}")
p.salu(f"s_mov_b32 s{S_CNT}, 0")
p.flush()
p.label("L_g_pair")
load_rows(RAWK, V_GK, S_K, f"s{S_SOFF}")
load_v(RAWV, f"s{S_SOFF}")
norm_row(RAWK, None, False, [KM[0] + j for j in range(4)] + [KM[1] + j for j in range(4)] + [KE[0]])
p.valu(f"v_mov_b32 v{KE[0] + 2}, v{KE[0]}", wr={KE[0] + 2}, rd={KE[0]})
p.valu(f"v_mov_b32 v{KE[0] + 1}, 0", wr={KE[0] + 1})
p.valu(f"v_mov_b32 v{KE[0] + 3}, 0", wr={KE[0] + 3})
for j in range(4):
    a, b = KM[0] + j, KM[1] + j
    p.valu(f"v_permlane32_swap_b32 v{a}, v{b}", wr={a, b}, rd={a, b}, flags=("permlane",))
p.valu(f"v_permlane32_swap_b32 v{KE[0]}, v{KE[0] + 2}", wr={KE[0], KE[0] + 2}, rd={KE[0], KE[0] + 2},
       flags=("permlane",))
T12(RAWV)
T3(RAWV)
FR = [VA[0], VB[0], VA[1], VB[1]]
for f in range(4):
    for j in range(4):
        r = TD + 8 * f + 2 * j
        p.valu(f"v_cvt_pk_bf16_f32 v{FR[f] + j}, v{r}, v{r + 1}", wr={FR[f] + j}, rd={r, r + 1})
BF = "v_mfma_f32_32x32x16_bf16"
for tau in range(2):
    M1(2 * tau)
    M2(2 * tau)
    M3(2 * tau)
    S = SB[0]
    for ti, o in enumerate(GO):
        s = S + 16 * ti
        m = GM[ti]
        for r in range(16):
            p.valu(f"v_mul_f32 v{s + r}, v{s + r}, v{V_C}", wr={s + r}, rd={s + r, V_C})
        p.valu(f"v_max_f32 v{t0}, v{s}, v{s + 1}", wr={t0}, rd={s, s + 1})
        for r in range(2, 16, 2):
            p.valu(f"v_max3_f32 v{t0}, v{s + r}, v{s + r + 1}, v{t0}", wr={t0}, rd={s + r, s + r + 1, t0})
        p.valu(f"v_mov_b32 v{t1}, v{t0}", wr={t1}, rd={t0})
        p.valu(f"v_permlane32_swap_b32 v{t0}, v{t1}", wr={t0, t1}, rd={t0, t1}, flags=("permlane",))
        p.nop(2)
        p.valu(f"v_max3_f32 v{t0}, v{t0}, v{t1}, v{m}", wr={t0}, rd={t0, t1, m})
        p.valu(f"v_sub_f32 v{t1}, v{m}, v{t0}", wr={t1}, rd={m, t0})
        p.trans(f"v_exp_f32 v{t1}, v{t1}", wr={t1}, rd={t1})
        p.valu(f"v_mov_b32 v{m}, v{t0}", wr={m}, rd={t0})
        for r in range(16):
            p.valu(f"v_mul_f32 v{o + r}, v{o + r}, v{t1}", wr={o + r}, rd={o + r, t1})
        for r in range(16):
            p.valu(f"v_sub_f32 v{s + r}, v{s + r}, v{t0}", wr={s + r}, rd={s + r, t0})
        for r in range(16):
            p.trans(f"v_exp_f32 v{s + r}, v{s + r}", wr={s + r}, rd={s + r})
        for r in range(8):
            p.valu(f"v_cvt_pk_bf16_f32 v{P + 8 * ti + r}, v{s + 2 * r}, v{s + 2 * r + 1}", wr={P + 8 * ti + r},
                   rd={s + 2 * r, s + 2 * r + 1})
        p.mfma(BF, o, 16, VA[tau], 4, P + 8 * ti, 4, o, 8)
        p.mfma(BF, o, 16, VB[tau], 4, P + 8 * ti + 4, 4, o, 8)
p.flush()
p.salu(f"s_add_u32 s{S_SOFF}, s{S_SOFF}, {64 * ROWB}")
p.salu(f"s_add_u32 s{S_CNT}, s{S_CNT}, 1")
p.salu(f"s_cmp_lt_u32 s{S_CNT}, 32")
p.salu("s_cbranch_scc1 L_g_pair")
epilogue(GO, f"s{S_QOFF}", 0, P)
p.flush()
p.salu(f"s_add_u32 s{S_QOFF}, s{S_QOFF}, {64 * ROWB}")
p.salu(f"s_add_u32 s{S_QH}, s{S_QH}, 1")
p.salu(f"s_cmp_lt_u32 s{S_QH}, 2")
p.salu("s_cbranch_scc1 L_g_half")
p.salu("s_endpgm")

hdr = open(f"cdna_kernels/{NAME}.s.ref").read().split("\n")
top = []
for line in hdr:
    if line.startswith("; @launch"):
        top.append(f"; @launch grid=(256,1,1) block=(512,1,1) lds={LDS_BYTES}")
        break
    top.append(line)
body = []
for i in p.ins:
    if "ghost" in i.flags:
        continue
    if i.cls in ("label", "label2"):
        body.append(i.text)
    else:
        body.append("    " + i.text)
DOC = """
;
;   sampled magnitude is too small for f16."""
src = "\n".join(top) + DOC + f"""
.amdgcn_target "amdgcn-amd-amdhsa--gfx950"
.text
.globl {NAME}_kernel
.p2align 12
.p2align 8
.type {NAME}_kernel,@function
{NAME}_kernel:
""" + "\n".join(body) + f"""
.section .rodata,"a"
.p2align 6
.amdhsa_kernel {NAME}_kernel
  .amdhsa_next_free_vgpr {NV + NACC}
  .amdhsa_next_free_sgpr {100 if STAMP else 64}
  .amdhsa_accum_offset {NV}
  .amdhsa_group_segment_fixed_size 0
  .amdhsa_kernarg_size 56
  .amdhsa_user_sgpr_count 2
  .amdhsa_user_sgpr_kernarg_segment_ptr 1
  .amdhsa_system_sgpr_workgroup_id_x 1
.end_amdhsa_kernel
"""
open(OUT, "w").write(src)
print("wrote", OUT, "instructions:", len(body), "auto nops:", p.nops_inserted, "lds", LDS_BYTES)
```
